```python
import torch

def _softmax(x, axis=-1):
    return torch.softmax(x, dim=axis)
def _gelu(x):
    return torch.nn.functional.gelu(x, approximate="tanh")
def _silu(x):
    return torch.nn.functional.silu(x)
def _sigmoid(x):
    return torch.sigmoid(x)
def _layernorm(x, axis=-1, eps=1e-5):
    m = x.mean(dim=axis, keepdim=True)
    v = x.var(dim=axis, keepdim=True, unbiased=False)
    return (x - m) / torch.sqrt(v + eps)
def _scatter_add(tgt, idx, src, axis=0):
    return tgt.clone().index_add_(axis, idx, src)
def _segment_sum(src, seg, n):
    out = torch.zeros((n,) + src.shape[1:], dtype=src.dtype)
    return out.index_add_(0, seg, src)
def _pad(x, pw):
    flat = tuple(v for pair in reversed(pw) for v in pair)
    return torch.nn.functional.pad(x, flat)

kernel_name = 'standalone__molecular_angular_dimenet__graph'

def setup_inputs():

    _w = (lambda a: (lambda t: t.to(torch.bfloat16) if t.is_floating_point() else t)(torch.as_tensor(a)))
    N, deg, D = 10000, 16, 128
    n_rbf, L = max(0, 1), max(3, 1)
    E = N * deg
    T = E * deg
    d = torch.abs((lambda *s: torch.randn(*s, dtype=torch.bfloat16) * 0.05)(E)) + 0.5
    theta = torch.abs((lambda *s: torch.randn(*s, dtype=torch.bfloat16) * 0.05)(T)) * 0.8 + 0.1
    return {
        "h": _w((lambda *s: torch.randn(*s, dtype=torch.bfloat16) * 0.05)(E, D)),
        "d": _w(d),
        "theta": _w(theta),
        "idx_kj": _w((lambda lo, hi, *s: torch.randint(lo, hi, s))(0, E, T).to(torch.int64)),
        "idx_ji": _w((lambda lo, hi, *s: torch.randint(lo, hi, s))(0, E, T).to(torch.int64)),
        "freq": _w(torch.arange(1, n_rbf + 1).to(float) * torch.pi / 5.0),
        "ell": _w(torch.arange(1, L + 1).to(float)),
        "w_sbf": _w((lambda *s: torch.randn(*s, dtype=torch.bfloat16) * 0.05)(n_rbf * L, D) * (n_rbf * L) ** -0.5),
        "w_rbf": _w((lambda *s: torch.randn(*s, dtype=torch.bfloat16) * 0.1)(n_rbf, D) * n_rbf ** -0.5),
    }

def reference(h, d, theta, idx_kj, idx_ji, freq, ell, w_sbf, w_rbf):
    E = h.shape[0]
    n_rbf = freq.shape[0]
    L = ell.shape[0]
    rbf = torch.sin(d[:, None] * freq[None, :]) / d[:, None]
    d_kj = d[idx_kj]
    rad = torch.sin(d_kj[:, None] * freq[None, :]) / d_kj[:, None]
    ang = torch.cos(theta[:, None] * ell[None, :])
    sbf = torch.reshape(rad[:, :, None] * ang[:, None, :], (-1, n_rbf * L))
    m = h[idx_kj] * (sbf @ w_sbf)
    agg = _segment_sum(m, idx_ji, E)
    return h * (rbf @ w_rbf) + agg
```

```python
import struct
import sys

E = 160000
T = 2560000
CHUNK = 10240
NCHUNK = T // CHUNK
H_BYTES = E * 256

WS_REC = 0
WS_RAD = 0x1400000
WS_TAB = 0x1480000
WS_END = WS_TAB + NCHUNK * 1024
WS_STAMP = 0x1500000


def f32bits(x):
    return struct.unpack("<I", struct.pack("<f", x))[0]


INV2PI = 0.15915494309189535
C_HI = f32bits(INV2PI) & 0xFFFFFF00
C_LO = f32bits(INV2PI - struct.unpack("<f", struct.pack("<I", C_HI))[0])


class Asm:
    def __init__(self):
        self.lines = []

    def __call__(self, text):
        for ln in text.strip("\n").split("\n"):
            ln = ln.strip()
            if not ln:
                continue
            self.lines.append(ln if ln.endswith(":") else "    " + ln)

    def raw(self, text):
        self.lines.append(text)

    def text(self):
        return "\n".join(self.lines) + "\n"


def srd(a, d, lo, hi, nbytes):
    a(f"""
    s_mov_b32 s{d}, s{lo}
    s_mov_b32 s{d+1}, s{hi}
    s_mov_b32 s{d+2}, {nbytes}
    s_mov_b32 s{d+3}, 0x20000""")


def wave_scan(a, x):
    for sh in (1, 2, 4, 8):
        a(f"s_nop 1\nv_add_u32_dpp v{x}, v{x}, v{x} row_shr:{sh} row_mask:0xf bank_mask:0xf bound_ctrl:0")
    a(f"s_nop 1\nv_add_u32_dpp v{x}, v{x}, v{x} row_bcast:15 row_mask:0xa bank_mask:0xf")
    a(f"s_nop 1\nv_add_u32_dpp v{x}, v{x}, v{x} row_bcast:31 row_mask:0xc bank_mask:0xf")


def stamp(a, cfg, srd_ws, slot, vtmp, s0, swave_off):
    if not cfg["stamps"]:
        return
    a(f"""
    s_memrealtime s[{s0}:{s0+1}]
    s_waitcnt lgkmcnt(0)
    v_mov_b32 v{vtmp}, s{s0}
    v_mov_b32 v{vtmp+1}, {slot*4}
    s_mov_b64 exec, 1
    buffer_store_dword v{vtmp}, v{vtmp+1}, s[{srd_ws}:{srd_ws+3}], s{swave_off} offen
    s_mov_b64 exec, -1""")


def gen_bucket(a, cfg):
    HIST, BASE, RECS = 0, 1024, 2048
    S_JI, S_KJ, S_TH, S_WS = 16, 20, 24, 28
    ws_size = WS_STAMP + 0x100000 if cfg["stamps"] else WS_END
    st = cfg["k1_store"]
    a.raw(".p2align 8\n.globl bucket_kernel\n.type bucket_kernel,@function\nbucket_kernel:")
    a(f"""
    s_cmp_ge_u32 s2, 256
    s_cbranch_scc1 K1_end
    s_cmp_ge_u32 s2, {NCHUNK}
    s_cbranch_scc1 K1_rad
    s_load_dwordx4 s[4:7], s[0:1], 16
    s_load_dwordx2 s[8:9], s[0:1], 32
    s_load_dwordx2 s[10:11], s[0:1], 88
    v_lshlrev_b32 v1, 4, v0
    v_lshlrev_b32 v2, 3, v0
    v_lshlrev_b32 v3, 2, v0
    s_mul_i32 s12, s2, {CHUNK*4}
    s_add_u32 s13, s12, 16384
    s_add_u32 s14, s12, 32768
    s_mul_i32 s32, s2, {CHUNK*2}
    s_add_u32 s33, s32, 8192
    s_add_u32 s34, s32, 16384
    v_mov_b32 v34, 0
    v_and_b32 v35, 0x3fc, v3
    v_mov_b32 v36, 1
    ds_write_b32 v35, v34 offset:{HIST}
    s_waitcnt lgkmcnt(0)""")
    srd(a, S_JI, 8, 9, T * 4)
    srd(a, S_KJ, 6, 7, T * 4)
    srd(a, S_TH, 4, 5, T * 2)
    srd(a, S_WS, 10, 11, ws_size)
    if cfg["stamps"]:
        a(f"""
        v_readfirstlane_b32 s40, v0
        s_lshr_b32 s40, s40, 6
        s_lshl_b32 s41, s2, 4
        s_add_u32 s40, s40, s41
        s_lshl_b32 s40, s40, 5
        s_add_u32 s40, s40, {WS_STAMP}""")
    stamp(a, cfg, S_WS, 0, 90, 42, 40)
    ld = cfg["k1_load"]
    a(f"""
    buffer_load_dwordx4 v[4:7], v1, s[{S_JI}:{S_JI+3}], s12 offen {ld}
    buffer_load_dwordx4 v[8:11], v1, s[{S_JI}:{S_JI+3}], s13 offen {ld}
    buffer_load_dwordx2 v[12:13], v2, s[{S_JI}:{S_JI+3}], s14 offen {ld}
    buffer_load_dwordx4 v[16:19], v1, s[{S_KJ}:{S_KJ+3}], s12 offen {ld}
    buffer_load_dwordx4 v[20:23], v1, s[{S_KJ}:{S_KJ+3}], s13 offen {ld}
    buffer_load_dwordx2 v[24:25], v2, s[{S_KJ}:{S_KJ+3}], s14 offen {ld}
    buffer_load_dwordx2 v[28:29], v2, s[{S_TH}:{S_TH+3}], s32 offen {ld}
    buffer_load_dwordx2 v[30:31], v2, s[{S_TH}:{S_TH+3}], s33 offen {ld}
    buffer_load_dword v32, v3, s[{S_TH}:{S_TH+3}], s34 offen {ld}
    s_barrier""")
    JI = [4 + i for i in range(10)]
    KJ = [16 + i for i in range(10)]
    BK = [60 + i for i in range(10)]
    RK = [70 + i for i in range(10)]
    R0 = [40 + 2 * i for i in range(10)]
    for lo, hi, n in ((0, 4, 8), (4, 8, 7), (8, 10, 6)):
        a(f"s_waitcnt vmcnt({n})")
        for i in range(lo, hi):
            a(f"v_lshlrev_b32_sdwa v{BK[i]}, 2, v{JI[i]} dst_sel:DWORD dst_unused:UNUSED_PAD src0_sel:DWORD src1_sel:BYTE_0")
        for i in range(lo, hi):
            a(f"ds_add_rtn_u32 v{RK[i]}, v{BK[i]}, v36 offset:{HIST}")
    for i in range(10):
        a(f"""
        v_lshrrev_b32 v80, 10, v{JI[i]}
        v_bfe_u32 v81, v{JI[i]}, 8, 3
        v_and_b32 v80, 0xfe, v80
        v_lshl_or_b32 v{R0[i]}, v81, 26, v80""")
    for lo, hi, n in ((0, 4, 5), (4, 8, 4), (8, 10, 3)):
        a(f"s_waitcnt vmcnt({n})")
        for i in range(lo, hi):
            a(f"v_lshl_or_b32 v{R0[i]}, v{KJ[i]}, 8, v{R0[i]}")
    for lo, hi, n in ((0, 4, 2), (4, 8, 1), (8, 10, 0)):
        a(f"s_waitcnt vmcnt({n})")
        for i in range(lo, hi):
            th = 28 + i // 2
            if i % 2 == 0:
                a(f"v_and_b32 v{R0[i]+1}, 0xffff, v{th}")
            else:
                a(f"v_lshrrev_b32 v{R0[i]+1}, 16, v{th}")
    a("s_waitcnt lgkmcnt(0)\ns_barrier")
    stamp(a, cfg, S_WS, 1, 90, 42, 40)
    a(f"""
    v_and_b32 v80, 63, v0
    v_lshlrev_b32 v80, 4, v80
    ds_read_b128 v[4:7], v80 offset:{HIST}
    s_waitcnt lgkmcnt(0)
    v_add_u32 v8, v4, v5
    v_add3_u32 v8, v8, v6, v7
    v_mov_b32 v9, v8""")
    wave_scan(a, 9)
    a(f"""
    s_nop 0
    v_sub_u32 v12, v9, v8
    v_add_u32 v13, v12, v4
    v_add_u32 v14, v13, v5
    v_add_u32 v15, v14, v6
    ds_write_b128 v80, v[12:15] offset:{BASE}""")
    for i in range(10):
        a(f"ds_read_b32 v{BK[i]}, v{BK[i]} offset:{BASE}")
    a(f"""
    v_readfirstlane_b32 s15, v0
    s_cmp_lg_u32 s15, 0
    s_cbranch_scc1 K1_notab
    v_lshl_or_b32 v16, v4, 16, v12
    v_lshl_or_b32 v17, v5, 16, v13
    v_lshl_or_b32 v18, v6, 16, v14
    v_lshl_or_b32 v19, v7, 16, v15
    s_lshl_b32 s15, s2, 10
    s_add_u32 s15, s15, {WS_TAB}
    buffer_store_dwordx4 v[16:19], v80, s[{S_WS}:{S_WS+3}], s15 offen {st}
    K1_notab:""")
    for i in range(10):
        a("s_waitcnt lgkmcnt(9)")
        a(f"v_add_lshl_u32 v{BK[i]}, v{BK[i]}, v{RK[i]}, 3")
        a(f"ds_write_b64 v{BK[i]}, v[{R0[i]}:{R0[i]+1}] offset:{RECS}")
    a("s_waitcnt lgkmcnt(0)\ns_barrier")
    stamp(a, cfg, S_WS, 2, 90, 42, 40)
    a(f"s_mul_i32 s12, s2, {CHUNK*8}")
    a("v_add_u32 v2, 0x10000, v1")
    for k in range(5):
        if k < 4:
            off = RECS + k * 16384
            a(f"ds_read_b128 v[{4+4*k}:{7+4*k}], v1 offset:{off}")
        else:
            a(f"ds_read_b128 v[{4+4*k}:{7+4*k}], v2 offset:{RECS}")
    for k in range(5):
        a(f"s_waitcnt lgkmcnt({4-k})")
        a(f"buffer_store_dwordx4 v[{4+4*k}:{7+4*k}], v1, s[{S_WS}:{S_WS+3}], s12 offen {st}")
        if k < 4:
            a("s_add_u32 s12, s12, 16384")
    if cfg["stamps"]:
        a("s_waitcnt vmcnt(0)")
        stamp(a, cfg, S_WS, 3, 90, 42, 40)
    a("s_endpgm")

    a(f"""
    K1_rad:
    s_load_dwordx2 s[4:5], s[0:1], 8
    s_load_dwordx2 s[6:7], s[0:1], 40
    s_load_dwordx2 s[10:11], s[0:1], 88
    s_sub_u32 s12, s2, {NCHUNK}
    s_lshl_b32 s12, s12, 14
    v_lshlrev_b32 v1, 4, v0
    v_add_u32 v1, s12, v1
    s_waitcnt lgkmcnt(0)
    s_load_dword s14, s[6:7], 0""")
    srd(a, 16, 4, 5, E * 2)
    a(f"s_add_u32 s10, s10, {WS_RAD}\ns_addc_u32 s11, s11, 0")
    srd(a, 20, 10, 11, E * 2)
    STEP = 6 * 16384
    for it in range(4):
        a(f"s_mov_b32 s{24+it}, {it*STEP}")
        a(f"buffer_load_dwordx4 v[{4+4*it}:{7+4*it}], v1, s[16:19], s{24+it} offen")
    a(f"""
    s_mov_b32 s30, {C_HI:#x}
    s_mov_b32 s31, {C_LO:#x}
    v_mov_b32 v40, 0xffff0000
    s_waitcnt lgkmcnt(0)
    s_lshl_b32 s14, s14, 16""")
    for it in range(4):
        a(f"s_waitcnt vmcnt(3)")
        for j in range(4):
            r = 4 + 4 * it + j
            a(f"""
            v_lshlrev_b32 v30, 16, v{r}
            v_and_b32 v31, v40, v{r}
            v_rcp_f32 v36, v30
            v_rcp_f32 v37, v31
            v_mul_f32 v32, s14, v30
            v_mul_f32 v33, s14, v31
            v_cvt_pk_bf16_f32 v32, v32, v33
            v_and_b32 v33, v40, v32
            v_lshlrev_b32 v32, 16, v32
            v_mul_f32 v34, s30, v32
            v_mul_f32 v35, s30, v33
            v_rndne_f32 v38, v34
            v_rndne_f32 v39, v35
            v_sub_f32 v34, v34, v38
            v_sub_f32 v35, v35, v39
            v_fma_f32 v34, v32, s31, v34
            v_fma_f32 v35, v33, s31, v35
            v_sin_f32 v34, v34
            v_sin_f32 v35, v35
            s_nop 0
            v_cvt_pk_bf16_f32 v34, v34, v35
            v_and_b32 v35, v40, v34
            v_lshlrev_b32 v34, 16, v34
            v_mul_f32 v34, v34, v36
            v_mul_f32 v35, v35, v37
            v_cvt_pk_bf16_f32 v{r}, v34, v35""")
        a(f"buffer_store_dwordx4 v[{4+4*it}:{7+4*it}], v1, s[20:23], s{24+it} offen")
    a("""
    K1_end:
    s_endpgm""")
    return RECS + CHUNK * 8


def gen_sweep(a, cfg):
    NS = cfg["ns"]
    NSL = NS + 2
    PIECE = 63
    DP = cfg["dp"]
    RR = 32
    SUB = cfg["sub"]
    SHIFT = cfg["key_shift"]
    NBIN = 1 << (29 - SHIFT)
    BPL = NBIN // 64
    KMASK = (NBIN - 1) << 2
    HIST, BASE, FLAG, ZERO, RING, RECS = 0, 2048, 4096, 4352, 5632, 14336
    CAP = 8 * (NS * PIECE + 79)
    NC = 24
    lds = RECS + CAP * 8 + 512
    assert lds <= 163840 and NBIN <= 512 and RING + 8192 <= RECS

    V_LANE, V_L4, V_L8, V_AADDR, V_BW, V_RINGW, V_TOFF, V_TLEN, V_MHI, V_ONE = 0, 1, 2, 3, 4, 8, 9, 10, 11, 12
    V_RADDR = 13
    P = 14
    ACC = 98
    V_RAW = P
    V_F = P + 32
    V_H = V_F + 16
    V_A = V_H + 8
    V_RC = V_A + 4
    V_RN = V_RC + 2
    V_S = V_RN + 2
    V_T = V_S + 2
    assert V_T + 4 <= ACC and V_RN % 2 == 0 and V_S % 2 == 0 and V_A % 2 == 0
    S_H, S_OUT, S_WS = 4, 8, 12
    S_B, S_WAVE, S_SEG, S_REM, S_OFF, S_MORE, S_N, S_START = 16, 17, 18, 19, 20, 21, 22, 23
    S_ELL, S_CHI, S_CLO, S_MASK, S_RADOFF, S_T = 24, 27, 28, 29, 30, 32
    S_O = 36
    S_R = 40
    S_STAMP = 80
    ws_size = WS_STAMP + 0x100000 if cfg["stamps"] else WS_END

    a.raw(".p2align 8\n.globl sweep_kernel\n.type sweep_kernel,@function\nsweep_kernel:")
    a(f"""
    s_cmp_ge_u32 s2, 256
    s_cbranch_scc1 K3_end
    s_load_dwordx2 s[84:85], s[0:1], 0
    s_load_dwordx4 s[88:91], s[0:1], 48
    s_load_dwordx4 s[92:95], s[0:1], 64
    s_load_dwordx2 s[86:87], s[0:1], 88
    v_readfirstlane_b32 s{S_WAVE}, v0
    s_and_b32 s{S_B}, s2, 7
    s_lshl_b32 s{S_B}, s{S_B}, 5
    s_lshr_b32 s{S_T}, s2, 3
    s_add_u32 s{S_B}, s{S_B}, s{S_T}
    s_lshr_b32 s{S_WAVE}, s{S_WAVE}, 6
    v_lshlrev_b32 v{P}, 5, v0
    v_and_b32 v{V_LANE}, 63, v0
    v_lshlrev_b32 v{V_L4}, 2, v{V_LANE}
    v_lshlrev_b32 v{V_L8}, 3, v{V_LANE}
    v_mov_b32 v{P+2}, 0
    v_mov_b32 v{P+3}, 0
    v_mov_b32 v{P+4}, 0
    v_mov_b32 v{P+5}, 0
    ds_write_b128 v{P}, v[{P+2}:{P+5}]
    ds_write_b128 v{P}, v[{P+2}:{P+5}] offset:16
    s_lshl_b32 s{S_T}, s{S_WAVE}, 5
    v_add_u32 v{V_TOFF}, s{S_T}, v{V_LANE}
    v_lshlrev_b32 v{P+1}, 10, v{V_TOFF}
    s_lshl_b32 s{S_T}, s{S_B}, 2
    s_add_u32 s{S_T}, s{S_T}, {WS_TAB}
    s_waitcnt lgkmcnt(0)""")
    srd(a, S_WS, 86, 87, ws_size)
    a(f"buffer_load_dword v{V_TLEN}, v{P+1}, s[{S_WS}:{S_WS+3}], s{S_T} offen")
    a(f"s_load_dwordx2 s[{S_ELL}:{S_ELL+1}], s[88:89], 0")
    srd(a, S_H, 90, 91, 768)
    srd(a, S_OUT, 92, 93, 256)
    a(f"""
    buffer_load_dword v{P+8}, v{V_L4}, s[{S_H}:{S_H+3}], 0 offen
    buffer_load_dword v{P+9}, v{V_L4}, s[{S_H}:{S_H+3}], 0 offen offset:256
    buffer_load_dword v{P+10}, v{V_L4}, s[{S_H}:{S_H+3}], 0 offen offset:512
    buffer_load_dword v{P+11}, v{V_L4}, s[{S_OUT}:{S_OUT+3}], 0 offen""")
    if cfg["stamps"]:
        a(f"""
        s_lshl_b32 s{S_STAMP}, s2, 3
        s_add_u32 s{S_STAMP}, s{S_STAMP}, s{S_WAVE}
        s_lshl_b32 s{S_STAMP}, s{S_STAMP}, 5
        s_add_u32 s{S_STAMP}, s{S_STAMP}, {WS_STAMP + 0x40000}""")
    a(f"""
    v_mov_b32 v{V_MHI}, 0xffff0000
    v_mov_b32 v{V_ONE}, 1
    s_lshl_b32 s{S_T}, s{S_WAVE}, 10
    s_add_u32 s{S_T}, s{S_T}, {RING}
    v_lshl_add_u32 v{V_RINGW}, v{V_LANE}, 4, s{S_T}
    v_bfe_u32 v{P+2}, v{V_LANE}, 3, 2
    v_bfe_u32 v{P+3}, v{V_LANE}, 1, 1
    v_lshl_add_u32 v{P+2}, v{P+2}, 1, v{P+3}
    v_and_b32 v{P+3}, 1, v{V_LANE}
    v_lshlrev_b32 v{P+2}, 4, v{P+2}
    v_lshlrev_b32 v{P+3}, 3, v{P+3}
    v_sub_u32 v{P+2}, v{P+2}, v{P+3}
    v_add_u32 v{P+2}, s{S_T}, v{P+2}
    v_bfe_u32 v{P+3}, v{V_LANE}, 2, 1
    v_lshrrev_b32 v{P+4}, 5, v{V_LANE}
    v_cmp_eq_u32 vcc, v{P+3}, v{P+4}
    v_mov_b32 v{P+5}, {ZERO}
    s_mov_b32 s{S_CHI}, {C_HI:#x}
    s_mov_b32 s{S_CLO}, {C_LO:#x}
    v_cndmask_b32 v{V_AADDR}, v{P+5}, v{P+2}, vcc
    s_mov_b32 s{S_MASK}, 0x03ffff00
    s_mov_b32 s{S_RADOFF}, {WS_RAD}
    s_mov_b32 s{S_T}, {CHUNK*8}
    v_cmp_gt_u32 vcc, {NCHUNK}, v{V_TOFF}
    v_mul_lo_u32 v{V_TOFF}, v{V_TOFF}, s{S_T}
    s_mov_b32 s{S_SEG}, 0
    s_mov_b32 s{S_REM}, 0
    s_mov_b32 s{S_OFF}, 0""")
    for i in range(158):
        a(f"v_mov_b32 v{ACC+i}, 0")
    a(f"""
    s_waitcnt lgkmcnt(0)
    s_and_b32 s{S_ELL+2}, s{S_ELL}, 0xffff0000
    s_lshl_b32 s{S_ELL}, s{S_ELL}, 16
    s_lshl_b32 s{S_T}, s{S_ELL+1}, 16
    s_mov_b32 s{S_ELL+1}, s{S_ELL+2}
    s_mov_b32 s{S_ELL+2}, s{S_T}
    s_mov_b32 s{S_T}, 0x05040100
    s_mov_b32 s{S_T+1}, 0x07060302
    s_waitcnt vmcnt(0)
    v_perm_b32 v{V_BW}, v{P+9}, v{P+8}, s{S_T}
    v_perm_b32 v{V_BW+1}, v{P+11}, v{P+10}, s{S_T}
    v_perm_b32 v{V_BW+2}, v{P+9}, v{P+8}, s{S_T+1}
    v_perm_b32 v{V_BW+3}, v{P+11}, v{P+10}, s{S_T+1}
    v_cndmask_b32 v{V_TLEN}, 0, v{V_TLEN}, vcc
    v_and_b32 v{P+1}, 0xffff, v{V_TLEN}
    v_lshl_add_u32 v{V_TOFF}, v{P+1}, 3, v{V_TOFF}
    v_lshrrev_b32 v{V_TLEN}, 16, v{V_TLEN}""")
    srd(a, S_H, 84, 85, H_BYTES)
    srd(a, S_OUT, 94, 95, H_BYTES)
    SA, SB = P + 2 * NS, P + 2 * NS + 2
    a(f"""
    s_lshl_b32 s{S_T}, s{S_WAVE}, 8
    s_add_u32 s{S_T}, s{S_T}, s{S_B}
    s_lshl_b32 s{S_T}, s{S_T}, 8
    s_lshl_b32 s{S_T+1}, s{S_WAVE}, 26
    s_or_b32 s{S_T}, s{S_T}, s{S_T+1}
    s_bitset1_b32 s{S_T}, 31
    s_mov_b32 s{S_T+1}, {(1 << 19) + 2}
    v_mul_lo_u32 v{SA}, v{V_LANE}, s{S_T+1}
    v_add_u32 v{SA}, s{S_T}, v{SA}
    v_add_u32 v{SB}, {40 * ((1 << 19) + 2)}, v{SA}
    v_mov_b32 v{SA+1}, 0
    v_mov_b32 v{SB+1}, 0
    s_mov_b32 s{S_R+NS}, 40
    s_cmp_eq_u32 s{S_WAVE}, 0
    s_cselect_b32 s{S_R+NS+1}, 39, 38""")
    stamp(a, cfg, S_WS, 0, P, 82, S_STAMP)

    a("K3_round:")
    for k in range(NS):
        a(f"""
        s_cmp_lg_u32 s{S_REM}, 0
        s_cbranch_scc1 K3_have{k}
        K3_adv{k}:
        s_cmp_ge_u32 s{S_SEG}, 32
        s_cbranch_scc1 K3_have{k}
        v_readlane_b32 s{S_REM}, v{V_TLEN}, s{S_SEG}
        v_readlane_b32 s{S_OFF}, v{V_TOFF}, s{S_SEG}
        s_add_u32 s{S_SEG}, s{S_SEG}, 1
        s_cmp_eq_u32 s{S_REM}, 0
        s_cbranch_scc1 K3_adv{k}
        K3_have{k}:
        s_min_u32 s{S_R+k}, s{S_REM}, {PIECE}
        s_mov_b32 s{S_T}, s{S_OFF}
        s_sub_u32 s{S_REM}, s{S_REM}, s{S_R+k}
        buffer_load_dwordx2 v[{P+2*k}:{P+2*k+1}], v{V_L8}, s[{S_WS}:{S_WS+3}], s{S_T} offen
        s_add_u32 s{S_OFF}, s{S_OFF}, {PIECE*8}""")
    TK = P + 2 * NSL
    G = (ACC - TK) // 2
    assert G >= 4
    a(f"""
    v_cmp_le_u32 vcc, s{S_SEG}, v{V_LANE}
    v_cmp_lt_u32 s[{S_T}:{S_T+1}], 0, v{V_TLEN}
    s_and_b32 s{S_T}, s{S_T}, vcc_lo
    s_or_b32 s{S_T}, s{S_T}, s{S_REM}
    s_barrier
    s_cmp_eq_u32 s{S_T}, 0
    s_cbranch_scc1 K3_nomore
    v_mov_b32 v{TK}, {FLAG}
    ds_write_b32 v{TK}, v{V_ONE}
    K3_nomore:""")

    order = [NS, NS + 1] + list(range(NS))
    groups = [order[i:i + G] for i in range(0, NSL, G)]

    def keys(g, gi):
        for j, k in enumerate(g):
            t = TK + (gi % 2) * G + j
            if k < NS:
                a(f"s_waitcnt vmcnt({NS-1-k})")
            a(f"v_lshrrev_b32 v{t}, {SHIFT-2}, v{P+2*k}\nv_and_b32 v{t}, {KMASK}, v{t}")

    keys(groups[0], 0)
    for gi, g in enumerate(groups):
        for j, k in enumerate(g):
            t = TK + (gi % 2) * G + j
            a(f"s_bfm_b64 exec, s{S_R+k}, 0\nds_add_rtn_u32 v{t}, v{t}, v{V_ONE} offset:{HIST}")
        a("s_mov_b64 exec, -1")
        if gi + 1 < len(groups):
            keys(groups[gi + 1], gi + 1)
        a("s_waitcnt lgkmcnt(0)")
        for j, k in enumerate(g):
            t = TK + (gi % 2) * G + j
            a(f"v_lshl_or_b32 v{P+2*k+1}, v{t}, 16, v{P+2*k+1}")
    a("s_barrier")
    stamp(a, cfg, S_WS, 1, TK, 82, S_STAMP)

    assert BPL in (4, 8) and TK + BPL + 3 <= ACC and TK % 2 == 0
    C = TK
    X, Y, AD = TK + BPL, TK + BPL + 1, TK + BPL + 2
    a(f"v_lshlrev_b32 v{AD}, {2 + BPL.bit_length() - 1}, v{V_LANE}")
    a(f"v_mov_b32 v{X}, {FLAG}")
    a(f"ds_read_b32 v{X}, v{X}")
    for q in range(BPL // 4):
        a(f"ds_read_b128 v[{C+4*q}:{C+4*q+3}], v{AD} offset:{HIST+16*q}")
    a(f"s_waitcnt lgkmcnt(0)\nv_readfirstlane_b32 s{S_MORE}, v{X}")
    for q in range(1, BPL):
        a(f"v_add_u32 v{C+q}, v{C+q}, v{C+q-1}")
    a(f"v_mov_b32 v{X}, v{C+BPL-1}")
    wave_scan(a, X)
    a(f"s_nop 0\nv_sub_u32 v{Y}, v{X}, v{C+BPL-1}")
    for q in range(BPL - 1, 0, -1):
        a(f"v_add_u32 v{C+q}, v{Y}, v{C+q-1}")
    a(f"v_mov_b32 v{C}, v{Y}")
    for q in range(BPL // 4):
        a(f"ds_write_b128 v{AD}, v[{C+4*q}:{C+4*q+3}] offset:{BASE+16*q}")
    a(f"""
    s_lshl_b32 s{S_T}, s{S_WAVE}, 3
    s_add_u32 s{S_T+1}, s{S_T}, 7
    v_readlane_b32 s{S_START}, v{Y}, s{S_T}
    v_readlane_b32 s{S_N}, v{X}, s{S_T+1}
    s_sub_u32 s{S_N}, s{S_N}, s{S_START}""")

    def keys_b(g, gi):
        for j, k in enumerate(g):
            t = TK + (gi % 2) * G + j
            a(f"v_lshrrev_b32 v{t}, {SHIFT-2}, v{P+2*k}\nv_and_b32 v{t}, {KMASK}, v{t}")
        for j, k in enumerate(g):
            t = TK + (gi % 2) * G + j
            a(f"ds_read_b32 v{t}, v{t} offset:{BASE}")

    a("s_waitcnt lgkmcnt(0)")
    keys_b(groups[0], 0)
    for gi, g in enumerate(groups):
        a("s_waitcnt lgkmcnt(0)")
        if gi + 1 < len(groups):
            keys_b(groups[gi + 1], gi + 1)
        for j, k in enumerate(g):
            t = TK + (gi % 2) * G + j
            a(f"v_add_u32_sdwa v{t}, v{t}, v{P+2*k+1} dst_sel:DWORD dst_unused:UNUSED_PAD src0_sel:DWORD src1_sel:WORD_1")
        for j, k in enumerate(g):
            t = TK + (gi % 2) * G + j
            a(f"v_lshlrev_b32 v{t}, 3, v{t}")
        for j, k in enumerate(g):
            t = TK + (gi % 2) * G + j
            a(f"s_bfm_b64 exec, s{S_R+k}, 0\nds_write_b64 v{t}, v[{P+2*k}:{P+2*k+1}] offset:{RECS}")
        a("s_mov_b64 exec, -1")
    a(f"""
    s_waitcnt lgkmcnt(0)
    s_barrier""")
    stamp(a, cfg, S_WS, 2, P, 82, S_STAMP)
    a(f"""
    s_cmp_eq_u32 s{S_MORE}, 0
    s_cbranch_scc1 K3_keep
    s_lshl_b32 s{S_T}, s{S_WAVE}, 8
    v_add_u32 v{P}, s{S_T}, v{V_L4}
    v_mov_b32 v{P+1}, 0
    v_mov_b32 v{P+2}, {FLAG}
    ds_write_b32 v{P}, v{P+1} offset:{HIST}
    ds_write_b32 v{P+2}, v{P+1}
    K3_keep:
    s_cmp_eq_u32 s{S_N}, 0
    s_cbranch_scc1 K3_swept
    s_lshl_b32 s{S_T}, s{S_START}, 3
    s_add_u32 s{S_T}, s{S_T}, {RECS}
    v_add_u32 v{V_RADDR}, s{S_T}, v{V_L8}""")

    a(f"""
    v_mov_b32 v{P+NC}, v{V_RADDR}
    s_mov_b32 s{S_T}, s{S_N}
    K3_radloop:""")
    for j in range(NC):
        a(f"ds_read_b32 v{P+j}, v{P+NC} offset:{512*j}")
        if j % 8 == 7:
            a("s_waitcnt lgkmcnt(0)")
    for j in range(NC):
        if j:
            a(f"s_cmp_le_u32 s{S_T}, {64*j}\ns_cbranch_scc1 K3_radissued")
        a(f"""
        v_bfe_u32 v{P+j}, v{P+j}, 8, 18
        v_lshlrev_b32 v{P+j}, 1, v{P+j}
        buffer_load_ushort v{P+j}, v{P+j}, s[{S_WS}:{S_WS+3}], s{S_RADOFF} offen""")
    a("K3_radissued:\ns_waitcnt vmcnt(0)")
    for j in range(NC):
        if j:
            a(f"s_cmp_le_u32 s{S_T}, {64*j}\ns_cbranch_scc1 K3_raddone")
        a(f"ds_write_b16 v{P+NC}, v{P+j} offset:{512*j+6}")
    a(f"""
    s_cmp_le_u32 s{S_T}, {64*NC}
    s_cbranch_scc1 K3_raddone
    s_sub_u32 s{S_T}, s{S_T}, {64*NC}
    v_add_u32 v{P+NC}, {512*NC}, v{P+NC}
    s_branch K3_radloop
    K3_raddone:""")
    stamp(a, cfg, S_WS, 3, P, 82, S_STAMP)

    T0, T1, T2, T3 = V_T, V_T + 1, V_T + 2, V_T + 3
    U0, U1 = V_S, V_S + 1

    def prep_steps():
        R, TR = V_RN, V_RN + 1
        return [
            f"v_cmp_gt_i32 vcc, s{S_N}, v{V_LANE}",
            f"v_mov_b32 v{T0}, s{S_MASK}",
            "s_nop 0",
            f"v_cndmask_b32 v{TR}, 0, v{TR}, vcc",
            f"v_cndmask_b32 v{R}, v{T0}, v{R}, vcc",
            f"v_lshlrev_b32 v{T2}, 16, v{TR}",
            f"v_and_b32 v{TR}, v{V_MHI}, v{TR}",
            f"v_mul_f32 v{T0}, s{S_ELL}, v{T2}",
            f"v_mul_f32 v{T1}, s{S_ELL+1}, v{T2}",
            f"v_mul_f32 v{T2}, s{S_ELL+2}, v{T2}",
            f"v_cvt_pk_bf16_f32 v{T0}, v{T0}, v{T1}",
            f"v_cvt_pk_bf16_f32 v{T2}, v{T2}, v{T2}",
            f"v_and_b32 v{T1}, v{V_MHI}, v{T0}",
            f"v_lshlrev_b32 v{T0}, 16, v{T0}",
            f"v_and_b32 v{T2}, v{V_MHI}, v{T2}",
            f"v_mul_f32 v{U0}, s{S_CHI}, v{T0}",
            f"v_mul_f32 v{U1}, s{S_CHI}, v{T1}",
            f"v_mul_f32 v{T3}, s{S_CHI}, v{T2}",
            f"v_fract_f32 v{U0}, v{U0}",
            f"v_fract_f32 v{U1}, v{U1}",
            f"v_fract_f32 v{T3}, v{T3}",
            f"v_fma_f32 v{T0}, v{T0}, s{S_CLO}, v{U0}",
            f"v_fma_f32 v{T1}, v{T1}, s{S_CLO}, v{U1}",
            f"v_fma_f32 v{T2}, v{T2}, s{S_CLO}, v{T3}",
            f"v_cos_f32 v{T0}, v{T0}",
            f"v_cos_f32 v{T1}, v{T1}",
            f"v_cos_f32 v{T2}, v{T2}",
            f"v_cmp_gt_i32 vcc, 0, v{R}",
            f"v_cvt_pk_bf16_f32 v{T0}, v{T0}, v{T1}",
            f"v_cvt_pk_bf16_f32 v{T2}, v{T2}, v{T2}",
            f"v_and_b32 v{T1}, v{V_MHI}, v{T0}",
            f"v_lshlrev_b32 v{T0}, 16, v{T0}",
            f"v_and_b32 v{T2}, v{V_MHI}, v{T2}",
            f"v_mul_f32 v{T0}, v{T0}, v{TR}",
            f"v_mul_f32 v{T1}, v{T1}, v{TR}",
            f"v_mul_f32 v{T2}, v{T2}, v{TR}",
            f"v_cvt_pk_bf16_f32 v{U0}, v{T0}, v{T1}",
            f"v_cvt_pk_bf16_f32 v{U1}, v{T2}, 0",
            f"v_cndmask_b32 v{U0}, v{U0}, 0, vcc",
            f"v_cndmask_b32 v{U1}, v{U1}, v{TR}, vcc",
        ]

    def issue(rows):
        for j, r in enumerate(rows):
            src = V_RC if r < 64 else V_RN
            a(f"v_readlane_b32 s{S_R + r % 32}, v{src}, {r % 64}")
        for j, r in enumerate(rows):
            a(f"""
            s_and_b32 s{S_O+j}, s{S_R + r % 32}, s{S_MASK}
            buffer_load_dword v{V_RAW + r % RR}, v{V_L4}, s[{S_H}:{S_H+3}], s{S_O+j} offen""")

    def a_read(g):
        a(f"ds_read2_b64 v[{V_A}:{V_A+3}], v{V_AADDR} offset0:{16*g} offset1:{16*g+1}")

    a(f"ds_read_b64 v[{V_RN}:{V_RN+1}], v{V_RADDR}\ns_waitcnt lgkmcnt(0)")
    for s in prep_steps():
        a(s)
    a(f"""
    ds_write_b64 v{V_RINGW}, v[{V_S}:{V_S+1}]
    v_mov_b32 v{V_RC}, v{V_RN}""")
    a_read(0)
    for r0 in range(0, DP, SUB):
        issue(list(range(r0, r0 + SUB)))
    a("K3_batch:")
    steps = prep_steps()
    last_prep_sub = (64 - DP) // SUB
    nsub = 64 // SUB
    first_prep_sub = 8 // SUB
    slots = list(range(first_prep_sub, nsub - 8 // SUB))
    assert first_prep_sub < last_prep_sub and DP + SUB <= 32 and DP % SUB == 0
    chunks = {s: [] for s in range(nsub)}
    chunks[slots[0]] = steps[:7]
    rest = steps[7:]
    per = -(-len(rest) // (len(slots) - 1))
    for i, s in enumerate(rest):
        chunks[slots[1 + i // per]].append(s)
    for sidx in range(nsub):
        r0 = sidx * SUB
        g = r0 // 8
        if r0 % 8 == 0:
            a(f"s_waitcnt lgkmcnt(0)\nv_mfma_f32_32x32x16_bf16 v[{V_F}:{V_F+15}], v[{V_A}:{V_A+3}], v[{V_BW}:{V_BW+3}], 0")
            if g == 0:
                a(f"""
                v_add_u32 v{V_RADDR}, 512, v{V_RADDR}
                s_sub_u32 s{S_N}, s{S_N}, 64
                ds_read_b64 v[{V_RN}:{V_RN+1}], v{V_RADDR}""")
            if g == 7:
                a(f"ds_write_b64 v{V_RINGW}, v[{V_S}:{V_S+1}]")
            a_read((g + 1) % 8)
        a(f"s_waitcnt vmcnt({DP-SUB})")
        for j in range(SUB):
            raw = V_RAW + (r0 + j) % RR
            a(f"v_lshlrev_b32 v{V_H+2*j}, 16, v{raw}\nv_and_b32 v{V_H+2*j+1}, v{V_MHI}, v{raw}")
        issue([r0 + DP + j for j in range(SUB)])
        for s in chunks[sidx]:
            a(s)
        for j in range(SUB):
            r = r0 + j
            f = V_F + 2 * (r % 8)
            if j == 0:
                a(f"s_set_gpr_idx_on s{S_R + r % 32}, gpr_idx(SRC2,DST)")
            else:
                a(f"s_set_gpr_idx_idx s{S_R + r % 32}")
            a(f"v_pk_fma_f32 v[{ACC}:{ACC+1}], v[{V_H+2*j}:{V_H+2*j+1}], v[{f}:{f+1}], v[{ACC}:{ACC+1}]")
        a("s_set_gpr_idx_off")
    a(f"""
    v_mov_b32 v{V_RC}, v{V_RN}
    s_cmp_gt_i32 s{S_N}, 0
    s_cbranch_scc1 K3_batch
    s_waitcnt vmcnt(0) lgkmcnt(0)
    K3_swept:
    s_mov_b32 s{S_R+NS}, 0
    s_mov_b32 s{S_R+NS+1}, 0
    s_waitcnt lgkmcnt(0)
    s_cmp_lg_u32 s{S_MORE}, 0
    s_cbranch_scc1 K3_round""")
    stamp(a, cfg, S_WS, 4, P, 82, S_STAMP)

    st = cfg["out_store"]
    a(f"""
    s_lshl_b32 s{S_T}, s{S_WAVE}, 8
    s_add_u32 s{S_T}, s{S_T}, s{S_B}
    s_lshl_b32 s{S_T}, s{S_T}, 8""")
    for i in range(79):
        t = P + i % 16
        a(f"""
        v_cvt_pk_bf16_f32 v{t}, v{ACC+2*i}, v{ACC+2*i+1}
        buffer_store_dword v{t}, v{V_L4}, s[{S_OUT}:{S_OUT+3}], s{S_T} offen {st}
        s_add_u32 s{S_T}, s{S_T}, {1 << 19}""")
    if cfg["stamps"]:
        a("s_waitcnt vmcnt(0)")
        stamp(a, cfg, S_WS, 5, P, 82, S_STAMP)
    a("K3_end:\ns_endpgm")
    return lds


def descriptor(name, vgpr, sgpr):
    return f""".p2align 6
.amdhsa_kernel {name}
  .amdhsa_next_free_vgpr {vgpr}
  .amdhsa_next_free_sgpr {sgpr}
  .amdhsa_accum_offset {(vgpr + 3) // 4 * 4}
  .amdhsa_group_segment_fixed_size 0
  .amdhsa_kernarg_size 96
  .amdhsa_user_sgpr_count 2
  .amdhsa_user_sgpr_kernarg_segment_ptr 1
  .amdhsa_system_sgpr_workgroup_id_x 1
  .amdhsa_float_denorm_mode_32 3
.end_amdhsa_kernel
"""


DEFAULT = dict(stamps=False, ns=34, dp=16, sub=4, key_shift=20, k1_load="", k1_store="", out_store="nt")


def generate(**kw):
    cfg = dict(DEFAULT)
    cfg.update(kw)
    a = Asm()
    lds1 = gen_bucket(a, cfg)
    lds3 = gen_sweep(a, cfg)
    ref = open("standalone__molecular_angular_dimenet__graph.s.ref").read().split("\n")
    head = [ln for ln in ref if ln.startswith(";   offset") or ln.startswith("; Kernarg")]
    head += [
        "; Launch 1 sorts 10240-triplet chunks by destination bucket and builds the radial table;",
        "; launch 2 accumulates one bucket per workgroup, visiting the source rows in increasing order.",
        f"; @launch kernel=bucket_kernel grid=(256,1,1) block=(1024,1,1) lds={lds1}",
        f"; @launch kernel=sweep_kernel grid=(256,1,1) block=(512,1,1) lds={lds3}",
        '.amdgcn_target "amdgcn-amd-amdhsa--gfx950"',
        ".text",
    ]
    tail = '.section .rodata,"a"\n' + descriptor("bucket_kernel", 96, 48) + descriptor("sweep_kernel", 256, 96)
    return "\n".join(head) + "\n" + a.text() + tail


if __name__ == "__main__":
    out = sys.argv[1]
    kw = {}
    for arg in sys.argv[2:]:
        k, v = arg.split("=", 1)
        kw[k] = type(DEFAULT[k])(int(v)) if isinstance(DEFAULT[k], (bool, int)) else v
    open(out, "w").write(generate(**kw))
```

```python
import re

TRANS = ("v_exp_", "v_log_", "v_rcp_", "v_rsq_", "v_sqrt_", "v_sin_", "v_cos_")
_V = re.compile(r"\bv(\d+)\b|\bv\[(\d+):(\d+)\]")
_S = re.compile(r"\bs(\d+)\b|\bs\[(\d+):(\d+)\]|\b(vcc)(?:_lo|_hi)?\b")


def regs(rx, text):
    out = set()
    for m in rx.finditer(text):
        if m.group(1):
            out.add(int(m.group(1)))
        elif m.group(2):
            out.update(range(int(m.group(2)), int(m.group(3)) + 1))
        else:
            out.add("vcc")
    return out


class Ins:
    def __init__(self, line):
        self.line = line
        t = line.split(";")[0].strip()
        self.label = t.endswith(":") or t.startswith(".") or not t
        self.op, _, rest = t.partition(" ")
        ops = [x.strip() for x in rest.split(",")]
        op = self.op
        self.mfma = op.startswith("v_mfma")
        self.valu = op.startswith("v_") and not self.mfma
        self.vmem = op.startswith("buffer_")
        self.ds = op.startswith("ds_")
        self.states = 0 if self.label else (int(rest) + 1 if op == "s_nop" else 1)
        self.trans = op.startswith(TRANS)
        self.dpp = "_dpp" in op
        self.lane = op.startswith(("v_readlane", "v_readfirstlane", "v_writelane"))
        self.vw, self.vr, self.sw, self.sr = set(), set(), set(), set()
        if self.label:
            return
        first, others = ops[0], ",".join(ops[1:])
        writes_first = self.valu or self.mfma or (self.vmem and "load" in op) or (
            self.ds and ("read" in op or "rtn" in op))
        if writes_first:
            self.vw, self.vr = regs(_V, first), regs(_V, others)
            if self.valu:
                self.sw = regs(_S, first)
            self.sr = regs(_S, others)
        else:
            self.vr, self.sr = regs(_V, rest), regs(_S, rest)
        if op.startswith(("v_fmac", "v_dot2c")) or self.dpp:
            self.vr |= self.vw
        if op.startswith("v_permlane"):
            self.vw = self.vr = self.vr | self.vw
            self.dpp = True
        if self.mfma:
            self.need = 12 if "32x32" in op else 8
            self.ab = regs(_V, ops[1]) | regs(_V, ops[2])


def need(p, c):
    n = 0
    if p.mfma:
        if c.mfma:
            if p.vw & c.ab:
                n = p.need
            elif p.vw & c.vr and p.vw != c.vw:
                n = p.need
        elif (c.valu or c.vmem or c.ds) and p.vw & (c.vr | c.vw):
            n = p.need
    if p.valu:
        if c.mfma and p.vw & c.vr:
            n = max(n, 2)
        if c.lane and p.vw & c.vr:
            n = max(n, 1)
        if c.dpp and p.vw & c.vr:
            n = max(n, 2)
        if p.trans and c.valu and not c.trans and p.vw & c.vr:
            n = max(n, 1)
        if c.valu and p.sw & c.sr:
            n = max(n, 4 if c.lane else 2)
        if p.op.startswith("v_cmpx"):
            n = max(n, 5 if c.dpp else 4 if c.lane or c.mfma else 0)
        if c.vmem and p.sw & c.sr:
            n = max(n, 5)
    if p.vmem and "store" in p.op and ("x4" in p.op or "x3" in p.op) and p.vr & c.vw:
        n = max(n, 2)
    return n


def pad(lines, before=()):
    hist = [Ins(x) for x in before]
    out, added = [], 0
    for ln in lines:
        c = Ins(ln)
        if not c.label:
            short, dist = 0, 0
            for p in reversed(hist):
                if dist >= 12:
                    break
                if not p.label:
                    short = max(short, need(p, c) - dist)
                dist += p.states
            if short > 0:
                nop = f"    s_nop {short - 1}"
                out.append(nop)
                hist.append(Ins(nop))
                added += short
        out.append(ln)
        hist.append(c)
    return out, added
```

```python
import struct
import sys

from hazard import pad

E = 160000
T = 2560000
CHUNK = 10240
NCHUNK = T // CHUNK
H_BYTES = E * 256

WS_REC = 0
WS_RAD = 0x1400000
WS_TAB = 0x1480000
WS_END = WS_TAB + NCHUNK * 1024
WS_STAMP = 0x1500000


def f32bits(x):
    return struct.unpack("<I", struct.pack("<f", x))[0]


INV2PI = 0.15915494309189535
C_HI = f32bits(INV2PI) & 0xFFFFFF00
C_LO = f32bits(INV2PI - struct.unpack("<f", struct.pack("<I", C_HI))[0])


class Asm:
    def __init__(self):
        self.lines = []

    def __call__(self, text):
        for ln in text.strip("\n").split("\n"):
            ln = ln.strip()
            if not ln:
                continue
            self.lines.append(ln if ln.endswith(":") else "    " + ln)

    def raw(self, text):
        self.lines.append(text)

    def text(self):
        return "\n".join(self.lines) + "\n"


def srd(a, d, lo, hi, nbytes):
    a(f"""
    s_mov_b32 s{d}, s{lo}
    s_mov_b32 s{d+1}, s{hi}
    s_mov_b32 s{d+2}, {nbytes}
    s_mov_b32 s{d+3}, 0x20000""")


def wave_scan(a, x):
    for sh in (1, 2, 4, 8):
        a(f"v_add_u32_dpp v{x}, v{x}, v{x} row_shr:{sh} row_mask:0xf bank_mask:0xf bound_ctrl:0")
    a(f"v_add_u32_dpp v{x}, v{x}, v{x} row_bcast:15 row_mask:0xa bank_mask:0xf")
    a(f"v_add_u32_dpp v{x}, v{x}, v{x} row_bcast:31 row_mask:0xc bank_mask:0xf")


def stamp(a, cfg, srd_ws, slot, vtmp, s0, swave_off):
    if not cfg["stamps"]:
        return
    a(f"""
    s_memrealtime s[{s0}:{s0+1}]
    s_waitcnt lgkmcnt(0)
    v_mov_b32 v{vtmp}, s{s0}
    v_mov_b32 v{vtmp+1}, {slot*4}
    s_mov_b64 exec, 1
    buffer_store_dword v{vtmp}, v{vtmp+1}, s[{srd_ws}:{srd_ws+3}], s{swave_off} offen
    s_mov_b64 exec, -1""")


def k1_warm(a, cfg):
    stride = cfg["warm1"]
    share = H_BYTES // NCHUNK
    srd(a, 36, 44, 45, H_BYTES)
    a(f"s_mul_i32 s35, s2, {share}\nv_mul_u32_u24 v84, {stride}, v0")
    n = -(-share // (1024 * stride))
    for i in range(n):
        if (i + 1) * 1024 * stride > share:
            a(f"v_cmp_gt_u32 vcc, {share - i * 1024 * stride}, v84\ns_and_b64 exec, exec, vcc\ns_cbranch_execz K1_warmed")
        if stride == 16:
            a(f"buffer_load_dwordx4 v[92:95], v84, s[36:39], s35 offen")
        else:
            a(f"buffer_load_dword v92, v84, s[36:39], s35 offen")
        a(f"s_add_u32 s35, s35, {1024 * stride}")
    a("K1_warmed:\ns_mov_b64 exec, -1")


def gen_bucket(a, cfg):
    HIST, BASE, RECS = 0, 1024, 2048
    S_JI, S_KJ, S_TH, S_WS = 16, 20, 24, 28
    ws_size = WS_STAMP + 0x100000 if cfg["stamps"] else WS_END
    st = cfg["k1_store"]
    a.raw(".p2align 8\n.globl bucket_kernel\n.type bucket_kernel,@function\nbucket_kernel:")
    a(f"""
    s_cmp_ge_u32 s2, 256
    s_cbranch_scc1 K1_end
    s_cmp_ge_u32 s2, {NCHUNK}
    s_cbranch_scc1 K1_rad
    s_load_dwordx4 s[4:7], s[0:1], 16
    s_load_dwordx2 s[8:9], s[0:1], 32
    s_load_dwordx2 s[10:11], s[0:1], 88
    s_load_dwordx2 s[44:45], s[0:1], 0
    v_lshlrev_b32 v1, 4, v0
    v_lshlrev_b32 v2, 3, v0
    v_lshlrev_b32 v3, 2, v0
    s_mul_i32 s12, s2, {CHUNK*4}
    s_add_u32 s13, s12, 16384
    s_add_u32 s14, s12, 32768
    s_mul_i32 s32, s2, {CHUNK*2}
    s_add_u32 s33, s32, 8192
    s_add_u32 s34, s32, 16384
    v_mov_b32 v34, 0
    v_and_b32 v35, 0x3fc, v3
    v_mov_b32 v36, 1
    ds_write_b32 v35, v34 offset:{HIST}
    s_waitcnt lgkmcnt(0)""")
    srd(a, S_JI, 8, 9, T * 4)
    srd(a, S_KJ, 6, 7, T * 4)
    srd(a, S_TH, 4, 5, T * 2)
    srd(a, S_WS, 10, 11, ws_size)
    if cfg["stamps"]:
        a(f"""
        v_readfirstlane_b32 s40, v0
        s_lshr_b32 s40, s40, 6
        s_lshl_b32 s41, s2, 4
        s_add_u32 s40, s40, s41
        s_lshl_b32 s40, s40, 5
        s_add_u32 s40, s40, {WS_STAMP}""")
    stamp(a, cfg, S_WS, 0, 90, 42, 40)
    ld = cfg["k1_load"]
    a(f"""
    buffer_load_dwordx4 v[4:7], v1, s[{S_JI}:{S_JI+3}], s12 offen {ld}
    buffer_load_dwordx4 v[8:11], v1, s[{S_JI}:{S_JI+3}], s13 offen {ld}
    buffer_load_dwordx2 v[12:13], v2, s[{S_JI}:{S_JI+3}], s14 offen {ld}
    buffer_load_dwordx4 v[16:19], v1, s[{S_KJ}:{S_KJ+3}], s12 offen {ld}
    buffer_load_dwordx4 v[20:23], v1, s[{S_KJ}:{S_KJ+3}], s13 offen {ld}
    buffer_load_dwordx2 v[24:25], v2, s[{S_KJ}:{S_KJ+3}], s14 offen {ld}
    buffer_load_dwordx2 v[28:29], v2, s[{S_TH}:{S_TH+3}], s32 offen {ld}
    buffer_load_dwordx2 v[30:31], v2, s[{S_TH}:{S_TH+3}], s33 offen {ld}
    buffer_load_dword v32, v3, s[{S_TH}:{S_TH+3}], s34 offen {ld}""")
    a("s_barrier")
    JI = [4 + i for i in range(10)]
    KJ = [16 + i for i in range(10)]
    BK = [60 + i for i in range(10)]
    RK = [70 + i for i in range(10)]
    R0 = [40 + 2 * i for i in range(10)]
    for lo, hi, n in ((0, 4, 8), (4, 8, 7), (8, 10, 6)):
        a(f"s_waitcnt vmcnt({n})")
        for i in range(lo, hi):
            a(f"v_lshlrev_b32_sdwa v{BK[i]}, 2, v{JI[i]} dst_sel:DWORD dst_unused:UNUSED_PAD src0_sel:DWORD src1_sel:BYTE_0")
        for i in range(lo, hi):
            a(f"ds_add_rtn_u32 v{RK[i]}, v{BK[i]}, v36 offset:{HIST}")
    for i in range(10):
        a(f"""
        v_lshrrev_b32 v80, 10, v{JI[i]}
        v_bfe_u32 v81, v{JI[i]}, 8, 3
        v_and_b32 v80, 0xfe, v80
        v_lshl_or_b32 v{R0[i]}, v81, 26, v80""")
    for lo, hi, n in ((0, 4, 5), (4, 8, 4), (8, 10, 3)):
        a(f"s_waitcnt vmcnt({n})")
        for i in range(lo, hi):
            a(f"v_lshl_or_b32 v{R0[i]}, v{KJ[i]}, 8, v{R0[i]}")
    for lo, hi, n in ((0, 4, 2), (4, 8, 1), (8, 10, 0)):
        a(f"s_waitcnt vmcnt({n})")
        for i in range(lo, hi):
            th = 28 + i // 2
            if i % 2 == 0:
                a(f"v_and_b32 v{R0[i]+1}, 0xffff, v{th}")
            else:
                a(f"v_lshrrev_b32 v{R0[i]+1}, 16, v{th}")
    if cfg["warm1"]:
        k1_warm(a, cfg)
    a("s_waitcnt lgkmcnt(0)\ns_barrier")
    stamp(a, cfg, S_WS, 1, 90, 42, 40)
    a(f"""
    v_and_b32 v80, 63, v0
    v_lshlrev_b32 v80, 4, v80
    ds_read_b128 v[4:7], v80 offset:{HIST}
    s_waitcnt lgkmcnt(0)
    v_add_u32 v8, v4, v5
    v_add3_u32 v8, v8, v6, v7
    v_mov_b32 v9, v8""")
    wave_scan(a, 9)
    a(f"""
    s_nop 0
    v_sub_u32 v12, v9, v8
    v_add_u32 v13, v12, v4
    v_add_u32 v14, v13, v5
    v_add_u32 v15, v14, v6
    ds_write_b128 v80, v[12:15] offset:{BASE}""")
    for i in range(10):
        a(f"ds_read_b32 v{BK[i]}, v{BK[i]} offset:{BASE}")
    a(f"""
    v_readfirstlane_b32 s15, v0
    s_cmp_lg_u32 s15, 0
    s_cbranch_scc1 K1_notab
    v_lshl_or_b32 v16, v4, 16, v12
    v_lshl_or_b32 v17, v5, 16, v13
    v_lshl_or_b32 v18, v6, 16, v14
    v_lshl_or_b32 v19, v7, 16, v15
    s_lshl_b32 s15, s2, 10
    s_add_u32 s15, s15, {WS_TAB}
    buffer_store_dwordx4 v[16:19], v80, s[{S_WS}:{S_WS+3}], s15 offen {st}
    K1_notab:""")
    for i in range(10):
        a("s_waitcnt lgkmcnt(9)")
        a(f"v_add_lshl_u32 v{BK[i]}, v{BK[i]}, v{RK[i]}, 3")
        a(f"ds_write_b64 v{BK[i]}, v[{R0[i]}:{R0[i]+1}] offset:{RECS}")
    a("s_waitcnt lgkmcnt(0)\ns_barrier")
    stamp(a, cfg, S_WS, 2, 90, 42, 40)
    a(f"s_mul_i32 s12, s2, {CHUNK*8}")
    a("v_add_u32 v2, 0x10000, v1")
    for k in range(5):
        if k < 4:
            off = RECS + k * 16384
            a(f"ds_read_b128 v[{4+4*k}:{7+4*k}], v1 offset:{off}")
        else:
            a(f"ds_read_b128 v[{4+4*k}:{7+4*k}], v2 offset:{RECS}")
    for k in range(5):
        a(f"s_waitcnt lgkmcnt({4-k})")
        a(f"buffer_store_dwordx4 v[{4+4*k}:{7+4*k}], v1, s[{S_WS}:{S_WS+3}], s12 offen {st}")
        if k < 4:
            a("s_add_u32 s12, s12, 16384")
    if cfg["stamps"]:
        a("s_waitcnt vmcnt(0)")
        stamp(a, cfg, S_WS, 3, 90, 42, 40)
    a("s_endpgm")

    a(f"""
    K1_rad:
    s_load_dwordx2 s[4:5], s[0:1], 8
    s_load_dwordx2 s[6:7], s[0:1], 40
    s_load_dwordx2 s[10:11], s[0:1], 88
    s_sub_u32 s12, s2, {NCHUNK}
    s_lshl_b32 s12, s12, 14
    v_lshlrev_b32 v1, 4, v0
    v_add_u32 v1, s12, v1
    s_waitcnt lgkmcnt(0)
    s_load_dword s14, s[6:7], 0""")
    srd(a, 16, 4, 5, E * 2)
    a(f"s_add_u32 s10, s10, {WS_RAD}\ns_addc_u32 s11, s11, 0")
    srd(a, 20, 10, 11, E * 2)
    STEP = 6 * 16384
    for it in range(4):
        a(f"s_mov_b32 s{24+it}, {it*STEP}")
        a(f"buffer_load_dwordx4 v[{4+4*it}:{7+4*it}], v1, s[16:19], s{24+it} offen")
    a(f"""
    s_mov_b32 s30, {C_HI:#x}
    s_mov_b32 s31, {C_LO:#x}
    v_mov_b32 v40, 0xffff0000
    s_waitcnt lgkmcnt(0)
    s_lshl_b32 s14, s14, 16""")
    for it in range(4):
        a(f"s_waitcnt vmcnt(3)")
        for j in range(4):
            r = 4 + 4 * it + j
            a(f"""
            v_lshlrev_b32 v30, 16, v{r}
            v_and_b32 v31, v40, v{r}
            v_rcp_f32 v36, v30
            v_rcp_f32 v37, v31
            v_mul_f32 v32, s14, v30
            v_mul_f32 v33, s14, v31
            v_cvt_pk_bf16_f32 v32, v32, v33
            v_and_b32 v33, v40, v32
            v_lshlrev_b32 v32, 16, v32
            v_mul_f32 v34, s30, v32
            v_mul_f32 v35, s30, v33
            v_rndne_f32 v38, v34
            v_rndne_f32 v39, v35
            v_sub_f32 v34, v34, v38
            v_sub_f32 v35, v35, v39
            v_fma_f32 v34, v32, s31, v34
            v_fma_f32 v35, v33, s31, v35
            v_sin_f32 v34, v34
            v_sin_f32 v35, v35
            s_nop 0
            v_cvt_pk_bf16_f32 v34, v34, v35
            v_and_b32 v35, v40, v34
            v_lshlrev_b32 v34, 16, v34
            v_mul_f32 v34, v34, v36
            v_mul_f32 v35, v35, v37
            v_cvt_pk_bf16_f32 v{r}, v34, v35""")
        a(f"buffer_store_dwordx4 v[{4+4*it}:{7+4*it}], v1, s[20:23], s{24+it} offen")
    a("""
    K1_end:
    s_endpgm""")
    return RECS + CHUNK * 8


def gen_sweep(a, cfg):
    NS = cfg["ns"]
    NSL = NS + 2
    PIECE = 63
    D = cfg["dpl"]
    SHIFT = cfg["key_shift"]
    NBIN = 1 << (29 - SHIFT)
    BPL = NBIN // 64
    KMASK = (NBIN - 1) << 2
    HIST, BASE, FLAG, ZERO, RING, RINGO, RECS = 0, 2048, 4096, 4352, 5632, 13824, 16384
    CAP = 8 * (NS * PIECE + 79)
    lds = RECS + CAP * 8 + 512
    assert lds <= 163840 and NBIN <= 512 and 2 <= D <= 7

    ACC = 98
    V_LANE, V_TOFF, V_BW, V_TLEN = 0, 1, 2, 6
    V_L8, V_ONE, P = 7, 8, 10
    TK = P + 2 * NSL
    G = (ACC - TK) // 2
    V_RADDR, V_AADDR, V_RINGW = 7, 8, 9
    V_RAW, V_F, V_H, V_A, V_AU, V_O, V_RN, V_S, V_T = 10, 42, 58, 66, 70, 78, 82, 84, 86
    V_IC, V_IN, V_RADV, V_MHI, V_L16, V_RINGO, V_OADDR, V_OFF = 90, 91, 92, 93, 94, 95, 96, 97
    S_H, S_OUT, S_WS, S_RAD = 4, 8, 12, 76
    S_B, S_WAVE, S_SEG, S_REM, S_OFF, S_MORE, S_N, S_START = 16, 17, 18, 19, 20, 21, 22, 23
    S_ELL, S_CHI, S_CLO, S_MASK, S_MODE, S_NMAX, S_T = 24, 27, 28, 29, 30, 31, 32
    S_I = 36
    S_R = 40
    S_STAMP = 80
    ws_size = WS_STAMP + 0x100000 if cfg["stamps"] else WS_END

    a.raw(".p2align 8\n.globl sweep_kernel\n.type sweep_kernel,@function\nsweep_kernel:")
    a(f"""
    s_cmp_ge_u32 s2, 256
    s_cbranch_scc1 K3_end
    s_load_dwordx2 s[86:87], s[0:1], 88
    s_load_dwordx2 s[84:85], s[0:1], 0
    s_load_dwordx4 s[88:91], s[0:1], 48
    s_load_dwordx4 s[92:95], s[0:1], 64
    v_readfirstlane_b32 s{S_WAVE}, v0
    s_and_b32 s{S_B}, s2, 7
    s_lshl_b32 s{S_B}, s{S_B}, 5
    s_lshr_b32 s{S_T}, s2, 3
    s_add_u32 s{S_B}, s{S_B}, s{S_T}
    s_lshr_b32 s{S_WAVE}, s{S_WAVE}, 6
    v_lshlrev_b32 v{P}, 5, v0
    v_and_b32 v{V_LANE}, 63, v0
    v_mov_b32 v{P+2}, 0
    v_mov_b32 v{P+3}, 0
    v_mov_b32 v{P+4}, 0
    v_mov_b32 v{P+5}, 0
    ds_write_b128 v{P}, v[{P+2}:{P+5}]
    ds_write_b128 v{P}, v[{P+2}:{P+5}] offset:16
    s_lshl_b32 s{S_T}, s{S_WAVE}, 5
    v_add_u32 v{V_TOFF}, s{S_T}, v{V_LANE}
    v_lshlrev_b32 v{P+1}, 10, v{V_TOFF}
    v_and_b32 v{P+6}, 15, v{V_LANE}
    v_lshrrev_b32 v{P+7}, 4, v{V_LANE}
    v_lshl_add_u32 v{P+6}, v{P+6}, 2, v{P+7}
    v_lshlrev_b32 v{P+6}, 2, v{P+6}
    s_lshl_b32 s{S_T}, s{S_B}, 2
    s_add_u32 s{S_T}, s{S_T}, {WS_TAB}
    s_waitcnt lgkmcnt(0)""")
    srd(a, S_WS, 86, 87, ws_size)
    a(f"buffer_load_dword v{V_TLEN}, v{P+1}, s[{S_WS}:{S_WS+3}], s{S_T} offen")
    a(f"s_load_dwordx2 s[{S_ELL}:{S_ELL+1}], s[88:89], 0")
    srd(a, S_H, 90, 91, 768)
    srd(a, S_OUT, 92, 93, 256)
    a(f"""
    buffer_load_dword v{P+8}, v{P+6}, s[{S_H}:{S_H+3}], 0 offen
    buffer_load_dword v{P+9}, v{P+6}, s[{S_H}:{S_H+3}], 0 offen offset:256
    buffer_load_dword v{P+10}, v{P+6}, s[{S_H}:{S_H+3}], 0 offen offset:512
    buffer_load_dword v{P+11}, v{P+6}, s[{S_OUT}:{S_OUT+3}], 0 offen""")
    if cfg["stamps"]:
        a(f"""
        s_lshl_b32 s{S_STAMP}, s2, 3
        s_add_u32 s{S_STAMP}, s{S_STAMP}, s{S_WAVE}
        s_lshl_b32 s{S_STAMP}, s{S_STAMP}, 5
        s_add_u32 s{S_STAMP}, s{S_STAMP}, {WS_STAMP + 0x40000}""")
    a(f"""
    s_add_u32 s86, s86, {WS_RAD}
    s_addc_u32 s87, s87, 0""")
    srd(a, S_RAD, 86, 87, 0 if cfg["dbg"] & 2 else E * 2)
    a(f"""
    s_mov_b32 s{S_CHI}, {C_HI:#x}
    s_mov_b32 s{S_CLO}, {C_LO:#x}
    s_mov_b32 s{S_MASK}, 0x03ffff00
    s_mov_b32 s{S_MODE}, 0xc000
    s_mov_b32 s{S_T}, {CHUNK*8}
    v_cmp_gt_u32 vcc, {NCHUNK}, v{V_TOFF}
    v_mul_lo_u32 v{V_TOFF}, v{V_TOFF}, s{S_T}
    s_mov_b32 s{S_SEG}, 0
    s_mov_b32 s{S_REM}, 0
    s_mov_b32 s{S_OFF}, 0""")
    SA, SB = P + 2 * NS, P + 2 * NS + 2
    a(f"""
    s_lshl_b32 s{S_T}, s{S_WAVE}, 8
    s_add_u32 s{S_T}, s{S_T}, s{S_B}
    s_lshl_b32 s{S_T}, s{S_T}, 8
    s_lshl_b32 s{S_T+1}, s{S_WAVE}, 26
    s_or_b32 s{S_T}, s{S_T}, s{S_T+1}
    s_bitset1_b32 s{S_T}, 31
    s_mov_b32 s{S_T+1}, {(1 << 19) + 2}
    v_mul_lo_u32 v{SA}, v{V_LANE}, s{S_T+1}
    v_add_u32 v{SA}, s{S_T}, v{SA}
    v_add_u32 v{SB}, {40 * ((1 << 19) + 2)}, v{SA}
    v_mov_b32 v{SA+1}, 0
    v_mov_b32 v{SB+1}, 0
    s_mov_b32 s{S_R+NS}, 40
    s_cmp_eq_u32 s{S_WAVE}, 0
    s_cselect_b32 s{S_R+NS+1}, 39, 38""")
    for i in range(158):
        a(f"v_mov_b32 v{ACC+i}, 0")
    a(f"""
    s_waitcnt lgkmcnt(0)
    s_and_b32 s{S_ELL+2}, s{S_ELL}, 0xffff0000
    s_lshl_b32 s{S_ELL}, s{S_ELL}, 16
    s_lshl_b32 s{S_T}, s{S_ELL+1}, 16
    s_mov_b32 s{S_ELL+1}, s{S_ELL+2}
    s_mov_b32 s{S_ELL+2}, s{S_T}
    s_mov_b32 s{S_T}, 0x05040100
    s_mov_b32 s{S_T+1}, 0x07060302
    s_waitcnt vmcnt(0)
    v_perm_b32 v{V_BW}, v{P+9}, v{P+8}, s{S_T}
    v_perm_b32 v{V_BW+1}, v{P+11}, v{P+10}, s{S_T}
    v_perm_b32 v{V_BW+2}, v{P+9}, v{P+8}, s{S_T+1}
    v_perm_b32 v{V_BW+3}, v{P+11}, v{P+10}, s{S_T+1}
    v_cndmask_b32 v{V_TLEN}, 0, v{V_TLEN}, vcc
    v_and_b32 v{P+1}, 0xffff, v{V_TLEN}
    v_lshl_add_u32 v{V_TOFF}, v{P+1}, 3, v{V_TOFF}
    v_lshrrev_b32 v{V_TLEN}, 16, v{V_TLEN}""")
    srd(a, S_H, 84, 85, 0 if cfg["dbg"] & 1 else H_BYTES)
    srd(a, S_OUT, 94, 95, H_BYTES)
    stamp(a, cfg, S_WS, 0, P, 82, S_STAMP)

    a(f"""
    K3_round:
    v_lshlrev_b32 v{V_L8}, 3, v{V_LANE}
    v_mov_b32 v{V_ONE}, 1""")
    rl = cfg["rec_load"]
    for k in range(NS):
        a(f"""
        s_cmp_lg_u32 s{S_REM}, 0
        s_cbranch_scc1 K3_have{k}
        K3_adv{k}:
        s_cmp_ge_u32 s{S_SEG}, 32
        s_cbranch_scc1 K3_have{k}
        v_readlane_b32 s{S_REM}, v{V_TLEN}, s{S_SEG}
        v_readlane_b32 s{S_OFF}, v{V_TOFF}, s{S_SEG}
        s_add_u32 s{S_SEG}, s{S_SEG}, 1
        s_cmp_eq_u32 s{S_REM}, 0
        s_cbranch_scc1 K3_adv{k}
        K3_have{k}:
        s_min_u32 s{S_R+k}, s{S_REM}, {PIECE}
        s_mov_b32 s{S_T}, s{S_OFF}
        s_sub_u32 s{S_REM}, s{S_REM}, s{S_R+k}
        buffer_load_dwordx2 v[{P+2*k}:{P+2*k+1}], v{V_L8}, s[{S_WS}:{S_WS+3}], s{S_T} offen {rl}
        s_add_u32 s{S_OFF}, s{S_OFF}, {PIECE*8}""")
    a(f"""
    v_cmp_le_u32 vcc, s{S_SEG}, v{V_LANE}
    v_cmp_lt_u32 s[{S_T}:{S_T+1}], 0, v{V_TLEN}
    s_and_b32 s{S_T}, s{S_T}, vcc_lo
    s_or_b32 s{S_T}, s{S_T}, s{S_REM}
    s_barrier
    s_cmp_eq_u32 s{S_T}, 0
    s_cbranch_scc1 K3_nomore
    v_mov_b32 v{TK}, {FLAG}
    ds_write_b32 v{TK}, v{V_ONE}
    K3_nomore:""")

    order = [NS, NS + 1] + list(range(NS))
    groups = [order[i:i + G] for i in range(0, NSL, G)]

    def tmp(gi, j):
        return TK + (gi % 2) * G + j

    def keys(g, gi, wait):
        for j, k in enumerate(g):
            if wait and k < NS:
                a(f"s_waitcnt vmcnt({NS-1-k})")
            a(f"v_lshrrev_b32 v{tmp(gi, j)}, {SHIFT-2}, v{P+2*k}\nv_and_b32 v{tmp(gi, j)}, {KMASK}, v{tmp(gi, j)}")

    keys(groups[0], 0, True)
    for gi, g in enumerate(groups):
        for j, k in enumerate(g):
            a(f"s_bfm_b64 exec, s{S_R+k}, 0\nds_add_rtn_u32 v{tmp(gi, j)}, v{tmp(gi, j)}, v{V_ONE} offset:{HIST}")
        a("s_mov_b64 exec, -1")
        if gi + 1 < len(groups):
            keys(groups[gi + 1], gi + 1, True)
        a("s_waitcnt lgkmcnt(0)")
        for j, k in enumerate(g):
            a(f"v_lshl_or_b32 v{P+2*k+1}, v{tmp(gi, j)}, 16, v{P+2*k+1}")
    a("s_barrier")
    stamp(a, cfg, S_WS, 1, TK, 82, S_STAMP)

    assert BPL in (4, 8) and TK + BPL + 3 <= ACC and TK % 2 == 0
    C = TK
    X, Y, AD = TK + BPL, TK + BPL + 1, TK + BPL + 2
    a(f"v_lshlrev_b32 v{AD}, {2 + BPL.bit_length() - 1}, v{V_LANE}")
    a(f"v_mov_b32 v{X}, {FLAG}")
    a(f"ds_read_b32 v{X}, v{X}")
    for q in range(BPL // 4):
        a(f"ds_read_b128 v[{C+4*q}:{C+4*q+3}], v{AD} offset:{HIST+16*q}")
    a(f"s_waitcnt lgkmcnt(0)\nv_readfirstlane_b32 s{S_MORE}, v{X}")
    for q in range(1, BPL):
        a(f"v_add_u32 v{C+q}, v{C+q}, v{C+q-1}")
    a(f"v_mov_b32 v{X}, v{C+BPL-1}")
    wave_scan(a, X)
    a(f"v_sub_u32 v{Y}, v{X}, v{C+BPL-1}")
    for q in range(BPL - 1, 0, -1):
        a(f"v_add_u32 v{C+q}, v{Y}, v{C+q-1}")
    a(f"v_mov_b32 v{C}, v{Y}")
    for q in range(BPL // 4):
        a(f"ds_write_b128 v{AD}, v[{C+4*q}:{C+4*q+3}] offset:{BASE+16*q}")
    a(f"""
    s_lshl_b32 s{S_T}, s{S_WAVE}, 3
    s_add_u32 s{S_T+1}, s{S_T}, 7
    v_readlane_b32 s{S_START}, v{Y}, s{S_T}
    v_readlane_b32 s{S_N}, v{X}, s{S_T+1}
    s_sub_u32 s{S_N}, s{S_N}, s{S_START}""")
    if cfg["bar"]:
        a(f"s_mov_b32 s{S_NMAX}, 0")
        for w in range(8):
            a(f"""
            v_readlane_b32 s{S_T}, v{Y}, {8*w}
            v_readlane_b32 s{S_T+1}, v{X}, {8*w+7}
            s_sub_u32 s{S_T}, s{S_T+1}, s{S_T}
            s_max_u32 s{S_NMAX}, s{S_NMAX}, s{S_T}""")

    def keys_b(g, gi):
        keys(g, gi, False)
        for j, k in enumerate(g):
            a(f"ds_read_b32 v{tmp(gi, j)}, v{tmp(gi, j)} offset:{BASE}")

    a("s_waitcnt lgkmcnt(0)")
    keys_b(groups[0], 0)
    for gi, g in enumerate(groups):
        a("s_waitcnt lgkmcnt(0)")
        if gi + 1 < len(groups):
            keys_b(groups[gi + 1], gi + 1)
        for j, k in enumerate(g):
            a(f"v_add_u32_sdwa v{tmp(gi, j)}, v{tmp(gi, j)}, v{P+2*k+1} dst_sel:DWORD dst_unused:UNUSED_PAD src0_sel:DWORD src1_sel:WORD_1")
        for j, k in enumerate(g):
            a(f"v_lshlrev_b32 v{tmp(gi, j)}, 3, v{tmp(gi, j)}")
        for j, k in enumerate(g):
            a(f"s_bfm_b64 exec, s{S_R+k}, 0\nds_write_b64 v{tmp(gi, j)}, v[{P+2*k}:{P+2*k+1}] offset:{RECS}")
        a("s_mov_b64 exec, -1")
    a("s_waitcnt lgkmcnt(0)")

    T0, T1, T2, T3 = V_T, V_T + 1, V_T + 2, V_T + 3
    U0, U1 = V_S, V_S + 1
    a(f"""
    s_lshl_b32 s{S_T}, s{S_START}, 3
    s_add_u32 s{S_T}, s{S_T}, {RECS}
    v_lshl_add_u32 v{V_RADDR}, v{V_LANE}, 3, s{S_T}
    v_mov_b32 v{V_MHI}, 0xffff0000
    s_lshl_b32 s{S_T}, s{S_WAVE}, 10
    s_add_u32 s{S_T}, s{S_T}, {RING}
    v_lshl_add_u32 v{V_RINGW}, v{V_LANE}, 4, s{S_T}
    v_bfe_u32 v{T0}, v{V_LANE}, 3, 2
    v_bfe_u32 v{T1}, v{V_LANE}, 1, 1
    v_lshl_add_u32 v{T0}, v{T0}, 1, v{T1}
    v_and_b32 v{T1}, 1, v{V_LANE}
    v_lshlrev_b32 v{T0}, 4, v{T0}
    v_lshlrev_b32 v{T2}, 3, v{T1}
    v_sub_u32 v{T0}, v{T0}, v{T2}
    v_add_u32 v{T0}, s{S_T}, v{T0}
    v_bfe_u32 v{T2}, v{V_LANE}, 2, 1
    v_lshrrev_b32 v{T3}, 5, v{V_LANE}
    v_cmp_eq_u32 vcc, v{T2}, v{T3}
    v_mov_b32 v{T2}, {ZERO}
    v_and_b32 v{V_L16}, 15, v{V_LANE}
    v_cndmask_b32 v{V_AADDR}, v{T2}, v{T0}, vcc
    v_lshlrev_b32 v{V_L16}, 4, v{V_L16}
    s_lshl_b32 s{S_T}, s{S_WAVE}, 8
    s_add_u32 s{S_T}, s{S_T}, {RINGO}
    v_lshrrev_b32 v{T3}, 4, v{V_LANE}
    v_lshl_add_u32 v{V_OADDR}, v{T3}, 3, s{S_T}
    v_lshrrev_b32 v{T0}, 3, v{V_LANE}
    v_lshlrev_b32 v{T0}, 5, v{T0}
    v_and_b32 v{T2}, 3, v{V_LANE}
    v_lshl_add_u32 v{T0}, v{T2}, 3, v{T0}
    v_bfe_u32 v{T2}, v{V_LANE}, 2, 1
    v_lshl_add_u32 v{T0}, v{T2}, 2, v{T0}
    v_add_u32 v{V_RINGO}, s{S_T}, v{T0}
    v_mov_b32 v{T0}, 0x3f80
    v_cmp_eq_u32 vcc, 1, v{T1}
    v_bfe_u32 v{T2}, v{V_LANE}, 1, 1
    v_bfe_u32 v{U0}, v{V_LANE}, 2, 2
    v_cndmask_b32 v{T0}, v{T0}, 1.0, vcc
    v_sub_u32 v{T3}, v{T3}, v{T2}
    v_lshl_add_u32 v{T3}, v{T3}, 2, v{U0}""")
    for aa in range(2):
        for q in range(4):
            a(f"v_cmp_eq_u32 vcc, {8*aa+q}, v{T3}\nv_cndmask_b32 v{V_AU+4*aa+q}, 0, v{T0}, vcc")
    a("s_barrier")
    stamp(a, cfg, S_WS, 2, V_RAW, 82, S_STAMP)
    a(f"""
    s_cmp_eq_u32 s{S_MORE}, 0
    s_cbranch_scc1 K3_keep
    s_lshl_b32 s{S_T}, s{S_WAVE}, 8
    v_lshl_add_u32 v{T0}, v{V_LANE}, 2, s{S_T}
    v_mov_b32 v{T1}, 0
    v_mov_b32 v{T2}, {FLAG}
    ds_write_b32 v{T0}, v{T1} offset:{HIST}
    ds_write_b32 v{T2}, v{T1}
    K3_keep:
    s_cmp_eq_u32 s{S_NMAX if cfg["bar"] else S_N}, 0
    s_cbranch_scc1 K3_swept""")

    R, TH = V_RN, V_RN + 1
    stage1 = [
        f"v_cmp_gt_i32 vcc, s{S_N}, v{V_LANE}",
        f"v_mov_b32 v{T0}, s{S_MASK}",
        f"v_lshlrev_b32 v{TH}, 16, v{TH}",
        f"v_cndmask_b32 v{R}, v{T0}, v{R}, vcc",
        f"v_cndmask_b32 v{TH}, 0, v{TH}, vcc",
        f"v_bfe_u32 v{V_RADV}, v{R}, 8, 18",
        f"v_lshlrev_b32 v{V_RADV}, 1, v{V_RADV}",
        f"buffer_load_ushort v{V_RADV}, v{V_RADV}, s[{S_RAD}:{S_RAD+3}], 0 offen {cfg['rad_load']}",
    ]
    stage2 = [
        f"v_or_b32_sdwa v{V_IN}, v{R}, s{S_MODE} dst_sel:DWORD dst_unused:UNUSED_PAD src0_sel:BYTE_0 src1_sel:DWORD",
        f"v_mul_f32 v{T0}, s{S_ELL}, v{TH}",
        f"v_mul_f32 v{T1}, s{S_ELL+1}, v{TH}",
        f"v_mov_b32_dpp v{T3}, v{V_IN} quad_perm:[1,1,3,3] row_mask:0xf bank_mask:0xf",
        f"v_mul_f32 v{T2}, s{S_ELL+2}, v{TH}",
        f"v_lshl_or_b32 v{V_IN}, v{T3}, 16, v{V_IN}",
        f"v_cvt_pk_bf16_f32 v{T0}, v{T0}, v{T1}",
        f"v_cvt_pk_bf16_f32 v{T2}, v{T2}, v{T2}",
        f"v_and_b32 v{T1}, v{V_MHI}, v{T0}",
        f"v_lshlrev_b32 v{T0}, 16, v{T0}",
        f"v_and_b32 v{T2}, v{V_MHI}, v{T2}",
        f"v_mul_f32 v{U0}, s{S_CHI}, v{T0}",
        f"v_mul_f32 v{U1}, s{S_CHI}, v{T1}",
        f"v_mul_f32 v{T3}, s{S_CHI}, v{T2}",
        f"v_fract_f32 v{U0}, v{U0}",
        f"v_fract_f32 v{U1}, v{U1}",
        f"v_fract_f32 v{T3}, v{T3}",
        f"v_fma_f32 v{T0}, v{T0}, s{S_CLO}, v{U0}",
        f"v_fma_f32 v{T1}, v{T1}, s{S_CLO}, v{U1}",
        f"v_fma_f32 v{T2}, v{T2}, s{S_CLO}, v{T3}",
        f"v_cos_f32 v{T0}, v{T0}",
        f"v_cos_f32 v{T1}, v{T1}",
        f"v_cos_f32 v{T2}, v{T2}",
        f"v_cmp_gt_i32 vcc, 0, v{R}",
        f"v_cvt_pk_bf16_f32 v{T0}, v{T0}, v{T1}",
        f"v_cvt_pk_bf16_f32 v{T2}, v{T2}, v{T2}",
        f"v_and_b32 v{T1}, v{V_MHI}, v{T0}",
        f"v_lshlrev_b32 v{T0}, 16, v{T0}",
        f"v_and_b32 v{T2}, v{V_MHI}, v{T2}",
    ]
    stage3 = [
        f"v_lshlrev_b32 v{V_RADV}, 16, v{V_RADV}",
        f"v_mul_f32 v{T0}, v{T0}, v{V_RADV}",
        f"v_mul_f32 v{T1}, v{T1}, v{V_RADV}",
        f"v_mul_f32 v{T2}, v{T2}, v{V_RADV}",
        f"v_cvt_pk_bf16_f32 v{U0}, v{T0}, v{T1}",
        f"v_cvt_pk_bf16_f32 v{U1}, v{T2}, 0",
        f"v_cndmask_b32 v{U0}, v{U0}, 0, vcc",
        f"v_cndmask_b32 v{U1}, v{U1}, v{V_RADV}, vcc",
    ]

    def issue(L):
        o = V_O + 2 * ((L // 2) % 2) + L % 2
        raw = V_RAW + 4 * (L % 8)
        a(f"v_add_u32 v{o}, v{o}, v{V_L16}")
        a(f"buffer_load_dwordx4 v[{raw}:{raw+3}], v{o}, s[{S_H}:{S_H+3}], 0 offen {cfg['row_load']}")

    def o_read(j):
        o = V_O + 2 * (j % 2)
        a(f"ds_read_b64 v[{o}:{o+1}], v{V_OADDR} offset:{32 * (j % 8)}")

    def o_write():
        a(f"v_and_b32 v{V_OFF}, s{S_MASK}, v{R}\nds_write_b32 v{V_RINGO}, v{V_OFF}")

    def a_read(g):
        a(f"ds_read2_b64 v[{V_A}:{V_A+3}], v{V_AADDR} offset0:{16*g} offset1:{16*g+1}")

    def read_step(j):
        return (2 * j - D) // 2 * 2 - 2

    if cfg["prio"]:
        a(f"s_cmp_lt_u32 s{S_WAVE}, 4\ns_cbranch_scc1 K3_noprio\ns_setprio {cfg['prio']}\nK3_noprio:")
    a(f"ds_read_b64 v[{V_RN}:{V_RN+1}], v{V_RADDR}\ns_waitcnt lgkmcnt(0)")
    if cfg["bar"]:
        a("s_barrier")
    for s in stage1:
        a(s)
    o_write()
    for j in range(8):
        if read_step(j) >= 0:
            break
        o_read(j)
        nxt = [L for L in (2 * j, 2 * j + 1) if L < D]
        if nxt:
            a("s_waitcnt lgkmcnt(0)")
            for L in nxt:
                issue(L)
    for s in stage2:
        a(s)
    a(f"s_waitcnt vmcnt({D})")
    for s in stage3:
        a(s)
    a(f"ds_write_b64 v{V_RINGW}, v[{V_S}:{V_S+1}]\nv_mov_b32 v{V_IC}, v{V_IN}")
    a_read(0)

    body = Asm()
    a_main = a
    SG = 2
    fill = {i: [] for i in range(16)}
    fill[SG] = list(stage1)
    s3_first = SG + 1 + D
    s2_steps = list(range(SG + 1, 12))
    per = -(-len(stage2) // len(s2_steps))
    for n, s in enumerate(stage2):
        fill[s2_steps[n // per]].append(s)
    assert s3_first <= 12
    fill[12] += stage3[:4]
    fill[13] += stage3[4:]
    a = body
    for i in range(16):
        if i % 2 == 0:
            a(f"s_waitcnt lgkmcnt(0)\nv_mfma_f32_32x32x16_bf16 v[{V_F}:{V_F+15}], v[{V_A}:{V_A+3}], v[{V_BW}:{V_BW+3}], 0")
            if i == 0:
                a(f"""
                v_add_u32 v{V_RADDR}, 512, v{V_RADDR}
                s_sub_u32 s{S_N}, s{S_N}, 64
                ds_read_b64 v[{V_RN}:{V_RN+1}], v{V_RADDR}""")
            if i == 14:
                a(f"ds_write_b64 v{V_RINGW}, v[{V_S}:{V_S+1}]")
            a_read((i // 2 + 1) % 8)
        if cfg["bar"] > 1 and i % (16 // (cfg["bar"] - 1)) == 0:
            a("s_barrier")
        n = D if SG + 1 <= i <= SG + D else D - 1
        raw = V_RAW + 4 * (i % 8)
        a(f"""
        s_waitcnt vmcnt({n})
        v_mfma_f32_16x16x32_bf16 v[{V_H}:{V_H+3}], v[{V_AU}:{V_AU+3}], v[{raw}:{raw+3}], 0
        v_mfma_f32_16x16x32_bf16 v[{V_H+4}:{V_H+7}], v[{V_AU+4}:{V_AU+7}], v[{raw}:{raw+3}], 0""")
        issue(i + D)
        for j in range(16):
            if read_step(j) == i:
                if j == 8:
                    o_write()
                o_read(j)
        a(f"v_readlane_b32 s{S_I}, v{V_IC}, {4*i}\nv_readlane_b32 s{S_I+1}, v{V_IC}, {4*i+2}")
        for s in fill[i]:
            a(s)
        for j in range(4):
            f = V_F + 2 * (4 * (i % 2) + j)
            a([f"s_set_gpr_idx_on s{S_I}, gpr_idx(SRC2,DST)", f"s_lshr_b32 m0, s{S_I}, 16",
               f"s_mov_b32 m0, s{S_I+1}", f"s_lshr_b32 m0, s{S_I+1}, 16"][j])
            a(f"v_pk_fma_f32 v[{ACC}:{ACC+1}], v[{V_H+2*j}:{V_H+2*j+1}], v[{f}:{f+1}], v[{ACC}:{ACC+1}]")
        a("s_set_gpr_idx_off")
    a(f"""
    v_mov_b32 v{V_IC}, v{V_IN}
    s_sub_u32 s{S_NMAX}, s{S_NMAX}, 64
    s_cmp_gt_i32 s{S_NMAX if cfg["bar"] > 1 else S_N}, 0
    s_cbranch_scc1 K3_batch""")
    a = a_main
    lines, added = pad(body.lines)
    again, extra = pad(lines, before=lines)
    assert extra == 0
    print(f"sweep loop: {len(lines)} instructions, {added} padded wait states", file=sys.stderr)
    a("K3_batch:")
    a.lines += lines
    a(f"""
    s_waitcnt vmcnt(0) lgkmcnt(0)
    K3_swept:
    s_mov_b32 s{S_R+NS}, 0
    s_mov_b32 s{S_R+NS+1}, 0
    s_waitcnt lgkmcnt(0)
    s_cmp_lg_u32 s{S_MORE}, 0
    s_cbranch_scc1 K3_round""")
    stamp(a, cfg, S_WS, 4, P, 82, S_STAMP)

    st = cfg["out_store"]
    a(f"""
    v_and_b32 v7, 15, v{V_LANE}
    v_lshrrev_b32 v8, 4, v{V_LANE}
    v_lshlrev_b32 v7, 4, v7
    v_lshl_add_u32 v7, v8, 19, v7
    s_lshl_b32 s{S_T}, s{S_WAVE}, 8
    s_add_u32 s{S_T}, s{S_T}, s{S_B}
    s_lshl_b32 s{S_T}, s{S_T}, 8""")
    for i in range(20):
        t = P + 4 * (i % 8)
        for k in range(4):
            r = min(4 * i + k, 78)
            a(f"v_cvt_pk_bf16_f32 v{t+k}, v{ACC+2*r}, v{ACC+2*r+1}")
        a(f"""
        s_nop 0
        v_permlane32_swap_b32 v{t}, v{t+2}
        v_permlane32_swap_b32 v{t+1}, v{t+3}
        s_nop 1
        v_permlane16_swap_b32 v{t}, v{t+1}
        v_permlane16_swap_b32 v{t+2}, v{t+3}
        buffer_store_dwordx4 v[{t}:{t+3}], v7, s[{S_OUT}:{S_OUT+3}], s{S_T} offen {st}
        s_add_u32 s{S_T}, s{S_T}, {4 << 19}""")
    if cfg["stamps"]:
        a("s_waitcnt vmcnt(0)")
        stamp(a, cfg, S_WS, 5, P, 82, S_STAMP)
    a("K3_end:\ns_endpgm")
    return lds


def descriptor(name, vgpr, sgpr):
    return f""".p2align 6
.amdhsa_kernel {name}
  .amdhsa_next_free_vgpr {vgpr}
  .amdhsa_next_free_sgpr {sgpr}
  .amdhsa_accum_offset {(vgpr + 3) // 4 * 4}
  .amdhsa_group_segment_fixed_size 0
  .amdhsa_kernarg_size 96
  .amdhsa_user_sgpr_count 2
  .amdhsa_user_sgpr_kernarg_segment_ptr 1
  .amdhsa_system_sgpr_workgroup_id_x 1
  .amdhsa_float_denorm_mode_32 3
.end_amdhsa_kernel
"""


DEFAULT = dict(stamps=False, ns=34, dpl=4, rec_load="", key_shift=20, k1_load="nt", k1_store="sc1", out_store="nt", bar=0, warm1=0, dbg=0, row_load="", rad_load="", prio=0)


def generate(**kw):
    cfg = dict(DEFAULT)
    cfg.update(kw)
    a = Asm()
    lds1 = gen_bucket(a, cfg)
    lds3 = gen_sweep(a, cfg)
    a.lines, added = pad("\n".join(a.lines).split("\n"))
    print(f"{added} wait states padded outside the loop", file=sys.stderr)
    ref = open("standalone__molecular_angular_dimenet__graph.s.ref").read().split("\n")
    head = [ln for ln in ref if ln.startswith(";   offset") or ln.startswith("; Kernarg")]
    head += [
        "; Launch 1 sorts 10240-triplet chunks by destination bucket and builds the radial table;",
        "; launch 2 accumulates one bucket per workgroup, visiting the source rows in increasing order.",
        f"; @launch kernel=bucket_kernel grid=(256,1,1) block=(1024,1,1) lds={lds1}",
        f"; @launch kernel=sweep_kernel grid=(256,1,1) block=(512,1,1) lds={lds3}",
        '.amdgcn_target "amdgcn-amd-amdhsa--gfx950"',
        ".text",
    ]
    tail = '.section .rodata,"a"\n' + descriptor("bucket_kernel", 96, 48) + descriptor("sweep_kernel", 256, 96)
    return "\n".join(head) + "\n" + a.text() + tail


if __name__ == "__main__":
    out = sys.argv[1]
    kw = {}
    for arg in sys.argv[2:]:
        k, v = arg.split("=", 1)
        kw[k] = type(DEFAULT[k])(int(v)) if isinstance(DEFAULT[k], (bool, int)) else v
    open(out, "w").write(generate(**kw))
```

```python
import struct
import sys

from hazard import pad

E = 160000
T = 2560000
CHUNK = 10240
NCHUNK = T // CHUNK
H_BYTES = E * 256

WS_REC = 0
WS_TAB = 0x1480000
WS_END = WS_TAB + NCHUNK * 1024
WS_STAMP = 0x1500000


def f32bits(x):
    return struct.unpack("<I", struct.pack("<f", x))[0]


INV2PI = 0.15915494309189535
C_HI = f32bits(INV2PI) & 0xFFFFFF00
C_LO = f32bits(INV2PI - struct.unpack("<f", struct.pack("<I", C_HI))[0])


class Asm:
    def __init__(self):
        self.lines = []

    def __call__(self, text):
        for ln in text.strip("\n").split("\n"):
            ln = ln.strip()
            if not ln:
                continue
            self.lines.append(ln if ln.endswith(":") else "    " + ln)

    def raw(self, text):
        self.lines.append(text)

    def text(self):
        return "\n".join(self.lines) + "\n"


def srd(a, d, lo, hi, nbytes):
    a(f"""
    s_mov_b32 s{d}, s{lo}
    s_mov_b32 s{d+1}, s{hi}
    s_mov_b32 s{d+2}, {nbytes}
    s_mov_b32 s{d+3}, 0x20000""")


def wave_scan(a, x):
    for sh in (1, 2, 4, 8):
        a(f"v_add_u32_dpp v{x}, v{x}, v{x} row_shr:{sh} row_mask:0xf bank_mask:0xf bound_ctrl:0")
    a(f"v_add_u32_dpp v{x}, v{x}, v{x} row_bcast:15 row_mask:0xa bank_mask:0xf")
    a(f"v_add_u32_dpp v{x}, v{x}, v{x} row_bcast:31 row_mask:0xc bank_mask:0xf")


def stamp(a, cfg, srd_ws, slot, vtmp, s0, swave_off):
    if not cfg["stamps"]:
        return
    a(f"""
    s_memrealtime s[{s0}:{s0+1}]
    s_waitcnt lgkmcnt(0)
    v_mov_b32 v{vtmp}, s{s0}
    v_mov_b32 v{vtmp+1}, {slot*4}
    s_mov_b64 exec, 1
    buffer_store_dword v{vtmp}, v{vtmp+1}, s[{srd_ws}:{srd_ws+3}], s{swave_off} offen
    s_mov_b64 exec, -1""")


def gen_bucket(a, cfg):
    HIST, BASE, TBL = 0, 1024, 2048
    RECS = TBL
    HALF = E // 2
    NDMA = -(-HALF * 2 // 1024)
    S_JI, S_KJ, S_TH, S_WS, S_D = 16, 20, 24, 28, 36
    S_W = 15
    ws_size = WS_STAMP + 0x100000 if cfg["stamps"] else WS_END
    st = cfg["k1_store"]
    a.raw(".p2align 8\n.globl bucket_kernel\n.type bucket_kernel,@function\nbucket_kernel:")
    a(f"""
    s_cmp_ge_u32 s2, {NCHUNK}
    s_cbranch_scc1 K1_end
    s_load_dwordx4 s[4:7], s[0:1], 16
    s_load_dwordx2 s[8:9], s[0:1], 32
    s_load_dwordx2 s[10:11], s[0:1], 88
    s_load_dwordx2 s[44:45], s[0:1], 8
    v_readfirstlane_b32 s{S_W}, v0
    v_lshlrev_b32 v1, 4, v0
    v_lshlrev_b32 v2, 3, v0
    v_lshlrev_b32 v3, 2, v0
    s_lshr_b32 s{S_W}, s{S_W}, 6
    s_mul_i32 s12, s2, {CHUNK*4}
    s_add_u32 s13, s12, 16384
    s_add_u32 s14, s12, 32768
    s_mul_i32 s32, s2, {CHUNK*2}
    s_add_u32 s33, s32, 8192
    s_add_u32 s34, s32, 16384
    v_mov_b32 v34, 0
    v_and_b32 v35, 0x3fc, v3
    v_mov_b32 v36, 1
    v_and_b32 v37, 0x3f0, v1
    s_mov_b32 s48, 0xfe
    ds_write_b32 v35, v34 offset:{HIST}
    s_waitcnt lgkmcnt(0)""")
    srd(a, S_JI, 8, 9, T * 4)
    srd(a, S_KJ, 6, 7, T * 4)
    srd(a, S_TH, 4, 5, T * 2)
    srd(a, S_WS, 10, 11, ws_size)
    srd(a, S_D, 44, 45, E * 2)
    if cfg["stamps"]:
        a(f"""
        s_lshl_b32 s41, s2, 4
        s_add_u32 s40, s{S_W}, s41
        s_lshl_b32 s40, s40, 5
        s_add_u32 s40, s40, {WS_STAMP}""")
    stamp(a, cfg, S_WS, 0, 90, 42, 40)
    ld = cfg["k1_load"]
    JI = [4 + i for i in range(10)]
    KJ = [16 + i for i in range(10)]
    BK = [60 + i for i in range(10)]
    RK = [70 + i for i in range(10)]
    R0 = [40 + 2 * i for i in range(10)]
    DV = [80 + i for i in range(10)]

    def stage(piece):
        a(f"""
        s_lshr_b32 s35, s2, 3
        s_mul_i32 s35, s35, {cfg["rot"]}
        s_add_u32 s35, s35, s{S_W}
        s_lshl_b32 s35, s35, 10""")
        for i in range(10):
            a(f"""
            s_cmp_ge_u32 s35, {160*1024}
            s_cselect_b32 s46, {160*1024}, 0
            s_sub_u32 s35, s35, s46
            s_min_u32 s46, s35, {(NDMA - 1) * 1024}
            s_add_u32 m0, s46, {TBL}
            s_add_u32 s46, s46, {piece * HALF * 2}
            buffer_load_dwordx4 v37, s[{S_D}:{S_D+3}], s46 offen lds""")
            if i < 9:
                a("s_add_u32 s35, s35, 16384")

    a(f"""
    buffer_load_dwordx4 v[16:19], v1, s[{S_KJ}:{S_KJ+3}], s12 offen {ld}
    buffer_load_dwordx4 v[20:23], v1, s[{S_KJ}:{S_KJ+3}], s13 offen {ld}
    buffer_load_dwordx2 v[24:25], v2, s[{S_KJ}:{S_KJ+3}], s14 offen {ld}""")
    stage(0)
    if cfg["k1_order"] & 1:
        a("s_barrier")
    a(f"""
    buffer_load_dwordx4 v[4:7], v1, s[{S_JI}:{S_JI+3}], s12 offen {ld}
    buffer_load_dwordx4 v[8:11], v1, s[{S_JI}:{S_JI+3}], s13 offen {ld}
    buffer_load_dwordx2 v[12:13], v2, s[{S_JI}:{S_JI+3}], s14 offen {ld}
    buffer_load_dwordx2 v[28:29], v2, s[{S_TH}:{S_TH+3}], s32 offen {ld}
    buffer_load_dwordx2 v[30:31], v2, s[{S_TH}:{S_TH+3}], s33 offen {ld}
    buffer_load_dword v32, v3, s[{S_TH}:{S_TH+3}], s34 offen {ld}
    s_mov_b32 s47, {HALF*2}
    s_waitcnt vmcnt(16)""")
    for i in range(10):
        a(f"v_lshlrev_b32 v{R0[i]}, 8, v{KJ[i]}\nv_lshlrev_b32 v{KJ[i]}, 1, v{KJ[i]}")
    a("s_waitcnt vmcnt(6)\ns_barrier")
    for i in range(10):
        a(f"v_cmpx_gt_u32 vcc, s47, v{KJ[i]}\nds_read_u16 v{DV[i]}, v{KJ[i]} offset:{TBL}\ns_mov_b64 exec, -1")
    a("s_waitcnt lgkmcnt(0)\ns_barrier")
    stamp(a, cfg, S_WS, 4, 90, 42, 40)
    late = cfg["k1_order"] & 2
    if not late:
        stage(1)
    ns = 1 if cfg["stamps"] else 0
    for lo, hi, n in ((0, 4, 15), (4, 8, 14), (8, 10, 13)):
        a(f"s_waitcnt vmcnt({n + ns - (10 if late else 0)})")
        for i in range(lo, hi):
            a(f"v_lshlrev_b32_sdwa v{BK[i]}, 2, v{JI[i]} dst_sel:DWORD dst_unused:UNUSED_PAD src0_sel:DWORD src1_sel:BYTE_0")
        for i in range(lo, hi):
            a(f"ds_add_rtn_u32 v{RK[i]}, v{BK[i]}, v36 offset:{HIST}")
    if late:
        stage(1)
    for i in range(10):
        a(f"""
        v_lshrrev_b32 v38, 10, v{JI[i]}
        v_bfe_u32 v39, v{JI[i]}, 8, 3
        v_and_or_b32 v38, v38, s48, v{R0[i]}
        v_lshl_or_b32 v{R0[i]}, v39, 26, v38""")
    for lo, hi, n in ((0, 4, 12), (4, 8, 11), (8, 10, 10)):
        a(f"s_waitcnt vmcnt({n + ns})")
        for i in range(lo, hi):
            th = 28 + i // 2
            if i % 2 == 0:
                a(f"v_and_b32 v{R0[i]+1}, 0xffff, v{th}")
            else:
                a(f"v_lshrrev_b32 v{R0[i]+1}, 16, v{th}")
    a("s_waitcnt lgkmcnt(0)\ns_barrier")
    stamp(a, cfg, S_WS, 1, 90, 42, 40)
    a(f"""
    v_and_b32 v38, 63, v0
    v_lshlrev_b32 v38, 4, v38
    ds_read_b128 v[4:7], v38 offset:{HIST}
    s_waitcnt lgkmcnt(0)""")
    a(f"""
    v_add_u32 v8, v4, v5
    v_add3_u32 v8, v8, v6, v7
    v_mov_b32 v9, v8""")
    wave_scan(a, 9)
    a(f"""
    v_sub_u32 v12, v9, v8
    v_add_u32 v13, v12, v4
    v_add_u32 v14, v13, v5
    v_add_u32 v15, v14, v6
    ds_write_b128 v38, v[12:15] offset:{BASE}""")
    for i in range(10):
        a(f"ds_read_b32 v{BK[i]}, v{BK[i]} offset:{BASE}")
    a("""
    v_lshl_or_b32 v92, v4, 16, v12
    v_lshl_or_b32 v93, v5, 16, v13
    v_lshl_or_b32 v94, v6, 16, v14
    v_lshl_or_b32 v95, v7, 16, v15
    s_waitcnt lgkmcnt(0)""")
    for i in range(10):
        a(f"v_subrev_u32 v{JI[i]}, s47, v{KJ[i]}")
        a(f"v_add_lshl_u32 v{BK[i]}, v{BK[i]}, v{RK[i]}, 3")
    a("s_waitcnt vmcnt(0)\ns_barrier")
    stamp(a, cfg, S_WS, 5, 90, 42, 40)
    for i in range(10):
        a(f"v_cmpx_le_u32 vcc, s47, v{KJ[i]}\nds_read_u16 v{DV[i]}, v{JI[i]} offset:{TBL}\ns_mov_b64 exec, -1")
    a(f"""
    s_cmp_lg_u32 s{S_W}, 0
    s_cbranch_scc1 K1_notab
    s_lshl_b32 s35, s2, 10
    s_add_u32 s35, s35, {WS_TAB}
    buffer_store_dwordx4 v[92:95], v38, s[{S_WS}:{S_WS+3}], s35 offen {st}
    K1_notab:
    s_waitcnt lgkmcnt(0)
    s_barrier""")
    stamp(a, cfg, S_WS, 6, 90, 42, 40)
    for i in range(10):
        a(f"v_lshl_or_b32 v{R0[i]+1}, v{DV[i]}, 16, v{R0[i]+1}")
        a(f"ds_write_b64 v{BK[i]}, v[{R0[i]}:{R0[i]+1}] offset:{RECS}")
    a("s_waitcnt lgkmcnt(0)\ns_barrier")
    stamp(a, cfg, S_WS, 2, 90, 42, 40)
    a(f"s_mul_i32 s12, s2, {CHUNK*8}")
    a("v_add_u32 v2, 0x10000, v1")
    for k in range(5):
        if k < 4:
            a(f"ds_read_b128 v[{4+4*k}:{7+4*k}], v1 offset:{RECS + k * 16384}")
        else:
            a(f"ds_read_b128 v[{4+4*k}:{7+4*k}], v2 offset:{RECS}")
    for k in range(5):
        a(f"s_waitcnt lgkmcnt({4-k})")
        a(f"buffer_store_dwordx4 v[{4+4*k}:{7+4*k}], v1, s[{S_WS}:{S_WS+3}], s12 offen {st}")
        if k < 4:
            a("s_add_u32 s12, s12, 16384")
    if cfg["stamps"]:
        a("s_waitcnt vmcnt(0)")
        stamp(a, cfg, S_WS, 3, 90, 42, 40)
    a("K1_end:\ns_endpgm")
    return TBL + NDMA * 1024


def gen_sweep(a, cfg):
    NS = cfg["ns"]
    NSL = NS + 2
    PIECE = 63
    D = cfg["dpl"]
    SHIFT = cfg["key_shift"]
    NBIN = 1 << (29 - SHIFT)
    BPL = NBIN // 64
    KMASK = (NBIN - 1) << 2
    HIST, BASE, FLAG, ZERO, RING, RINGO, RECS = 0, 2048, 4096, 4352, 5632, 13824, 16384
    CAP = 8 * (NS * PIECE + 79)
    lds = RECS + CAP * 8 + 512
    assert lds <= 163840 and NBIN <= 512 and 2 <= D <= 7

    ACC = 98
    V_LANE, V_TOFF, V_BW, V_TLEN = 0, 1, 2, 6
    V_L8, V_ONE, P = 7, 8, 10
    TK = P + 2 * NSL
    V_PF = ACC - 4
    G = (V_PF - TK) // 2
    V_RADDR, V_AADDR, V_RINGW = 7, 8, 9
    V_RAW, V_F, V_H, V_A, V_AU, V_O, V_RN, V_S, V_T = 10, 42, 58, 66, 70, 78, 82, 84, 86
    V_IC, V_IN, V_RADV, V_MHI, V_L16, V_RINGO, V_OADDR, V_OFF = 90, 91, 92, 93, 94, 95, 96, 97
    S_H, S_OUT, S_WS, S_D = 4, 8, 12, 76
    S_B, S_WAVE, S_SEG, S_REM, S_OFF, S_MORE, S_N, S_START = 16, 17, 18, 19, 20, 21, 22, 23
    S_ELL, S_CHI, S_CLO, S_MASK, S_MODE, S_NMAX, S_T = 24, 27, 28, 29, 30, 31, 32
    S_FREQ, S_PF = 34, 35
    S_I = 36
    S_R = 40
    S_STAMP = 96
    ws_size = WS_STAMP + 0x100000 if cfg["stamps"] else WS_END

    a.raw(".p2align 8\n.globl sweep_kernel\n.type sweep_kernel,@function\nsweep_kernel:")
    a(f"""
    s_cmp_ge_u32 s2, 256
    s_cbranch_scc1 K3_end
    s_load_dwordx2 s[86:87], s[0:1], 88
    s_load_dwordx4 s[80:83], s[0:1], 0
    s_load_dwordx2 s[84:85], s[0:1], 40
    s_load_dwordx4 s[88:91], s[0:1], 48
    s_load_dwordx4 s[92:95], s[0:1], 64
    v_readfirstlane_b32 s{S_WAVE}, v0
    s_and_b32 s{S_B}, s2, 7
    s_lshl_b32 s{S_B}, s{S_B}, 5
    s_lshr_b32 s{S_T}, s2, 3
    s_add_u32 s{S_B}, s{S_B}, s{S_T}
    s_lshr_b32 s{S_WAVE}, s{S_WAVE}, 6
    v_lshlrev_b32 v{P}, 5, v0
    v_and_b32 v{V_LANE}, 63, v0
    v_mov_b32 v{P+2}, 0
    v_mov_b32 v{P+3}, 0
    v_mov_b32 v{P+4}, 0
    v_mov_b32 v{P+5}, 0
    ds_write_b128 v{P}, v[{P+2}:{P+5}]
    ds_write_b128 v{P}, v[{P+2}:{P+5}] offset:16
    s_lshl_b32 s{S_T}, s{S_WAVE}, 5
    v_add_u32 v{V_TOFF}, s{S_T}, v{V_LANE}
    v_lshlrev_b32 v{P+1}, 10, v{V_TOFF}
    v_and_b32 v{P+6}, 15, v{V_LANE}
    v_lshrrev_b32 v{P+7}, 4, v{V_LANE}
    v_lshl_add_u32 v{P+6}, v{P+6}, 2, v{P+7}
    v_lshlrev_b32 v{P+6}, 2, v{P+6}
    s_lshl_b32 s{S_T}, s{S_B}, 2
    s_add_u32 s{S_T}, s{S_T}, {WS_TAB}
    s_waitcnt lgkmcnt(0)""")
    srd(a, S_WS, 86, 87, ws_size)
    a(f"""
    v_mov_b32 v{V_TLEN}, 0
    s_bfm_b64 exec, 32, 0
    buffer_load_dword v{V_TLEN}, v{P+1}, s[{S_WS}:{S_WS+3}], s{S_T} offen
    s_mov_b64 exec, -1""")
    a(f"s_load_dwordx2 s[{S_ELL}:{S_ELL+1}], s[88:89], 0\ns_load_dword s{S_FREQ}, s[84:85], 0")
    SA, SB = P + 2 * NS, P + 2 * NS + 2
    srd(a, S_H, 90, 91, 768)
    srd(a, S_OUT, 92, 93, 256)
    srd(a, S_D, 82, 83, E * 2)
    a(f"""
    buffer_load_dword v{P+8}, v{P+6}, s[{S_H}:{S_H+3}], 0 offen
    buffer_load_dword v{P+9}, v{P+6}, s[{S_H}:{S_H+3}], 0 offen offset:256
    buffer_load_dword v{P+10}, v{P+6}, s[{S_H}:{S_H+3}], 0 offen offset:512
    buffer_load_dword v{P+11}, v{P+6}, s[{S_OUT}:{S_OUT+3}], 0 offen
""")
    srd(a, S_H, 80, 81, 0 if cfg["dbg"] & 1 else H_BYTES)
    srd(a, S_OUT, 94, 95, H_BYTES)

    def prefetch(n):
        if not n:
            return
        a(f"""
        s_lshl_b32 s{S_PF}, s2, 3
        s_add_u32 s{S_PF}, s{S_PF}, s{S_WAVE}
        s_lshl_b32 s{S_PF}, s{S_PF}, 10
        s_add_u32 s{S_PF}, s{S_PF}, {cfg["pf_base"] << 21}
        v_lshlrev_b32 v9, 4, v{V_LANE}""")
        for _ in range(n):
            a(f"buffer_load_dwordx4 v[{V_PF}:{V_PF+3}], v9, s[{S_H}:{S_H+3}], s{S_PF} offen\ns_add_u32 s{S_PF}, s{S_PF}, {2 << 20}")

    if cfg["stamps"]:
        a(f"""
        s_lshl_b32 s{S_STAMP}, s2, 3
        s_add_u32 s{S_STAMP}, s{S_STAMP}, s{S_WAVE}
        s_lshl_b32 s{S_STAMP}, s{S_STAMP}, 5
        s_add_u32 s{S_STAMP}, s{S_STAMP}, {WS_STAMP + 0x40000}""")
    a(f"""
    s_mov_b32 s{S_CHI}, {C_HI:#x}
    s_mov_b32 s{S_CLO}, {C_LO:#x}
    s_mov_b32 s{S_MASK}, 0x03ffff00
    s_mov_b32 s{S_MODE}, 0xc000
    s_mov_b32 s{S_T}, {CHUNK*8}
    v_cmp_gt_u32 vcc, {NCHUNK}, v{V_TOFF}
    v_mul_lo_u32 v{V_TOFF}, v{V_TOFF}, s{S_T}
    s_mov_b32 s{S_SEG}, 0
    s_mov_b32 s{S_REM}, 0
    s_mov_b32 s{S_OFF}, 0""")
    a(f"""
    s_lshl_b32 s{S_T}, s{S_WAVE}, 8
    s_add_u32 s{S_T}, s{S_T}, s{S_B}
    s_lshl_b32 s{S_T}, s{S_T}, 8
    s_lshl_b32 s{S_T+1}, s{S_WAVE}, 26
    s_or_b32 s{S_T}, s{S_T}, s{S_T+1}
    s_bitset1_b32 s{S_T}, 31
    s_mov_b32 s{S_T+1}, {(1 << 19) + 2}
    v_mul_lo_u32 v{SA}, v{V_LANE}, s{S_T+1}
    v_add_u32 v{SA}, s{S_T}, v{SA}
    v_add_u32 v{SB}, {40 * ((1 << 19) + 2)}, v{SA}
    s_mov_b32 s{S_R+NS}, 40
    s_cmp_eq_u32 s{S_WAVE}, 0
    s_cselect_b32 s{S_R+NS+1}, 39, 38""")
    for i in range(158):
        a(f"v_mov_b32 v{ACC+i}, 0")
    a(f"""
    s_waitcnt lgkmcnt(0)
    s_and_b32 s{S_ELL+2}, s{S_ELL}, 0xffff0000
    s_lshl_b32 s{S_ELL}, s{S_ELL}, 16
    s_lshl_b32 s{S_T}, s{S_ELL+1}, 16
    s_mov_b32 s{S_ELL+1}, s{S_ELL+2}
    s_mov_b32 s{S_ELL+2}, s{S_T}
    s_mov_b32 s{S_T}, 0x05040100
    s_mov_b32 s{S_T+1}, 0x07060302
    s_lshl_b32 s{S_FREQ}, s{S_FREQ}, 16
    s_waitcnt vmcnt(0)
    v_perm_b32 v{V_BW}, v{P+9}, v{P+8}, s{S_T}
    v_perm_b32 v{V_BW+1}, v{P+11}, v{P+10}, s{S_T}
    v_perm_b32 v{V_BW+2}, v{P+9}, v{P+8}, s{S_T+1}
    v_perm_b32 v{V_BW+3}, v{P+11}, v{P+10}, s{S_T+1}
    v_cndmask_b32 v{V_TLEN}, 0, v{V_TLEN}, vcc
    v_and_b32 v{P+1}, 0xffff, v{V_TLEN}
    v_lshl_add_u32 v{V_TOFF}, v{P+1}, 3, v{V_TOFF}
    v_lshrrev_b32 v{V_TLEN}, 16, v{V_TLEN}""")
    stamp(a, cfg, S_WS, 0, P, 98, S_STAMP)

    a(f"""
    K3_round:
    v_lshlrev_b32 v{V_L8}, 3, v{V_LANE}
    v_mov_b32 v{V_ONE}, 1""")
    rl = cfg["rec_load"]

    def rec_load(k, soff):
        if cfg["mask_rec"]:
            a(f"s_max_u32 s{S_T+1}, s{S_R+k}, 1\ns_bfm_b64 exec, s{S_T+1}, 0")
        a(f"buffer_load_dwordx2 v[{P+2*k}:{P+2*k+1}], v{V_L8}, s[{S_WS}:{S_WS+3}], s{soff} offen {rl}")

    a(f"""
    v_cmp_lt_u32 vcc, {PIECE}, v{V_TLEN}
    s_or_b32 s{S_T}, vcc_lo, s{S_SEG}
    s_cbranch_scc1 K3_general""")
    AHEAD = 3
    for k in range(32 + AHEAD):
        if k < 32:
            a(f"v_readlane_b32 s{S_R+k}, v{V_TLEN}, {k}\nv_readlane_b32 s{S_I + k % 4}, v{V_TOFF}, {k}")
        if k >= AHEAD:
            rec_load(k - AHEAD, S_I + (k - AHEAD) % 4)
    for k in range(32, NS):
        a(f"s_mov_b32 s{S_R+k}, 0")
        rec_load(k, S_I)
    a(f"s_mov_b32 s{S_SEG}, 32\ns_branch K3_loaded\nK3_general:")
    for k in range(NS):
        a(f"""
        s_cmp_lg_u32 s{S_REM}, 0
        s_cbranch_scc1 K3_have{k}
        K3_adv{k}:
        s_cmp_ge_u32 s{S_SEG}, 32
        s_cbranch_scc1 K3_have{k}
        v_readlane_b32 s{S_REM}, v{V_TLEN}, s{S_SEG}
        v_readlane_b32 s{S_OFF}, v{V_TOFF}, s{S_SEG}
        s_add_u32 s{S_SEG}, s{S_SEG}, 1
        s_cmp_eq_u32 s{S_REM}, 0
        s_cbranch_scc1 K3_adv{k}
        K3_have{k}:
        s_min_u32 s{S_R+k}, s{S_REM}, {PIECE}
        s_mov_b32 s{S_T}, s{S_OFF}
        s_sub_u32 s{S_REM}, s{S_REM}, s{S_R+k}""")
        rec_load(k, S_T)
        a(f"s_add_u32 s{S_OFF}, s{S_OFF}, {PIECE*8}")
    a(f"""
    K3_loaded:
    s_mov_b64 exec, -1
    s_lshl_b32 s{S_T}, s{S_WAVE}, 8
    s_add_u32 s{S_T}, s{S_T}, s{S_B}
    s_lshl_b32 s{S_T}, s{S_T}, 1
    s_add_u32 s{S_T+1}, s{S_T}, {40 * 4096}
    v_lshlrev_b32 v9, 12, v{V_LANE}
    s_bfm_b64 exec, 40, 0
    buffer_load_ushort v{SA+1}, v9, s[{S_D}:{S_D+3}], s{S_T} offen
    buffer_load_ushort v{SB+1}, v9, s[{S_D}:{S_D+3}], s{S_T+1} offen
    s_mov_b64 exec, -1""")
    if cfg["stamps"] > 1:
        stamp(a, cfg, S_WS, 3, TK, 98, S_STAMP)
        a("s_waitcnt vmcnt(0)")
        stamp(a, cfg, S_WS, 6, TK, 98, S_STAMP)
    a(f"""
    v_cmp_le_u32 vcc, s{S_SEG}, v{V_LANE}
    v_cmp_lt_u32 s[{S_T}:{S_T+1}], 0, v{V_TLEN}
    s_and_b32 s{S_T}, s{S_T}, vcc_lo
    s_or_b32 s{S_T}, s{S_T}, s{S_REM}
    s_barrier
    s_cmp_eq_u32 s{S_T}, 0
    s_cbranch_scc1 K3_nomore
    v_mov_b32 v{TK}, {FLAG}
    ds_write_b32 v{TK}, v{V_ONE}
    K3_nomore:""")

    order = list(range(NS)) + [NS, NS + 1]

    def key(t, k):
        a(f"v_lshrrev_b32 v{t}, {SHIFT-2}, v{P+2*k}\nv_and_b32 v{t}, {KMASK}, v{t}")

    for n, k in enumerate(order):
        t = TK + 1 + n % (2 * G - 1)
        if k < NS:
            a(f"s_waitcnt vmcnt({NS-1-k+2})")
        a(f"s_bfm_b64 exec, s{S_R+k}, 0")
        key(t, k)
        a(f"ds_add_u32 v{t}, v{V_ONE} offset:{HIST}")
    a(f"""
    s_mov_b64 exec, -1
    s_waitcnt lgkmcnt(0)
    s_barrier""")
    stamp(a, cfg, S_WS, 1, TK, 98, S_STAMP)
    prefetch(cfg["pf2"])

    assert BPL in (4, 8) and TK + BPL + 3 <= V_PF and TK % 2 == 0
    C = TK
    X, Y, AD = TK + BPL, TK + BPL + 1, TK + BPL + 2
    a(f"v_lshlrev_b32 v{AD}, {2 + BPL.bit_length() - 1}, v{V_LANE}")
    a(f"v_mov_b32 v{X}, {FLAG}")
    a(f"ds_read_b32 v{X}, v{X}")
    for q in range(BPL // 4):
        a(f"ds_read_b128 v[{C+4*q}:{C+4*q+3}], v{AD} offset:{HIST+16*q}")
    a(f"s_waitcnt lgkmcnt(0)\nv_readfirstlane_b32 s{S_MORE}, v{X}")
    for q in range(1, BPL):
        a(f"v_add_u32 v{C+q}, v{C+q}, v{C+q-1}")
    a(f"v_mov_b32 v{X}, v{C+BPL-1}")
    wave_scan(a, X)
    a(f"v_sub_u32 v{Y}, v{X}, v{C+BPL-1}")
    for q in range(BPL - 1, 0, -1):
        a(f"v_add_u32 v{C+q}, v{Y}, v{C+q-1}")
    a(f"""
    v_mov_b32 v{C}, v{Y}
    s_lshl_b32 s{S_T}, s{S_WAVE}, 3
    s_add_u32 s{S_T+1}, s{S_T}, 7
    s_bfm_b64 exec, 8, s{S_T}""")
    for q in range(BPL // 4):
        a(f"ds_write_b128 v{AD}, v[{C+4*q}:{C+4*q+3}] offset:{BASE+16*q}")
    a(f"""
    s_mov_b64 exec, -1
    v_readlane_b32 s{S_START}, v{Y}, s{S_T}
    v_readlane_b32 s{S_N}, v{X}, s{S_T+1}
    s_sub_u32 s{S_N}, s{S_N}, s{S_START}
    s_waitcnt lgkmcnt(0)""")

    groups = [order[i:i + G] for i in range(0, NSL, G)]

    def tmp(gi, j):
        return TK + (gi % 2) * G + j

    def take(g, gi):
        for j, k in enumerate(g):
            a(f"s_bfm_b64 exec, s{S_R+k}, 0\nds_add_rtn_u32 v{tmp(gi, j)}, v{tmp(gi, j)}, v{V_ONE} offset:{BASE}")
        a("s_mov_b64 exec, -1")

    for gi in range(2):
        for j, k in enumerate(groups[gi]):
            key(tmp(gi, j), k)
    a("s_barrier")
    take(groups[0], 0)
    for gi, g in enumerate(groups):
        a("s_waitcnt lgkmcnt(0)")
        if gi + 1 < len(groups):
            take(groups[gi + 1], gi + 1)
        for j, k in enumerate(g):
            a(f"v_lshlrev_b32 v{tmp(gi, j)}, 3, v{tmp(gi, j)}")
        if NS in g:
            extra = cfg["pf2"] + (1 if cfg["stamps"] else 0)
            a(f"s_waitcnt vmcnt({extra})\nv_lshlrev_b32 v{SA+1}, 16, v{SA+1}\nv_lshlrev_b32 v{SB+1}, 16, v{SB+1}")
        for j, k in enumerate(g):
            a(f"s_bfm_b64 exec, s{S_R+k}, 0\nds_write_b64 v{tmp(gi, j)}, v[{P+2*k}:{P+2*k+1}] offset:{RECS}")
        a("s_mov_b64 exec, -1")
        if gi + 2 < len(groups):
            for j, k in enumerate(groups[gi + 2]):
                key(tmp(gi, j), k)
    a("s_waitcnt vmcnt(0) lgkmcnt(0)")

    T0, T1, T2, T3 = V_T, V_T + 1, V_T + 2, V_T + 3
    U0, U1 = V_S, V_S + 1
    a(f"""
    s_lshl_b32 s{S_T}, s{S_START}, 3
    s_add_u32 s{S_T}, s{S_T}, {RECS}
    v_lshl_add_u32 v{V_RADDR}, v{V_LANE}, 3, s{S_T}
    v_mov_b32 v{V_MHI}, 0xffff0000
    s_lshl_b32 s{S_T}, s{S_WAVE}, 10
    s_add_u32 s{S_T}, s{S_T}, {RING}
    v_lshl_add_u32 v{V_RINGW}, v{V_LANE}, 4, s{S_T}
    v_bfe_u32 v{T0}, v{V_LANE}, 3, 2
    v_bfe_u32 v{T1}, v{V_LANE}, 1, 1
    v_lshl_add_u32 v{T0}, v{T0}, 1, v{T1}
    v_and_b32 v{T1}, 1, v{V_LANE}
    v_lshlrev_b32 v{T0}, 4, v{T0}
    v_lshlrev_b32 v{T2}, 3, v{T1}
    v_sub_u32 v{T0}, v{T0}, v{T2}
    v_add_u32 v{T0}, s{S_T}, v{T0}
    v_bfe_u32 v{T2}, v{V_LANE}, 2, 1
    v_lshrrev_b32 v{T3}, 5, v{V_LANE}
    v_cmp_eq_u32 vcc, v{T2}, v{T3}
    v_mov_b32 v{T2}, {ZERO}
    v_and_b32 v{V_L16}, 15, v{V_LANE}
    v_cndmask_b32 v{V_AADDR}, v{T2}, v{T0}, vcc
    v_lshlrev_b32 v{V_L16}, 4, v{V_L16}
    s_lshl_b32 s{S_T}, s{S_WAVE}, 8
    s_add_u32 s{S_T}, s{S_T}, {RINGO}
    v_lshrrev_b32 v{T3}, 4, v{V_LANE}
    v_lshl_add_u32 v{V_OADDR}, v{T3}, 3, s{S_T}
    v_lshrrev_b32 v{T0}, 3, v{V_LANE}
    v_lshlrev_b32 v{T0}, 5, v{T0}
    v_and_b32 v{T2}, 3, v{V_LANE}
    v_lshl_add_u32 v{T0}, v{T2}, 3, v{T0}
    v_bfe_u32 v{T2}, v{V_LANE}, 2, 1
    v_lshl_add_u32 v{T0}, v{T2}, 2, v{T0}
    v_add_u32 v{V_RINGO}, s{S_T}, v{T0}
    v_mov_b32 v{T0}, 0x3f80
    v_cmp_eq_u32 vcc, 1, v{T1}
    v_bfe_u32 v{T2}, v{V_LANE}, 1, 1
    v_bfe_u32 v{U0}, v{V_LANE}, 2, 2
    v_cndmask_b32 v{T0}, v{T0}, 1.0, vcc
    v_sub_u32 v{T3}, v{T3}, v{T2}
    v_lshl_add_u32 v{T3}, v{T3}, 2, v{U0}""")
    for aa in range(2):
        for q in range(4):
            a(f"v_cmp_eq_u32 vcc, {8*aa+q}, v{T3}\nv_cndmask_b32 v{V_AU+4*aa+q}, 0, v{T0}, vcc")
    a("s_barrier")
    stamp(a, cfg, S_WS, 2, V_RAW, 98, S_STAMP)
    a(f"""
    s_cmp_eq_u32 s{S_MORE}, 0
    s_cbranch_scc1 K3_keep
    s_lshl_b32 s{S_T}, s{S_WAVE}, 8
    v_lshl_add_u32 v{T0}, v{V_LANE}, 2, s{S_T}
    v_mov_b32 v{T1}, 0
    v_mov_b32 v{T2}, {FLAG}
    ds_write_b32 v{T0}, v{T1} offset:{HIST}
    ds_write_b32 v{T2}, v{T1}
    K3_keep:""")
    S_MILE = 38
    LIM, MSTEP = E << 8, (E * cfg["mile_step"] // 1000) << 8
    if cfg["mile_step"]:
        a(f"""
        s_lshr_b32 s{S_T}, s2, 3
        s_mul_i32 s{S_T}, s{S_T}, {(E * cfg["mile_jit"] // 32000) << 8}
        s_add_u32 s{S_MILE}, s{S_T}, {(E * cfg["mile_off"] // 1000) << 8}
        s_cmp_lg_u32 s{S_N}, 0
        s_cbranch_scc1 K3_go
        K3_idle:
        s_barrier
        s_add_u32 s{S_MILE}, s{S_MILE}, {MSTEP}
        s_cmp_le_u32 s{S_MILE}, {LIM}
        s_cbranch_scc1 K3_idle
        s_branch K3_swept
        K3_go:""")
    else:
        a(f"s_cmp_eq_u32 s{S_N}, 0\ns_cbranch_scc1 K3_swept")

    R, TH = V_RN, V_RN + 1
    stage1 = [
        f"v_cmp_gt_i32 vcc, s{S_N}, v{V_LANE}",
        f"v_mov_b32 v{T0}, s{S_MASK}",
        f"v_mov_b32 v{T1}, 1.0",
        f"v_cndmask_b32 v{R}, v{T0}, v{R}, vcc",
        f"v_cndmask_b32 v{TH}, v{T1}, v{TH}, vcc",
        f"v_and_b32 v{T0}, v{V_MHI}, v{TH}",
        f"v_lshlrev_b32 v{TH}, 16, v{TH}",
        f"v_rcp_f32 v{V_RADV}, v{T0}",
        f"v_mul_f32 v{T0}, s{S_FREQ}, v{T0}",
        f"v_cvt_pk_bf16_f32 v{T0}, v{T0}, v{T0}",
        f"v_and_b32 v{T0}, v{V_MHI}, v{T0}",
        f"v_mul_f32 v{T1}, s{S_CHI}, v{T0}",
        f"v_rndne_f32 v{T2}, v{T1}",
        f"v_sub_f32 v{T1}, v{T1}, v{T2}",
        f"v_fma_f32 v{T0}, v{T0}, s{S_CLO}, v{T1}",
        f"v_sin_f32 v{T0}, v{T0}",
        f"v_or_b32_sdwa v{V_IN}, v{R}, s{S_MODE} dst_sel:DWORD dst_unused:UNUSED_PAD src0_sel:BYTE_0 src1_sel:DWORD",
        f"v_cvt_pk_bf16_f32 v{T0}, v{T0}, v{T0}",
        f"v_and_b32 v{T0}, v{V_MHI}, v{T0}",
        f"v_mul_f32 v{V_RADV}, v{T0}, v{V_RADV}",
        f"v_cvt_pk_bf16_f32 v{V_RADV}, v{V_RADV}, v{V_RADV}",
        f"v_and_b32 v{V_RADV}, v{V_MHI}, v{V_RADV}",
    ]
    stage2 = [
        f"v_mul_f32 v{T0}, s{S_ELL}, v{TH}",
        f"v_mul_f32 v{T1}, s{S_ELL+1}, v{TH}",
        f"v_mov_b32_dpp v{T3}, v{V_IN} quad_perm:[1,1,3,3] row_mask:0xf bank_mask:0xf",
        f"v_mul_f32 v{T2}, s{S_ELL+2}, v{TH}",
        f"v_lshl_or_b32 v{V_IN}, v{T3}, 16, v{V_IN}",
        f"v_cvt_pk_bf16_f32 v{T0}, v{T0}, v{T1}",
        f"v_cvt_pk_bf16_f32 v{T2}, v{T2}, v{T2}",
        f"v_and_b32 v{T1}, v{V_MHI}, v{T0}",
        f"v_lshlrev_b32 v{T0}, 16, v{T0}",
        f"v_and_b32 v{T2}, v{V_MHI}, v{T2}",
        f"v_mul_f32 v{U0}, s{S_CHI}, v{T0}",
        f"v_mul_f32 v{U1}, s{S_CHI}, v{T1}",
        f"v_mul_f32 v{T3}, s{S_CHI}, v{T2}",
        f"v_fract_f32 v{U0}, v{U0}",
        f"v_fract_f32 v{U1}, v{U1}",
        f"v_fract_f32 v{T3}, v{T3}",
        f"v_fma_f32 v{T0}, v{T0}, s{S_CLO}, v{U0}",
        f"v_fma_f32 v{T1}, v{T1}, s{S_CLO}, v{U1}",
        f"v_fma_f32 v{T2}, v{T2}, s{S_CLO}, v{T3}",
        f"v_cos_f32 v{T0}, v{T0}",
        f"v_cos_f32 v{T1}, v{T1}",
        f"v_cos_f32 v{T2}, v{T2}",
        f"v_cmp_gt_i32 vcc, 0, v{R}",
        f"v_cvt_pk_bf16_f32 v{T0}, v{T0}, v{T1}",
        f"v_cvt_pk_bf16_f32 v{T2}, v{T2}, v{T2}",
        f"v_and_b32 v{T1}, v{V_MHI}, v{T0}",
        f"v_lshlrev_b32 v{T0}, 16, v{T0}",
        f"v_and_b32 v{T2}, v{V_MHI}, v{T2}",
    ]
    stage3 = [
        f"v_mul_f32 v{T0}, v{T0}, v{V_RADV}",
        f"v_mul_f32 v{T1}, v{T1}, v{V_RADV}",
        f"v_mul_f32 v{T2}, v{T2}, v{V_RADV}",
        f"v_cvt_pk_bf16_f32 v{U0}, v{T0}, v{T1}",
        f"v_cvt_pk_bf16_f32 v{U1}, v{T2}, 0",
        f"v_cndmask_b32 v{U0}, v{U0}, 0, vcc",
        f"v_cndmask_b32 v{U1}, v{U1}, v{V_RADV}, vcc",
    ]

    def issue(L):
        o = V_O + 2 * ((L // 2) % 2) + L % 2
        raw = V_RAW + 4 * (L % 8)
        a(f"v_add_u32 v{o}, v{o}, v{V_L16}")
        a(f"buffer_load_dwordx4 v[{raw}:{raw+3}], v{o}, s[{S_H}:{S_H+3}], 0 offen {cfg['row_load']}")

    def o_read(j):
        o = V_O + 2 * (j % 2)
        a(f"ds_read_b64 v[{o}:{o+1}], v{V_OADDR} offset:{32 * (j % 8)}")

    def o_write():
        a(f"v_and_b32 v{V_OFF}, s{S_MASK}, v{R}\nds_write_b32 v{V_RINGO}, v{V_OFF}")

    def a_read(g):
        a(f"ds_read2_b64 v[{V_A}:{V_A+3}], v{V_AADDR} offset0:{16*g} offset1:{16*g+1}")

    def read_step(j):
        return (2 * j - D) // 2 * 2 - 2

    PROG = FLAG + 16
    if cfg["prio"]:
        a(f"""
        s_lshl_b32 s{S_T}, s{S_WAVE}, 2
        s_add_u32 s{S_PF}, s{S_T}, {PROG}
        s_xor_b32 s{S_T}, s{S_T}, 16
        s_add_u32 s{S_NMAX}, s{S_T}, {PROG}""")
    a(f"ds_read_b64 v[{V_RN}:{V_RN+1}], v{V_RADDR}\ns_waitcnt lgkmcnt(0)")
    for s in stage1[:5]:
        a(s)
    o_write()
    for j in range(8):
        if read_step(j) >= 0:
            break
        o_read(j)
        nxt = [L for L in (2 * j, 2 * j + 1) if L < D]
        if nxt:
            a("s_waitcnt lgkmcnt(0)")
            for L in nxt:
                issue(L)
    for s in stage1[5:] + stage2 + stage3:
        a(s)
    a(f"ds_write_b64 v{V_RINGW}, v[{V_S}:{V_S+1}]\nv_mov_b32 v{V_IC}, v{V_IN}")
    a_read(0)

    body = Asm()
    a_main = a
    fill = {i: [] for i in range(16)}
    fill[2] = stage1[:5]
    rest = stage1[5:] + stage2 + stage3
    steps = list(range(3, 14))
    for n, s in enumerate(rest):
        fill[steps[n * len(steps) // len(rest)]].append(s)
    a = body
    for i in range(16):
        if i and i % cfg["exit_every"] == 0:
            a(f"s_cmp_le_i32 s{S_N}, {4*i-64}\ns_cbranch_scc1 K3_drain")
        if i % 2 == 0:
            a(f"s_waitcnt lgkmcnt(0)\nv_mfma_f32_32x32x16_bf16 v[{V_F}:{V_F+15}], v[{V_A}:{V_A+3}], v[{V_BW}:{V_BW+3}], 0")
            if i == 0:
                a(f"""
                v_add_u32 v{V_RADDR}, 512, v{V_RADDR}
                s_sub_u32 s{S_N}, s{S_N}, 64
                ds_read_b64 v[{V_RN}:{V_RN+1}], v{V_RADDR}""")
            if cfg["prio"] and i == 0:
                a(f"""
                v_mov_b32 v{T0}, s{S_PF}
                v_mov_b32 v{T1}, s{S_N}
                v_mov_b32 v{T3}, s{S_NMAX}
                ds_write_b32 v{T0}, v{T1}
                ds_read_b32 v{T3}, v{T3}""")
            if cfg["prio"] and i == 2:
                a(f"""
                v_readfirstlane_b32 s{S_T}, v{T3}
                s_cmp_gt_i32 s{S_N}, s{S_T}
                s_cbranch_scc1 K3_behind
                s_setprio 0
                s_branch K3_prio
                K3_behind:
                s_setprio 1
                K3_prio:""")
            if i == 14:
                a(f"ds_write_b64 v{V_RINGW}, v[{V_S}:{V_S+1}]")
            a_read((i // 2 + 1) % 8)
        if cfg["mile_step"] and i == 3:
            a(f"""
            v_readlane_b32 s{S_T}, v{R}, 0
            s_and_b32 s{S_T}, s{S_T}, s{S_MASK}
            s_min_u32 s{S_T}, s{S_T}, {LIM}
            s_cmp_lt_u32 s{S_T}, s{S_MILE}
            s_cbranch_scc1 K3_nomile
            K3_mile:
            s_barrier
            s_add_u32 s{S_MILE}, s{S_MILE}, {MSTEP}
            s_cmp_ge_u32 s{S_T}, s{S_MILE}
            s_cbranch_scc1 K3_mile
            K3_nomile:""")
        n = D - 1
        raw = V_RAW + 4 * (i % 8)
        a(f"""
        s_waitcnt vmcnt({n})
        v_mfma_f32_16x16x32_bf16 v[{V_H}:{V_H+3}], v[{V_AU}:{V_AU+3}], v[{raw}:{raw+3}], 0
        v_mfma_f32_16x16x32_bf16 v[{V_H+4}:{V_H+7}], v[{V_AU+4}:{V_AU+7}], v[{raw}:{raw+3}], 0""")
        issue(i + D)
        for j in range(16):
            if read_step(j) == i:
                if j == 8:
                    o_write()
                o_read(j)
        a(f"v_readlane_b32 s{S_I}, v{V_IC}, {4*i}\nv_readlane_b32 s{S_I+1}, v{V_IC}, {4*i+2}")
        for s in fill[i]:
            a(s)
        for j in range(4):
            f = V_F + 2 * (4 * (i % 2) + j)
            a([f"s_set_gpr_idx_on s{S_I}, gpr_idx(SRC2,DST)", f"s_lshr_b32 m0, s{S_I}, 16",
               f"s_mov_b32 m0, s{S_I+1}", f"s_lshr_b32 m0, s{S_I+1}, 16"][j])
            a(f"v_pk_fma_f32 v[{ACC}:{ACC+1}], v[{V_H+2*j}:{V_H+2*j+1}], v[{f}:{f+1}], v[{ACC}:{ACC+1}]")
        a("s_set_gpr_idx_off")
    a(f"""
    v_mov_b32 v{V_IC}, v{V_IN}
    s_cmp_gt_i32 s{S_N}, 0
    s_cbranch_scc1 K3_batch""")
    a = a_main
    lines, added = pad(body.lines)
    again, extra = pad(lines, before=lines)
    assert extra == 0
    print(f"sweep loop: {len(lines)} instructions, {added} padded wait states", file=sys.stderr)
    a("K3_batch:")
    a.lines += lines
    a(f"""
    K3_drain:
    s_waitcnt vmcnt(0) lgkmcnt(0)
    K3_swept:
    s_mov_b32 s{S_R+NS}, 0
    s_mov_b32 s{S_R+NS+1}, 0
    s_waitcnt lgkmcnt(0)
    s_cmp_lg_u32 s{S_MORE}, 0
    s_cbranch_scc1 K3_round""")
    stamp(a, cfg, S_WS, 4, P, 98, S_STAMP)

    st = cfg["out_store"]
    a(f"""
    v_and_b32 v7, 15, v{V_LANE}
    v_lshrrev_b32 v8, 4, v{V_LANE}
    v_lshlrev_b32 v7, 4, v7
    v_lshl_add_u32 v7, v8, 19, v7
    s_lshl_b32 s{S_T}, s{S_WAVE}, 8
    s_add_u32 s{S_T}, s{S_T}, s{S_B}
    s_lshl_b32 s{S_T}, s{S_T}, 8""")
    for i in range(20):
        t = P + 4 * (i % 8)
        for k in range(4):
            r = min(4 * i + k, 78)
            a(f"v_cvt_pk_bf16_f32 v{t+k}, v{ACC+2*r}, v{ACC+2*r+1}")
        a(f"""
        s_nop 0
        v_permlane32_swap_b32 v{t}, v{t+2}
        v_permlane32_swap_b32 v{t+1}, v{t+3}
        s_nop 1
        v_permlane16_swap_b32 v{t}, v{t+1}
        v_permlane16_swap_b32 v{t+2}, v{t+3}
        buffer_store_dwordx4 v[{t}:{t+3}], v7, s[{S_OUT}:{S_OUT+3}], s{S_T} offen {st}
        s_add_u32 s{S_T}, s{S_T}, {4 << 19}""")
    if cfg["stamps"]:
        a("s_waitcnt vmcnt(0)")
        stamp(a, cfg, S_WS, 5, P, 98, S_STAMP)
    a("K3_end:\ns_endpgm")
    return lds


def descriptor(name, vgpr, sgpr):
    return f""".p2align 6
.amdhsa_kernel {name}
  .amdhsa_next_free_vgpr {vgpr}
  .amdhsa_next_free_sgpr {sgpr}
  .amdhsa_accum_offset {(vgpr + 3) // 4 * 4}
  .amdhsa_group_segment_fixed_size 0
  .amdhsa_kernarg_size 96
  .amdhsa_user_sgpr_count 2
  .amdhsa_user_sgpr_kernarg_segment_ptr 1
  .amdhsa_system_sgpr_workgroup_id_x 1
  .amdhsa_float_denorm_mode_32 3
.end_amdhsa_kernel
"""


DEFAULT = dict(stamps=0, ns=34, dpl=6, rec_load="", key_shift=20, k1_load="nt", k1_store="sc1", out_store="nt", dbg=0, row_load="", prio=1, pf2=0, pf_base=0, mask_rec=0, exit_every=4, rot=5, mile_step=0, mile_off=100, mile_jit=100, k1_order=3)


def generate(**kw):
    cfg = dict(DEFAULT)
    cfg.update(kw)
    a = Asm()
    lds1 = gen_bucket(a, cfg)
    lds3 = gen_sweep(a, cfg)
    a.lines, added = pad("\n".join(a.lines).split("\n"))
    print(f"{added} wait states padded outside the loop", file=sys.stderr)
    ref = open("standalone__molecular_angular_dimenet__graph.s.ref").read().split("\n")
    head = [ln for ln in ref if ln.startswith(";   offset") or ln.startswith("; Kernarg")]
    head += [
        "; Launch 1 sorts 10240-triplet chunks by destination bucket and builds the radial table;",
        "; launch 2 accumulates one bucket per workgroup, visiting the source rows in increasing order.",
        f"; @launch kernel=bucket_kernel grid=({NCHUNK},1,1) block=(1024,1,1) lds={lds1}",
        f"; @launch kernel=sweep_kernel grid=(256,1,1) block=(512,1,1) lds={lds3}",
        '.amdgcn_target "amdgcn-amd-amdhsa--gfx950"',
        ".text",
    ]
    tail = '.section .rodata,"a"\n' + descriptor("bucket_kernel", 96, 56) + descriptor("sweep_kernel", 256, 100)
    return "\n".join(head) + "\n" + a.text() + tail


if __name__ == "__main__":
    out = sys.argv[1]
    kw = {}
    for arg in sys.argv[2:]:
        k, v = arg.split("=", 1)
        kw[k] = type(DEFAULT[k])(int(v)) if isinstance(DEFAULT[k], (bool, int)) else v
    open(out, "w").write(generate(**kw))
```

```python
import struct
import sys

from hazard import pad

E = 160000
T = 2560000
CHUNK = 10240
NCHUNK = T // CHUNK
H_BYTES = E * 256

WS_REC = 0
WS_TAB = 0x1480000
WS_END = WS_TAB + NCHUNK * 1024
WS_STAMP = 0x1500000


def f32bits(x):
    return struct.unpack("<I", struct.pack("<f", x))[0]


INV2PI = 0.15915494309189535
C_HI = f32bits(INV2PI) & 0xFFFFFF00
C_LO = f32bits(INV2PI - struct.unpack("<f", struct.pack("<I", C_HI))[0])


class Asm:
    def __init__(self):
        self.lines = []

    def __call__(self, text):
        for ln in text.strip("\n").split("\n"):
            ln = ln.strip()
            if not ln:
                continue
            self.lines.append(ln if ln.endswith(":") else "    " + ln)

    def raw(self, text):
        self.lines.append(text)

    def text(self):
        return "\n".join(self.lines) + "\n"


def srd(a, d, lo, hi, nbytes):
    a(f"""
    s_mov_b32 s{d}, s{lo}
    s_mov_b32 s{d+1}, s{hi}
    s_mov_b32 s{d+2}, {nbytes}
    s_mov_b32 s{d+3}, 0x20000""")


def wave_scan(a, x):
    for sh in (1, 2, 4, 8):
        a(f"v_add_u32_dpp v{x}, v{x}, v{x} row_shr:{sh} row_mask:0xf bank_mask:0xf bound_ctrl:0")
    a(f"v_add_u32_dpp v{x}, v{x}, v{x} row_bcast:15 row_mask:0xa bank_mask:0xf")
    a(f"v_add_u32_dpp v{x}, v{x}, v{x} row_bcast:31 row_mask:0xc bank_mask:0xf")


def stamp(a, cfg, srd_ws, slot, vtmp, s0, swave_off):
    if not cfg["stamps"]:
        return
    a(f"""
    s_memrealtime s[{s0}:{s0+1}]
    s_waitcnt lgkmcnt(0)
    v_mov_b32 v{vtmp}, s{s0}
    v_mov_b32 v{vtmp+1}, {slot*4}
    s_mov_b64 exec, 1
    buffer_store_dword v{vtmp}, v{vtmp+1}, s[{srd_ws}:{srd_ws+3}], s{swave_off} offen
    s_mov_b64 exec, -1""")


def gen_bucket(a, cfg):
    HIST, BASE, TBL = 0, 1024, 2048
    RECS = TBL
    HALF = E // 2
    NDMA = -(-HALF * 2 // 1024)
    S_JI, S_KJ, S_TH, S_WS, S_D = 16, 20, 24, 28, 36
    S_W = 15
    ws_size = WS_STAMP + 0x100000 if cfg["stamps"] else WS_END
    st = cfg["k1_store"]
    a.raw(".p2align 8\n.globl bucket_kernel\n.type bucket_kernel,@function\nbucket_kernel:")
    a(f"""
    s_cmp_ge_u32 s2, {NCHUNK}
    s_cbranch_scc1 K1_end
    s_load_dwordx4 s[4:7], s[0:1], 16
    s_load_dwordx2 s[8:9], s[0:1], 32
    s_load_dwordx2 s[10:11], s[0:1], 88
    s_load_dwordx2 s[44:45], s[0:1], 8
    v_readfirstlane_b32 s{S_W}, v0
    v_lshlrev_b32 v1, 4, v0
    v_lshlrev_b32 v2, 3, v0
    v_lshlrev_b32 v3, 2, v0
    s_lshr_b32 s{S_W}, s{S_W}, 6
    s_mul_i32 s12, s2, {CHUNK*4}
    s_add_u32 s13, s12, 16384
    s_add_u32 s14, s12, 32768
    s_mul_i32 s32, s2, {CHUNK*2}
    s_add_u32 s33, s32, 8192
    s_add_u32 s34, s32, 16384
    v_mov_b32 v34, 0
    v_and_b32 v35, 0x3fc, v3
    v_mov_b32 v36, 1
    v_and_b32 v37, 0x3f0, v1
    s_mov_b32 s48, 0xfe
    ds_write_b32 v35, v34 offset:{HIST}
    s_waitcnt lgkmcnt(0)""")
    srd(a, S_JI, 8, 9, T * 4)
    srd(a, S_KJ, 6, 7, T * 4)
    srd(a, S_TH, 4, 5, T * 2)
    srd(a, S_WS, 10, 11, ws_size)
    srd(a, S_D, 44, 45, E * 2)
    if cfg["stamps"]:
        a(f"""
        s_lshl_b32 s41, s2, 4
        s_add_u32 s40, s{S_W}, s41
        s_lshl_b32 s40, s40, 5
        s_add_u32 s40, s40, {WS_STAMP}""")
    stamp(a, cfg, S_WS, 0, 90, 42, 40)
    ld = cfg["k1_load"]
    JI = [4 + i for i in range(10)]
    KJ = [16 + i for i in range(10)]
    BK = [60 + i for i in range(10)]
    RK = [70 + i for i in range(10)]
    R0 = [40 + 2 * i for i in range(10)]
    DV = [80 + i for i in range(10)]

    def stage(piece):
        a(f"""
        s_lshr_b32 s35, s2, 3
        s_mul_i32 s35, s35, {cfg["rot"]}
        s_add_u32 s35, s35, s{S_W}
        s_lshl_b32 s35, s35, 10""")
        for i in range(10):
            a(f"""
            s_cmp_ge_u32 s35, {160*1024}
            s_cselect_b32 s46, {160*1024}, 0
            s_sub_u32 s35, s35, s46
            s_min_u32 s46, s35, {(NDMA - 1) * 1024}
            s_add_u32 m0, s46, {TBL}
            s_add_u32 s46, s46, {piece * HALF * 2}
            buffer_load_dwordx4 v37, s[{S_D}:{S_D+3}], s46 offen lds""")
            if i < 9:
                a("s_add_u32 s35, s35, 16384")

    a(f"""
    buffer_load_dwordx4 v[16:19], v1, s[{S_KJ}:{S_KJ+3}], s12 offen {ld}
    buffer_load_dwordx4 v[20:23], v1, s[{S_KJ}:{S_KJ+3}], s13 offen {ld}
    buffer_load_dwordx2 v[24:25], v2, s[{S_KJ}:{S_KJ+3}], s14 offen {ld}""")
    stage(0)
    if cfg["k1_order"] & 1:
        a("s_barrier")
    a(f"""
    buffer_load_dwordx4 v[4:7], v1, s[{S_JI}:{S_JI+3}], s12 offen {ld}
    buffer_load_dwordx4 v[8:11], v1, s[{S_JI}:{S_JI+3}], s13 offen {ld}
    buffer_load_dwordx2 v[12:13], v2, s[{S_JI}:{S_JI+3}], s14 offen {ld}
    buffer_load_dwordx2 v[28:29], v2, s[{S_TH}:{S_TH+3}], s32 offen {ld}
    buffer_load_dwordx2 v[30:31], v2, s[{S_TH}:{S_TH+3}], s33 offen {ld}
    buffer_load_dword v32, v3, s[{S_TH}:{S_TH+3}], s34 offen {ld}
    s_mov_b32 s47, {HALF*2}
    s_waitcnt vmcnt(16)""")
    for i in range(10):
        a(f"v_lshlrev_b32 v{R0[i]}, 8, v{KJ[i]}\nv_lshlrev_b32 v{KJ[i]}, 1, v{KJ[i]}")
    a("s_waitcnt vmcnt(6)\ns_barrier")
    for i in range(10):
        a(f"v_cmpx_gt_u32 vcc, s47, v{KJ[i]}\nds_read_u16 v{DV[i]}, v{KJ[i]} offset:{TBL}\ns_mov_b64 exec, -1")
    a("s_waitcnt lgkmcnt(0)\ns_barrier")
    stamp(a, cfg, S_WS, 4, 90, 42, 40)
    late = cfg["k1_order"] & 2
    if not late:
        stage(1)
    ns = 1 if cfg["stamps"] else 0
    for lo, hi, n in ((0, 4, 15), (4, 8, 14), (8, 10, 13)):
        a(f"s_waitcnt vmcnt({n + ns - (10 if late else 0)})")
        for i in range(lo, hi):
            a(f"v_lshlrev_b32_sdwa v{BK[i]}, 2, v{JI[i]} dst_sel:DWORD dst_unused:UNUSED_PAD src0_sel:DWORD src1_sel:BYTE_0")
        for i in range(lo, hi):
            a(f"ds_add_rtn_u32 v{RK[i]}, v{BK[i]}, v36 offset:{HIST}")
    if late:
        stage(1)
    for i in range(10):
        a(f"""
        v_lshrrev_b32 v38, 10, v{JI[i]}
        v_bfe_u32 v39, v{JI[i]}, 8, 3
        v_and_or_b32 v38, v38, s48, v{R0[i]}
        v_lshl_or_b32 v{R0[i]}, v39, 26, v38""")
    for lo, hi, n in ((0, 4, 12), (4, 8, 11), (8, 10, 10)):
        a(f"s_waitcnt vmcnt({n + ns})")
        for i in range(lo, hi):
            th = 28 + i // 2
            if i % 2 == 0:
                a(f"v_and_b32 v{R0[i]+1}, 0xffff, v{th}")
            else:
                a(f"v_lshrrev_b32 v{R0[i]+1}, 16, v{th}")
    a("s_waitcnt lgkmcnt(0)\ns_barrier")
    stamp(a, cfg, S_WS, 1, 90, 42, 40)
    a(f"""
    v_and_b32 v38, 63, v0
    v_lshlrev_b32 v38, 4, v38
    ds_read_b128 v[4:7], v38 offset:{HIST}
    s_waitcnt lgkmcnt(0)""")
    a(f"""
    v_add_u32 v8, v4, v5
    v_add3_u32 v8, v8, v6, v7
    v_mov_b32 v9, v8""")
    wave_scan(a, 9)
    a(f"""
    v_sub_u32 v12, v9, v8
    v_add_u32 v13, v12, v4
    v_add_u32 v14, v13, v5
    v_add_u32 v15, v14, v6
    ds_write_b128 v38, v[12:15] offset:{BASE}""")
    for i in range(10):
        a(f"ds_read_b32 v{BK[i]}, v{BK[i]} offset:{BASE}")
    a("""
    v_lshl_or_b32 v92, v4, 16, v12
    v_lshl_or_b32 v93, v5, 16, v13
    v_lshl_or_b32 v94, v6, 16, v14
    v_lshl_or_b32 v95, v7, 16, v15
    s_waitcnt lgkmcnt(0)""")
    for i in range(10):
        a(f"v_subrev_u32 v{JI[i]}, s47, v{KJ[i]}")
        a(f"v_add_lshl_u32 v{BK[i]}, v{BK[i]}, v{RK[i]}, 3")
    a("s_waitcnt vmcnt(0)\ns_barrier")
    stamp(a, cfg, S_WS, 5, 90, 42, 40)
    for i in range(10):
        a(f"v_cmpx_le_u32 vcc, s47, v{KJ[i]}\nds_read_u16 v{DV[i]}, v{JI[i]} offset:{TBL}\ns_mov_b64 exec, -1")
    a(f"""
    s_cmp_lg_u32 s{S_W}, 0
    s_cbranch_scc1 K1_notab
    s_lshl_b32 s35, s2, 10
    s_add_u32 s35, s35, {WS_TAB}
    buffer_store_dwordx4 v[92:95], v38, s[{S_WS}:{S_WS+3}], s35 offen {st}
    K1_notab:
    s_waitcnt lgkmcnt(0)
    s_barrier""")
    stamp(a, cfg, S_WS, 6, 90, 42, 40)
    for i in range(10):
        a(f"v_lshl_or_b32 v{R0[i]+1}, v{DV[i]}, 16, v{R0[i]+1}")
        a(f"ds_write_b64 v{BK[i]}, v[{R0[i]}:{R0[i]+1}] offset:{RECS}")
    a("s_waitcnt lgkmcnt(0)\ns_barrier")
    stamp(a, cfg, S_WS, 2, 90, 42, 40)
    a(f"s_mul_i32 s12, s2, {CHUNK*8}")
    a("v_add_u32 v2, 0x10000, v1")
    for k in range(5):
        if k < 4:
            a(f"ds_read_b128 v[{4+4*k}:{7+4*k}], v1 offset:{RECS + k * 16384}")
        else:
            a(f"ds_read_b128 v[{4+4*k}:{7+4*k}], v2 offset:{RECS}")
    for k in range(5):
        a(f"s_waitcnt lgkmcnt({4-k})")
        a(f"buffer_store_dwordx4 v[{4+4*k}:{7+4*k}], v1, s[{S_WS}:{S_WS+3}], s12 offen {st}")
        if k < 4:
            a("s_add_u32 s12, s12, 16384")
    if cfg["stamps"]:
        a("s_waitcnt vmcnt(0)")
        stamp(a, cfg, S_WS, 3, 90, 42, 40)
    a("K1_end:\ns_endpgm")
    return TBL + NDMA * 1024


def gen_sweep(a, cfg):
    NS = cfg["ns"]
    NSL = NS + 2
    PIECE = 63
    D = cfg["dpl"]
    SHIFT = 21
    NBLK = -(-E // 8192)
    CAPB = cfg["capb"]
    KMASK = 255 << 2
    CUR, BASE, FLAG, ZERO, RING, RINGO, RECS = 0, 1024, 4096, 4352, 5632, 13824, 16384
    CAP = max(8 * (NS * PIECE + 79), 8 * NBLK * CAPB)
    lds = RECS + CAP * 8 + 512
    assert lds <= 163840 and 2 <= D <= 7

    ACC = 98
    V_LANE, V_TOFF, V_BW, V_TLEN = 0, 1, 2, 6
    V_L8, V_ONE, P = 7, 8, 10
    TK = P + 2 * NSL
    G = 6
    V_SL, V_SO, V_PF = TK + 2 * G, TK + 2 * G + 1, TK + 2 * G + 2
    V_RADDR, V_AADDR, V_RINGW = 7, 8, 9
    V_RAW, V_F, V_H, V_A, V_AU, V_O, V_RN, V_S, V_T = 10, 42, 58, 66, 70, 78, 82, 84, 86
    V_IC, V_IN, V_RADV, V_MHI, V_L16, V_RINGO, V_OADDR, V_OFF = 90, 91, 92, 93, 94, 95, 96, 97
    S_H, S_OUT, S_WS, S_D = 4, 8, 12, 76
    S_B, S_WAVE, S_SEG, S_REM, S_OFF, S_MORE, S_N, S_START = 16, 17, 18, 19, 20, 21, 22, 23
    S_ELL, S_CHI, S_CLO, S_MASK, S_MODE, S_NMAX, S_T = 24, 27, 28, 29, 30, 31, 32
    S_FREQ, S_PF = 34, 35
    S_BIN, S_POS, S_NEXT, S_D8 = 39, 70, 71, 72
    S_I = 36
    S_R = 40
    S_STAMP = 96
    ws_size = WS_STAMP + 0x100000 if cfg["stamps"] else WS_END

    a.raw(".p2align 8\n.globl sweep_kernel\n.type sweep_kernel,@function\nsweep_kernel:")
    a(f"""
    s_cmp_ge_u32 s2, 256
    s_cbranch_scc1 K3_end
    s_load_dwordx2 s[86:87], s[0:1], 88
    s_load_dwordx4 s[80:83], s[0:1], 0
    s_load_dwordx2 s[84:85], s[0:1], 40
    s_load_dwordx4 s[88:91], s[0:1], 48
    s_load_dwordx4 s[92:95], s[0:1], 64
    v_readfirstlane_b32 s{S_WAVE}, v0
    s_and_b32 s{S_B}, s2, 7
    s_lshl_b32 s{S_B}, s{S_B}, 5
    s_lshr_b32 s{S_T}, s2, 3
    s_add_u32 s{S_B}, s{S_B}, s{S_T}
    s_lshr_b32 s{S_WAVE}, s{S_WAVE}, 6
    v_lshlrev_b32 v{P}, 5, v0
    v_and_b32 v{V_LANE}, 63, v0
    v_mov_b32 v{P+2}, 0
    v_mov_b32 v{P+3}, 0
    v_mov_b32 v{P+4}, 0
    v_mov_b32 v{P+5}, 0
    ds_write_b128 v{P}, v[{P+2}:{P+5}] offset:{FLAG}
    ds_write_b128 v{P}, v[{P+2}:{P+5}] offset:{FLAG+16}
    s_lshl_b32 s{S_T}, s{S_WAVE}, 5
    v_add_u32 v{V_TOFF}, s{S_T}, v{V_LANE}
    v_lshlrev_b32 v{P+1}, 10, v{V_TOFF}
    v_and_b32 v{P+6}, 15, v{V_LANE}
    v_lshrrev_b32 v{P+7}, 4, v{V_LANE}
    v_lshl_add_u32 v{P+6}, v{P+6}, 2, v{P+7}
    v_lshlrev_b32 v{P+6}, 2, v{P+6}
    s_lshl_b32 s{S_T}, s{S_B}, 2
    s_add_u32 s{S_T}, s{S_T}, {WS_TAB}
    s_waitcnt lgkmcnt(0)""")
    srd(a, S_WS, 86, 87, ws_size)
    a(f"""
    v_mov_b32 v{V_TLEN}, 0
    s_bfm_b64 exec, 32, 0
    buffer_load_dword v{V_TLEN}, v{P+1}, s[{S_WS}:{S_WS+3}], s{S_T} offen
    s_mov_b64 exec, -1""")
    a(f"s_load_dwordx2 s[{S_ELL}:{S_ELL+1}], s[88:89], 0\ns_load_dword s{S_FREQ}, s[84:85], 0")
    SA, SB = P + 2 * NS, P + 2 * NS + 2
    srd(a, S_H, 90, 91, 768)
    srd(a, S_OUT, 92, 93, 256)
    srd(a, S_D, 82, 83, E * 2)
    a(f"""
    buffer_load_dword v{P+8}, v{P+6}, s[{S_H}:{S_H+3}], 0 offen
    buffer_load_dword v{P+9}, v{P+6}, s[{S_H}:{S_H+3}], 0 offen offset:256
    buffer_load_dword v{P+10}, v{P+6}, s[{S_H}:{S_H+3}], 0 offen offset:512
    buffer_load_dword v{P+11}, v{P+6}, s[{S_OUT}:{S_OUT+3}], 0 offen
""")
    srd(a, S_H, 80, 81, 0 if cfg["dbg"] & 1 else H_BYTES)
    srd(a, S_OUT, 94, 95, H_BYTES)

    if cfg["stamps"]:
        a(f"""
        s_lshl_b32 s{S_STAMP}, s2, 3
        s_add_u32 s{S_STAMP}, s{S_STAMP}, s{S_WAVE}
        s_lshl_b32 s{S_STAMP}, s{S_STAMP}, 5
        s_add_u32 s{S_STAMP}, s{S_STAMP}, {WS_STAMP + 0x40000}""")
    a(f"""
    s_mov_b32 s{S_CHI}, {C_HI:#x}
    s_mov_b32 s{S_CLO}, {C_LO:#x}
    s_mov_b32 s{S_MASK}, 0x03ffff00
    s_mov_b32 s{S_MODE}, 0xc000
    s_mov_b32 s{S_T}, {CHUNK*8}
    v_cmp_gt_u32 vcc, {NCHUNK}, v{V_TOFF}
    v_mul_lo_u32 v{V_TOFF}, v{V_TOFF}, s{S_T}
    s_mov_b32 s{S_SEG}, 0
    s_mov_b32 s{S_REM}, 0
    s_mov_b32 s{S_OFF}, 0""")
    a(f"""
    s_lshl_b32 s{S_T}, s{S_WAVE}, 8
    s_add_u32 s{S_T}, s{S_T}, s{S_B}
    s_lshl_b32 s{S_T}, s{S_T}, 8
    s_lshl_b32 s{S_T+1}, s{S_WAVE}, 26
    s_or_b32 s{S_T}, s{S_T}, s{S_T+1}
    s_bitset1_b32 s{S_T}, 31
    s_mov_b32 s{S_T+1}, {(1 << 19) + 2}
    v_mul_lo_u32 v{SA}, v{V_LANE}, s{S_T+1}
    v_add_u32 v{SA}, s{S_T}, v{SA}
    v_add_u32 v{SB}, {40 * ((1 << 19) + 2)}, v{SA}
    s_mov_b32 s{S_R+NS}, 40
    s_cmp_eq_u32 s{S_WAVE}, 0
    s_cselect_b32 s{S_R+NS+1}, 39, 38""")
    for i in range(158):
        a(f"v_mov_b32 v{ACC+i}, 0")
    a(f"""
    s_waitcnt lgkmcnt(0)
    s_and_b32 s{S_ELL+2}, s{S_ELL}, 0xffff0000
    s_lshl_b32 s{S_ELL}, s{S_ELL}, 16
    s_lshl_b32 s{S_T}, s{S_ELL+1}, 16
    s_mov_b32 s{S_ELL+1}, s{S_ELL+2}
    s_mov_b32 s{S_ELL+2}, s{S_T}
    s_mov_b32 s{S_T}, 0x05040100
    s_mov_b32 s{S_T+1}, 0x07060302
    s_lshl_b32 s{S_FREQ}, s{S_FREQ}, 16
    s_waitcnt vmcnt(0)
    v_perm_b32 v{V_BW}, v{P+9}, v{P+8}, s{S_T}
    v_perm_b32 v{V_BW+1}, v{P+11}, v{P+10}, s{S_T}
    v_perm_b32 v{V_BW+2}, v{P+9}, v{P+8}, s{S_T+1}
    v_perm_b32 v{V_BW+3}, v{P+11}, v{P+10}, s{S_T+1}
    v_cndmask_b32 v{V_TLEN}, 0, v{V_TLEN}, vcc
    v_and_b32 v{P+1}, 0xffff, v{V_TLEN}
    v_lshl_add_u32 v{V_TOFF}, v{P+1}, 3, v{V_TOFF}
    v_lshrrev_b32 v{V_TLEN}, 16, v{V_TLEN}""")
    stamp(a, cfg, S_WS, 0, P, 98, S_STAMP)

    a(f"""
    K3_round:
    v_lshlrev_b32 v{V_L8}, 3, v{V_LANE}
    v_mov_b32 v{V_ONE}, 1""")
    rl = cfg["rec_load"]

    a(f"""
    v_mov_b32 v{V_SL}, v{V_TLEN}
    v_mov_b32 v{V_SO}, v{V_TOFF}
    v_cmp_lt_u32 vcc, {PIECE}, v{V_TLEN}
    s_or_b32 s{S_T}, vcc_lo, s{S_SEG}
    s_cbranch_scc1 K3_general
    s_mov_b32 s{S_SEG}, 32
    s_branch K3_listed
    K3_general:
    s_mov_b32 s{S_I}, 0
    K3_slot:
    s_cmp_lg_u32 s{S_REM}, 0
    s_cbranch_scc1 K3_have
    K3_adv:
    s_cmp_ge_u32 s{S_SEG}, 32
    s_cbranch_scc1 K3_have
    v_readlane_b32 s{S_REM}, v{V_TLEN}, s{S_SEG}
    v_readlane_b32 s{S_OFF}, v{V_TOFF}, s{S_SEG}
    s_add_u32 s{S_SEG}, s{S_SEG}, 1
    s_cmp_eq_u32 s{S_REM}, 0
    s_cbranch_scc1 K3_adv
    K3_have:
    s_min_u32 s{S_T}, s{S_REM}, {PIECE}
    s_mov_b32 m0, s{S_I}
    s_mov_b32 s{S_T+1}, s{S_OFF}
    v_writelane_b32 v{V_SL}, s{S_T}, m0
    v_writelane_b32 v{V_SO}, s{S_T+1}, m0
    s_sub_u32 s{S_REM}, s{S_REM}, s{S_T}
    s_add_u32 s{S_OFF}, s{S_OFF}, {PIECE*8}
    s_add_u32 s{S_I}, s{S_I}, 1
    s_cmp_lt_u32 s{S_I}, {NS}
    s_cbranch_scc1 K3_slot
    K3_listed:""")

    order = list(range(NS)) + [NS, NS + 1]
    groups = [order[i:i + G] for i in range(0, NSL, G)]
    vm = []

    def loads(gi):
        ks = [k for k in groups[gi] if k < NS]
        for n0 in range(0, len(ks), 3):
            for n, k in enumerate(ks[n0:n0 + 3]):
                a(f"v_readlane_b32 s{S_I+n}, v{V_SO}, {k}")
            for n, k in enumerate(ks[n0:n0 + 3]):
                a(f"v_readlane_b32 s{S_R+k}, v{V_SL}, {k}")
            for n, k in enumerate(ks[n0:n0 + 3]):
                if cfg["mask_rec"]:
                    a(f"s_max_u32 s{S_T+1}, s{S_R+k}, 1\ns_bfm_b64 exec, s{S_T+1}, 0")
                a(f"buffer_load_dwordx2 v[{P+2*k}:{P+2*k+1}], v{V_L8}, s[{S_WS}:{S_WS+3}], s{S_I+n} offen {rl}")
                vm.append(k)
        if NS in groups[gi]:
            a(f"""
            s_mov_b64 exec, -1
            s_lshl_b32 s{S_T}, s{S_WAVE}, 8
            s_add_u32 s{S_T}, s{S_T}, s{S_B}
            s_lshl_b32 s{S_T}, s{S_T}, 1
            s_add_u32 s{S_T+1}, s{S_T}, {40 * 4096}
            v_lshlrev_b32 v9, 12, v{V_LANE}
            s_bfm_b64 exec, 40, 0
            buffer_load_ushort v{SA+1}, v9, s[{S_D}:{S_D+3}], s{S_T} offen
            buffer_load_ushort v{SB+1}, v9, s[{S_D}:{S_D+3}], s{S_T+1} offen""")
            vm.extend([NS, NS + 1])
        a("s_mov_b64 exec, -1")

    AH = cfg["ahead"]
    for gi in range(AH):
        loads(gi)

    def bin_start(dst, tmp_):
        a(f"""
        s_mul_i32 s{S_T}, s{S_WAVE}, {NBLK * CAPB}
        v_min_u32 v{tmp_}, {NBLK}, v{V_LANE}
        v_mul_u32_u24 v{tmp_}, {CAPB}, v{tmp_}
        v_add_u32 v{dst}, s{S_T}, v{tmp_}""")

    bin_start(TK + 1, TK + 1)
    a(f"""
    s_lshl_b32 s{S_T}, s{S_WAVE}, 7
    v_lshl_add_u32 v{TK}, v{V_LANE}, 2, s{S_T}
    s_bfm_b64 exec, 32, 0
    ds_write_b32 v{TK}, v{TK+1} offset:{CUR}
    s_mov_b64 exec, -1
    v_cmp_le_u32 vcc, s{S_SEG}, v{V_LANE}
    v_cmp_lt_u32 s[{S_T}:{S_T+1}], 0, v{V_TLEN}
    s_and_b32 s{S_T}, s{S_T}, vcc_lo
    s_or_b32 s{S_T}, s{S_T}, s{S_REM}
    s_waitcnt lgkmcnt(0)
    s_barrier
    s_cmp_eq_u32 s{S_T}, 0
    s_cbranch_scc1 K3_nomore
    v_mov_b32 v{V_PF}, {FLAG}
    ds_write_b32 v{V_PF}, v{V_ONE}
    K3_nomore:""")

    def tmp(gi, j):
        return TK + (gi % 2) * G + j

    def place(cursors, first):
        def keys(gi):
            for j, k in enumerate(groups[gi]):
                if first and k < NS:
                    a(f"s_waitcnt vmcnt({len(vm) - 1 - vm.index(k)})")
                a(f"v_lshrrev_b32 v{tmp(gi, j)}, {SHIFT-2}, v{P+2*k}\nv_and_b32 v{tmp(gi, j)}, {KMASK}, v{tmp(gi, j)}")

        def take(gi):
            for j, k in enumerate(groups[gi]):
                a(f"s_bfm_b64 exec, s{S_R+k}, 0\nds_add_rtn_u32 v{tmp(gi, j)}, v{tmp(gi, j)}, v{V_ONE} offset:{cursors}")
            a("s_mov_b64 exec, -1")

        def move(gi):
            for j, k in enumerate(groups[gi]):
                a(f"v_lshlrev_b32 v{tmp(gi, j)}, 3, v{tmp(gi, j)}")
            if first and NS in groups[gi]:
                a(f"s_waitcnt vmcnt(0)\nv_lshlrev_b32 v{SA+1}, 16, v{SA+1}\nv_lshlrev_b32 v{SB+1}, 16, v{SB+1}")
            for j, k in enumerate(groups[gi]):
                a(f"s_bfm_b64 exec, s{S_R+k}, 0\nds_write_b64 v{tmp(gi, j)}, v[{P+2*k}:{P+2*k+1}] offset:{RECS}")
            a("s_mov_b64 exec, -1")

        for gi in range(len(groups)):
            if first and gi + AH < len(groups):
                loads(gi + AH)
            keys(gi)
            if gi:
                a("s_waitcnt lgkmcnt(0)")
            take(gi)
            if gi:
                move(gi - 1)
        a("s_waitcnt lgkmcnt(0)")
        move(len(groups) - 1)
        a("s_waitcnt lgkmcnt(0)\ns_barrier")

    place(CUR, True)
    stamp(a, cfg, S_WS, 1, TK, 98, S_STAMP)

    C, X, Y, AD, ST, OWN = TK, TK + 4, TK + 5, TK + 6, TK + 7, TK + 8
    a(f"""
    v_lshlrev_b32 v{AD}, 4, v{V_LANE}
    v_mov_b32 v{X}, {FLAG}
    s_lshl_b32 s{S_T}, s{S_WAVE}, 7
    v_lshl_add_u32 v{OWN}, v{V_LANE}, 2, s{S_T}
    ds_read_b128 v[{C}:{C+3}], v{AD} offset:{CUR}
    ds_read_b32 v{X}, v{X}
    ds_read_b32 v{OWN}, v{OWN} offset:{CUR}
    v_lshrrev_b32 v{Y}, 3, v{V_LANE}
    v_mul_u32_u24 v{Y}, {NBLK}, v{Y}
    v_and_b32 v{ST}, 7, v{V_LANE}
    v_lshlrev_b32 v{ST}, 2, v{ST}
    v_min_u32 v{ST}, {NBLK}, v{ST}
    v_add_u32 v{ST}, v{ST}, v{Y}
    v_mul_u32_u24 v{ST}, {CAPB}, v{ST}
    v_and_b32 v{Y}, 7, v{V_LANE}
    v_cmp_gt_u32 vcc, {NBLK // 4}, v{Y}
    v_mov_b32 v{Y}, {CAPB}
    s_waitcnt lgkmcnt(0)
    v_cndmask_b32 v{Y}, 0, v{Y}, vcc
    v_readfirstlane_b32 s{S_MORE}, v{X}""")
    assert NBLK % 4 == 0
    for q in range(4):
        a(f"v_sub_u32 v{C+q}, v{C+q}, v{ST}")
        if q < 3:
            a(f"v_add_u32 v{ST}, v{ST}, v{Y}")
    a(f"""
    v_max_u32 v{X}, v{C}, v{C+1}
    v_max3_u32 v{X}, v{X}, v{C+2}, v{C+3}
    v_cmp_lt_u32 vcc, {CAPB}, v{X}
    s_cmp_eq_u32 s{S_MORE}, 0
    s_cbranch_scc1 K3_keep
    s_barrier
    v_mov_b32 v{X}, {FLAG}
    v_mov_b32 v{Y}, 0
    ds_write_b32 v{X}, v{Y}
    K3_keep:
    s_cbranch_vccz K3_fits""")

    for q in range(1, 4):
        a(f"v_add_u32 v{C+q}, v{C+q}, v{C+q-1}")
    a(f"v_mov_b32 v{X}, v{C+3}")
    wave_scan(a, X)
    a(f"v_sub_u32 v{Y}, v{X}, v{C+3}")
    for q in range(3, 0, -1):
        a(f"v_add_u32 v{C+q}, v{Y}, v{C+q-1}")
    a(f"""
    v_mov_b32 v{C}, v{Y}
    s_lshl_b32 s{S_T}, s{S_WAVE}, 3
    s_add_u32 s{S_T+1}, s{S_T}, 7
    s_bfm_b64 exec, 8, s{S_T}
    ds_write_b128 v{AD}, v[{C}:{C+3}] offset:{BASE}
    s_mov_b64 exec, -1
    v_readlane_b32 s{S_START}, v{Y}, s{S_T}
    v_readlane_b32 s{S_N}, v{X}, s{S_T+1}
    s_sub_u32 s{S_N}, s{S_N}, s{S_START}
    s_waitcnt lgkmcnt(0)
    s_barrier""")
    place(BASE, False)
    a(f"""
    s_lshl_b32 s{S_R}, s{S_START}, 16
    s_or_b32 s{S_R}, s{S_R}, 0xffff
    s_branch K3_placed
    K3_fits:""")
    bin_start(ST, ST)
    a(f"""
    v_cmp_gt_u32 vcc, {NBLK}, v{V_LANE}
    v_sub_u32 v{C}, v{OWN}, v{ST}
    v_cndmask_b32 v{X}, 0, v{C}, vcc""")
    wave_scan(a, X)
    a(f"""
    v_sub_u32 v{Y}, v{OWN}, v{X}
    v_lshl_or_b32 v{Y}, v{Y}, 16, v{X}
    v_readlane_b32 s{S_N}, v{X}, {NBLK-1}""")
    for b in range(NBLK):
        a(f"v_readlane_b32 s{S_R+b}, v{Y}, {b}")
    a(f"""
    s_or_b32 s{S_R+NBLK-1}, s{S_R+NBLK-1}, 0xffff
    K3_placed:""")

    T0, T1, T2, T3 = V_T, V_T + 1, V_T + 2, V_T + 3
    U0, U1 = V_S, V_S + 1
    a(f"""
    v_lshlrev_b32 v{V_RADDR}, 3, v{V_LANE}
    v_mov_b32 v{V_MHI}, 0xffff0000
    s_lshl_b32 s{S_T}, s{S_WAVE}, 10
    s_add_u32 s{S_T}, s{S_T}, {RING}
    v_lshl_add_u32 v{V_RINGW}, v{V_LANE}, 4, s{S_T}
    v_bfe_u32 v{T0}, v{V_LANE}, 3, 2
    v_bfe_u32 v{T1}, v{V_LANE}, 1, 1
    v_lshl_add_u32 v{T0}, v{T0}, 1, v{T1}
    v_and_b32 v{T1}, 1, v{V_LANE}
    v_lshlrev_b32 v{T0}, 4, v{T0}
    v_lshlrev_b32 v{T2}, 3, v{T1}
    v_sub_u32 v{T0}, v{T0}, v{T2}
    v_add_u32 v{T0}, s{S_T}, v{T0}
    v_bfe_u32 v{T2}, v{V_LANE}, 2, 1
    v_lshrrev_b32 v{T3}, 5, v{V_LANE}
    v_cmp_eq_u32 vcc, v{T2}, v{T3}
    v_mov_b32 v{T2}, {ZERO}
    v_and_b32 v{V_L16}, 15, v{V_LANE}
    v_cndmask_b32 v{V_AADDR}, v{T2}, v{T0}, vcc
    v_lshlrev_b32 v{V_L16}, 4, v{V_L16}
    s_lshl_b32 s{S_T}, s{S_WAVE}, 8
    s_add_u32 s{S_T}, s{S_T}, {RINGO}
    v_lshrrev_b32 v{T3}, 4, v{V_LANE}
    v_lshl_add_u32 v{V_OADDR}, v{T3}, 3, s{S_T}
    v_lshrrev_b32 v{T0}, 3, v{V_LANE}
    v_lshlrev_b32 v{T0}, 5, v{T0}
    v_and_b32 v{T2}, 3, v{V_LANE}
    v_lshl_add_u32 v{T0}, v{T2}, 3, v{T0}
    v_bfe_u32 v{T2}, v{V_LANE}, 2, 1
    v_lshl_add_u32 v{T0}, v{T2}, 2, v{T0}
    v_add_u32 v{V_RINGO}, s{S_T}, v{T0}
    v_mov_b32 v{T0}, 0x3f80
    v_cmp_eq_u32 vcc, 1, v{T1}
    v_bfe_u32 v{T2}, v{V_LANE}, 1, 1
    v_bfe_u32 v{U0}, v{V_LANE}, 2, 2
    v_cndmask_b32 v{T0}, v{T0}, 1.0, vcc
    v_sub_u32 v{T3}, v{T3}, v{T2}
    v_lshl_add_u32 v{T3}, v{T3}, 2, v{U0}""")
    for aa in range(2):
        for q in range(4):
            a(f"v_cmp_eq_u32 vcc, {8*aa+q}, v{T3}\nv_cndmask_b32 v{V_AU+4*aa+q}, 0, v{T0}, vcc")
    stamp(a, cfg, S_WS, 2, V_RAW, 98, S_STAMP)
    a(f"""
    s_cmp_eq_u32 s{S_N}, 0
    s_cbranch_scc1 K3_swept
    s_mov_b32 s{S_BIN}, 0
    s_mov_b32 s{S_POS}, 0
    s_and_b32 s{S_NEXT}, s{S_R}, 0xffff
    s_lshr_b32 s{S_D8}, s{S_R}, 16
    s_lshl_b32 s{S_D8}, s{S_D8}, 3""")

    R, TH = V_RN, V_RN + 1
    stage1 = [
        f"v_cmp_gt_i32 vcc, s{S_N}, v{V_LANE}",
        f"v_mov_b32 v{T0}, s{S_MASK}",
        f"v_mov_b32 v{T1}, 1.0",
        f"v_cndmask_b32 v{R}, v{T0}, v{R}, vcc",
        f"v_cndmask_b32 v{TH}, v{T1}, v{TH}, vcc",
        f"v_and_b32 v{T0}, v{V_MHI}, v{TH}",
        f"v_lshlrev_b32 v{TH}, 16, v{TH}",
        f"v_rcp_f32 v{V_RADV}, v{T0}",
        f"v_mul_f32 v{T0}, s{S_FREQ}, v{T0}",
        f"v_cvt_pk_bf16_f32 v{T0}, v{T0}, v{T0}",
        f"v_and_b32 v{T0}, v{V_MHI}, v{T0}",
        f"v_mul_f32 v{T1}, s{S_CHI}, v{T0}",
        f"v_rndne_f32 v{T2}, v{T1}",
        f"v_sub_f32 v{T1}, v{T1}, v{T2}",
        f"v_fma_f32 v{T0}, v{T0}, s{S_CLO}, v{T1}",
        f"v_sin_f32 v{T0}, v{T0}",
        f"v_or_b32_sdwa v{V_IN}, v{R}, s{S_MODE} dst_sel:DWORD dst_unused:UNUSED_PAD src0_sel:BYTE_0 src1_sel:DWORD",
        f"v_cvt_pk_bf16_f32 v{T0}, v{T0}, v{T0}",
        f"v_and_b32 v{T0}, v{V_MHI}, v{T0}",
        f"v_mul_f32 v{V_RADV}, v{T0}, v{V_RADV}",
        f"v_cvt_pk_bf16_f32 v{V_RADV}, v{V_RADV}, v{V_RADV}",
        f"v_and_b32 v{V_RADV}, v{V_MHI}, v{V_RADV}",
    ]
    stage2 = [
        f"v_mul_f32 v{T0}, s{S_ELL}, v{TH}",
        f"v_mul_f32 v{T1}, s{S_ELL+1}, v{TH}",
        f"v_mov_b32_dpp v{T3}, v{V_IN} quad_perm:[1,1,3,3] row_mask:0xf bank_mask:0xf",
        f"v_mul_f32 v{T2}, s{S_ELL+2}, v{TH}",
        f"v_lshl_or_b32 v{V_IN}, v{T3}, 16, v{V_IN}",
        f"v_cvt_pk_bf16_f32 v{T0}, v{T0}, v{T1}",
        f"v_cvt_pk_bf16_f32 v{T2}, v{T2}, v{T2}",
        f"v_and_b32 v{T1}, v{V_MHI}, v{T0}",
        f"v_lshlrev_b32 v{T0}, 16, v{T0}",
        f"v_and_b32 v{T2}, v{V_MHI}, v{T2}",
        f"v_mul_f32 v{U0}, s{S_CHI}, v{T0}",
        f"v_mul_f32 v{U1}, s{S_CHI}, v{T1}",
        f"v_mul_f32 v{T3}, s{S_CHI}, v{T2}",
        f"v_fract_f32 v{U0}, v{U0}",
        f"v_fract_f32 v{U1}, v{U1}",
        f"v_fract_f32 v{T3}, v{T3}",
        f"v_fma_f32 v{T0}, v{T0}, s{S_CLO}, v{U0}",
        f"v_fma_f32 v{T1}, v{T1}, s{S_CLO}, v{U1}",
        f"v_fma_f32 v{T2}, v{T2}, s{S_CLO}, v{T3}",
        f"v_cos_f32 v{T0}, v{T0}",
        f"v_cos_f32 v{T1}, v{T1}",
        f"v_cos_f32 v{T2}, v{T2}",
        f"v_cmp_gt_i32 vcc, 0, v{R}",
        f"v_cvt_pk_bf16_f32 v{T0}, v{T0}, v{T1}",
        f"v_cvt_pk_bf16_f32 v{T2}, v{T2}, v{T2}",
        f"v_and_b32 v{T1}, v{V_MHI}, v{T0}",
        f"v_lshlrev_b32 v{T0}, 16, v{T0}",
        f"v_and_b32 v{T2}, v{V_MHI}, v{T2}",
    ]
    if cfg["const_ell"]:
        stage2 = [
            f"v_mul_f32 v{T2}, s{S_ELL+2}, v{TH}",
            f"v_mov_b32_dpp v{T3}, v{V_IN} quad_perm:[1,1,3,3] row_mask:0xf bank_mask:0xf",
            f"v_mul_f32 v{U0}, s{S_CHI}, v{TH}",
            f"v_cvt_pk_bf16_f32 v{T2}, v{T2}, v{T2}",
            f"v_lshl_or_b32 v{V_IN}, v{T3}, 16, v{V_IN}",
            f"v_and_b32 v{T2}, v{V_MHI}, v{T2}",
            f"v_fract_f32 v{U0}, v{U0}",
            f"v_mul_f32 v{T3}, s{S_CHI}, v{T2}",
            f"v_fma_f32 v{T0}, v{TH}, s{S_CLO}, v{U0}",
            f"v_fract_f32 v{T3}, v{T3}",
            f"v_cos_f32 v{T0}, v{T0}",
            f"v_fma_f32 v{T2}, v{T2}, s{S_CLO}, v{T3}",
            f"v_add_f32 v{T1}, v{T0}, v{T0}",
            f"v_cos_f32 v{T2}, v{T2}",
            f"v_fma_f32 v{T1}, v{T1}, v{T0}, -1.0",
            f"v_cmp_gt_i32 vcc, 0, v{R}",
            f"v_cvt_pk_bf16_f32 v{T0}, v{T0}, v{T1}",
            f"v_cvt_pk_bf16_f32 v{T2}, v{T2}, v{T2}",
            f"v_and_b32 v{T1}, v{V_MHI}, v{T0}",
            f"v_lshlrev_b32 v{T0}, 16, v{T0}",
            f"v_and_b32 v{T2}, v{V_MHI}, v{T2}",
        ]
    stage3 = [
        f"v_mul_f32 v{T0}, v{T0}, v{V_RADV}",
        f"v_mul_f32 v{T1}, v{T1}, v{V_RADV}",
        f"v_mul_f32 v{T2}, v{T2}, v{V_RADV}",
        f"v_cvt_pk_bf16_f32 v{U0}, v{T0}, v{T1}",
        f"v_cvt_pk_bf16_f32 v{U1}, v{T2}, 0",
        f"v_cndmask_b32 v{U0}, v{U0}, 0, vcc",
        f"v_cndmask_b32 v{U1}, v{U1}, v{V_RADV}, vcc",
    ]

    def fetch_batch(tag):
        a(f"""
        v_add_u32 v{T2}, s{S_D8}, v{V_RADDR}
        s_add_u32 s{S_T+1}, s{S_POS}, 64
        s_cmp_ge_u32 s{S_NEXT}, s{S_T+1}
        s_cbranch_scc1 K3_same{tag}
        K3_cross{tag}:
        s_add_u32 s{S_BIN}, s{S_BIN}, 1
        s_mov_b32 m0, s{S_BIN}
        s_sub_u32 s{S_T}, s{S_NEXT}, s{S_POS}
        s_movrels_b32 s{S_NEXT}, s{S_R}
        v_cmp_le_u32 vcc, s{S_T}, v{V_LANE}
        s_lshr_b32 s{S_D8}, s{S_NEXT}, 16
        s_lshl_b32 s{S_D8}, s{S_D8}, 3
        s_and_b32 s{S_NEXT}, s{S_NEXT}, 0xffff
        v_add_u32 v{V_OFF}, s{S_D8}, v{V_RADDR}
        v_cndmask_b32 v{T2}, v{T2}, v{V_OFF}, vcc
        s_cmp_lt_u32 s{S_NEXT}, s{S_T+1}
        s_cbranch_scc1 K3_cross{tag}
        K3_same{tag}:
        ds_read_b64 v[{V_RN}:{V_RN+1}], v{T2} offset:{RECS}
        v_add_u32 v{V_RADDR}, 512, v{V_RADDR}
        s_mov_b32 s{S_POS}, s{S_T+1}""")

    def issue(L):
        o = V_O + 2 * ((L // 2) % 2) + L % 2
        raw = V_RAW + 4 * (L % 8)
        a(f"v_add_u32 v{o}, v{o}, v{V_L16}")
        a(f"buffer_load_dwordx4 v[{raw}:{raw+3}], v{o}, s[{S_H}:{S_H+3}], 0 offen {cfg['row_load']}")

    def o_read(j):
        o = V_O + 2 * (j % 2)
        a(f"ds_read_b64 v[{o}:{o+1}], v{V_OADDR} offset:{32 * (j % 8)}")

    def o_write():
        a(f"v_and_b32 v{V_OFF}, s{S_MASK}, v{R}\nds_write_b32 v{V_RINGO}, v{V_OFF}")

    def a_read(g):
        a(f"ds_read2_b64 v[{V_A}:{V_A+3}], v{V_AADDR} offset0:{16*g} offset1:{16*g+1}")

    def read_step(j):
        return (2 * j - D) // 2 * 2 - 2

    PROG = FLAG + 16
    if cfg["prio"]:
        a(f"""
        s_lshl_b32 s{S_T}, s{S_WAVE}, 2
        s_add_u32 s{S_PF}, s{S_T}, {PROG}
        s_xor_b32 s{S_T}, s{S_T}, 16
        s_add_u32 s{S_NMAX}, s{S_T}, {PROG}""")
    fetch_batch("0")
    a("s_waitcnt lgkmcnt(0)")
    for s in stage1[:5]:
        a(s)
    o_write()
    for j in range(8):
        if read_step(j) >= 0:
            break
        o_read(j)
        nxt = [L for L in (2 * j, 2 * j + 1) if L < D]
        if nxt:
            a("s_waitcnt lgkmcnt(0)")
            for L in nxt:
                issue(L)
    for s in stage1[5:] + stage2 + stage3:
        a(s)
    a(f"ds_write_b64 v{V_RINGW}, v[{V_S}:{V_S+1}]\nv_mov_b32 v{V_IC}, v{V_IN}")
    a_read(0)

    body = Asm()
    a_main = a
    fill = {i: [] for i in range(16)}
    fill[2] = stage1[:5]
    rest = stage1[5:] + stage2 + stage3
    steps = list(range(3, 14))
    for n, s in enumerate(rest):
        fill[steps[n * len(steps) // len(rest)]].append(s)
    a = body
    for i in range(16):
        if i and i % cfg["exit_every"] == 0:
            a(f"s_cmp_le_i32 s{S_N}, {4*i-64}\ns_cbranch_scc1 K3_drain")
        if i % 2 == 0:
            a(f"s_waitcnt lgkmcnt(0)\nv_mfma_f32_32x32x16_bf16 v[{V_F}:{V_F+15}], v[{V_A}:{V_A+3}], v[{V_BW}:{V_BW+3}], 0")
            if i == 0:
                a(f"s_sub_u32 s{S_N}, s{S_N}, 64")
                fetch_batch("1")
            if cfg["prio"] and i == 0:
                a(f"""
                v_mov_b32 v{T0}, s{S_PF}
                v_mov_b32 v{T1}, s{S_N}
                v_mov_b32 v{T3}, s{S_NMAX}
                ds_write_b32 v{T0}, v{T1}
                ds_read_b32 v{T3}, v{T3}""")
            if cfg["prio"] and i == 2:
                a(f"""
                v_readfirstlane_b32 s{S_T}, v{T3}
                s_cmp_gt_i32 s{S_N}, s{S_T}
                s_cbranch_scc1 K3_behind
                s_setprio 0
                s_branch K3_prio
                K3_behind:
                s_setprio 1
                K3_prio:""")
            if i == 14:
                a(f"ds_write_b64 v{V_RINGW}, v[{V_S}:{V_S+1}]")
            a_read((i // 2 + 1) % 8)
        n = D - 1
        raw = V_RAW + 4 * (i % 8)
        a(f"""
        s_waitcnt vmcnt({n})
        v_mfma_f32_16x16x32_bf16 v[{V_H}:{V_H+3}], v[{V_AU}:{V_AU+3}], v[{raw}:{raw+3}], 0
        v_mfma_f32_16x16x32_bf16 v[{V_H+4}:{V_H+7}], v[{V_AU+4}:{V_AU+7}], v[{raw}:{raw+3}], 0""")
        issue(i + D)
        for j in range(16):
            if read_step(j) == i:
                if j == 8:
                    o_write()
                o_read(j)
        a(f"v_readlane_b32 s{S_I}, v{V_IC}, {4*i}\nv_readlane_b32 s{S_I+1}, v{V_IC}, {4*i+2}")
        for s in fill[i]:
            a(s)
        for j in range(4):
            f = V_F + 2 * (4 * (i % 2) + j)
            a([f"s_set_gpr_idx_on s{S_I}, gpr_idx(SRC2,DST)", f"s_lshr_b32 m0, s{S_I}, 16",
               f"s_mov_b32 m0, s{S_I+1}", f"s_lshr_b32 m0, s{S_I+1}, 16"][j])
            a(f"v_pk_fma_f32 v[{ACC}:{ACC+1}], v[{V_H+2*j}:{V_H+2*j+1}], v[{f}:{f+1}], v[{ACC}:{ACC+1}]")
        a("s_set_gpr_idx_off")
    a(f"""
    v_mov_b32 v{V_IC}, v{V_IN}
    s_cmp_gt_i32 s{S_N}, 0
    s_cbranch_scc1 K3_batch""")
    a = a_main
    lines, added = pad(body.lines)
    again, extra = pad(lines, before=lines)
    assert extra == 0
    print(f"sweep loop: {len(lines)} instructions, {added} padded wait states", file=sys.stderr)
    a("K3_batch:")
    a.lines += lines
    a(f"""
    K3_drain:
    s_waitcnt vmcnt(0) lgkmcnt(0)
    K3_swept:
    s_mov_b32 s{S_R+NS}, 0
    s_mov_b32 s{S_R+NS+1}, 0
    s_waitcnt lgkmcnt(0)
    s_cmp_lg_u32 s{S_MORE}, 0
    s_cbranch_scc1 K3_round""")
    stamp(a, cfg, S_WS, 4, P, 98, S_STAMP)

    st = cfg["out_store"]
    a(f"""
    v_and_b32 v7, 15, v{V_LANE}
    v_lshrrev_b32 v8, 4, v{V_LANE}
    v_lshlrev_b32 v7, 4, v7
    v_lshl_add_u32 v7, v8, 19, v7
    s_lshl_b32 s{S_T}, s{S_WAVE}, 8
    s_add_u32 s{S_T}, s{S_T}, s{S_B}
    s_lshl_b32 s{S_T}, s{S_T}, 8""")
    for i in range(20):
        t = P + 4 * (i % 8)
        for k in range(4):
            r = min(4 * i + k, 78)
            a(f"v_cvt_pk_bf16_f32 v{t+k}, v{ACC+2*r}, v{ACC+2*r+1}")
        a(f"""
        s_nop 0
        v_permlane32_swap_b32 v{t}, v{t+2}
        v_permlane32_swap_b32 v{t+1}, v{t+3}
        s_nop 1
        v_permlane16_swap_b32 v{t}, v{t+1}
        v_permlane16_swap_b32 v{t+2}, v{t+3}
        buffer_store_dwordx4 v[{t}:{t+3}], v7, s[{S_OUT}:{S_OUT+3}], s{S_T} offen {st}
        s_add_u32 s{S_T}, s{S_T}, {4 << 19}""")
    if cfg["stamps"]:
        a("s_waitcnt vmcnt(0)")
        stamp(a, cfg, S_WS, 5, P, 98, S_STAMP)
    a("K3_end:\ns_endpgm")
    return lds


def descriptor(name, vgpr, sgpr):
    return f""".p2align 6
.amdhsa_kernel {name}
  .amdhsa_next_free_vgpr {vgpr}
  .amdhsa_next_free_sgpr {sgpr}
  .amdhsa_accum_offset {(vgpr + 3) // 4 * 4}
  .amdhsa_group_segment_fixed_size 0
  .amdhsa_kernarg_size 96
  .amdhsa_user_sgpr_count 2
  .amdhsa_user_sgpr_kernarg_segment_ptr 1
  .amdhsa_system_sgpr_workgroup_id_x 1
  .amdhsa_float_denorm_mode_32 3
.end_amdhsa_kernel
"""


DEFAULT = dict(stamps=0, ns=34, dpl=5, rec_load="", capb=104, k1_load="nt", k1_store="sc1", out_store="nt", dbg=0, row_load="", prio=1, mask_rec=0, exit_every=4, rot=5, k1_order=3, ahead=1, const_ell=0)


def generate(**kw):
    cfg = dict(DEFAULT)
    cfg.update(kw)
    a = Asm()
    lds1 = gen_bucket(a, cfg)
    lds3 = gen_sweep(a, cfg)
    a.lines, added = pad("\n".join(a.lines).split("\n"))
    print(f"{added} wait states padded outside the loop", file=sys.stderr)
    ref = open("standalone__molecular_angular_dimenet__graph.s.ref").read().split("\n")
    head = [ln for ln in ref if ln.startswith(";   offset") or ln.startswith("; Kernarg")]
    head += [
        "; Launch 1 sorts 10240-triplet chunks by destination bucket and builds the radial table;",
        "; launch 2 accumulates one bucket per workgroup, visiting the source rows in increasing order.",
        f"; @launch kernel=bucket_kernel grid=({NCHUNK},1,1) block=(1024,1,1) lds={lds1}",
        f"; @launch kernel=sweep_kernel grid=(256,1,1) block=(512,1,1) lds={lds3}",
        '.amdgcn_target "amdgcn-amd-amdhsa--gfx950"',
        ".text",
    ]
    tail = '.section .rodata,"a"\n' + descriptor("bucket_kernel", 96, 56) + descriptor("sweep_kernel", 256, 100)
    return "\n".join(head) + "\n" + a.text() + tail


if __name__ == "__main__":
    out = sys.argv[1]
    kw = {}
    for arg in sys.argv[2:]:
        k, v = arg.split("=", 1)
        kw[k] = type(DEFAULT[k])(int(v)) if isinstance(DEFAULT[k], (bool, int)) else v
    open(out, "w").write(generate(**kw))
```

```python
import struct
import sys

from hazard import pad

E = 160000
T = 2560000
CHUNK = 10240
NCHUNK = T // CHUNK
H_BYTES = E * 256

WS_REC = 0
WS_TAB = 0x1480000
WS_END = WS_TAB + NCHUNK * 1024
WS_STAMP = 0x1500000


def f32bits(x):
    return struct.unpack("<I", struct.pack("<f", x))[0]


INV2PI = 0.15915494309189535
C_HI = f32bits(INV2PI) & 0xFFFFFF00
C_LO = f32bits(INV2PI - struct.unpack("<f", struct.pack("<I", C_HI))[0])


class Asm:
    def __init__(self):
        self.lines = []

    def __call__(self, text):
        for ln in text.strip("\n").split("\n"):
            ln = ln.strip()
            if not ln:
                continue
            self.lines.append(ln if ln.endswith(":") else "    " + ln)

    def raw(self, text):
        self.lines.append(text)

    def text(self):
        return "\n".join(self.lines) + "\n"


def srd(a, d, lo, hi, nbytes):
    a(f"""
    s_mov_b32 s{d}, s{lo}
    s_mov_b32 s{d+1}, s{hi}
    s_mov_b32 s{d+2}, {nbytes}
    s_mov_b32 s{d+3}, 0x20000""")


def wave_scan(a, x):
    for sh in (1, 2, 4, 8):
        a(f"v_add_u32_dpp v{x}, v{x}, v{x} row_shr:{sh} row_mask:0xf bank_mask:0xf bound_ctrl:0")
    a(f"v_add_u32_dpp v{x}, v{x}, v{x} row_bcast:15 row_mask:0xa bank_mask:0xf")
    a(f"v_add_u32_dpp v{x}, v{x}, v{x} row_bcast:31 row_mask:0xc bank_mask:0xf")


def stamp(a, cfg, srd_ws, slot, vtmp, s0, swave_off):
    if not cfg["stamps"]:
        return
    a(f"""
    s_memrealtime s[{s0}:{s0+1}]
    s_waitcnt lgkmcnt(0)
    v_mov_b32 v{vtmp}, s{s0}
    v_mov_b32 v{vtmp+1}, {slot*4}
    s_mov_b64 exec, 1
    buffer_store_dword v{vtmp}, v{vtmp+1}, s[{srd_ws}:{srd_ws+3}], s{swave_off} offen
    s_mov_b64 exec, -1""")


def gen_bucket(a, cfg):
    HIST, BASE, TBL = 0, 1024, 2048
    RECS = TBL
    HALF = E // 2
    NDMA = -(-HALF * 2 // 1024)
    S_JI, S_KJ, S_TH, S_WS, S_D = 16, 20, 24, 28, 36
    S_W = 15
    ws_size = WS_STAMP + 0x100000 if cfg["stamps"] else WS_END
    st = cfg["k1_store"]
    a.raw(".p2align 8\n.globl bucket_kernel\n.type bucket_kernel,@function\nbucket_kernel:")
    a(f"""
    s_cmp_ge_u32 s2, {NCHUNK}
    s_cbranch_scc1 K1_end
    s_load_dwordx4 s[4:7], s[0:1], 16
    s_load_dwordx2 s[8:9], s[0:1], 32
    s_load_dwordx2 s[10:11], s[0:1], 88
    s_load_dwordx2 s[44:45], s[0:1], 8
    v_readfirstlane_b32 s{S_W}, v0
    v_lshlrev_b32 v1, 4, v0
    v_lshlrev_b32 v2, 3, v0
    v_lshlrev_b32 v3, 2, v0
    s_lshr_b32 s{S_W}, s{S_W}, 6
    s_mul_i32 s12, s2, {CHUNK*4}
    s_add_u32 s13, s12, 16384
    s_add_u32 s14, s12, 32768
    s_mul_i32 s32, s2, {CHUNK*2}
    s_add_u32 s33, s32, 8192
    s_add_u32 s34, s32, 16384
    v_mov_b32 v34, 0
    v_and_b32 v35, 0x3fc, v3
    v_mov_b32 v36, 1
    v_and_b32 v37, 0x3f0, v1
    s_mov_b32 s48, 0xfe
    ds_write_b32 v35, v34 offset:{HIST}
    s_waitcnt lgkmcnt(0)""")
    srd(a, S_JI, 8, 9, T * 4)
    srd(a, S_KJ, 6, 7, T * 4)
    srd(a, S_TH, 4, 5, T * 2)
    srd(a, S_WS, 10, 11, ws_size)
    srd(a, S_D, 44, 45, E * 2)
    if cfg["stamps"]:
        a(f"""
        s_lshl_b32 s41, s2, 4
        s_add_u32 s40, s{S_W}, s41
        s_lshl_b32 s40, s40, 5
        s_add_u32 s40, s40, {WS_STAMP}""")
    stamp(a, cfg, S_WS, 0, 90, 42, 40)
    ld = cfg["k1_load"]
    JI = [4 + i for i in range(10)]
    KJ = [16 + i for i in range(10)]
    BK = [60 + i for i in range(10)]
    RK = [70 + i for i in range(10)]
    R0 = [40 + 2 * i for i in range(10)]
    DV = [80 + i for i in range(10)]

    def stage(piece):
        a(f"""
        s_lshr_b32 s35, s2, 3
        s_mul_i32 s35, s35, {cfg["rot"]}
        s_add_u32 s35, s35, s{S_W}
        s_lshl_b32 s35, s35, 10""")
        for i in range(10):
            a(f"""
            s_cmp_ge_u32 s35, {160*1024}
            s_cselect_b32 s46, {160*1024}, 0
            s_sub_u32 s35, s35, s46
            s_min_u32 s46, s35, {(NDMA - 1) * 1024}
            s_add_u32 m0, s46, {TBL}
            s_add_u32 s46, s46, {piece * HALF * 2}
            buffer_load_dwordx4 v37, s[{S_D}:{S_D+3}], s46 offen lds""")
            if i < 9:
                a("s_add_u32 s35, s35, 16384")

    def kj_loads():
        a(f"""
        buffer_load_dwordx4 v[16:19], v1, s[{S_KJ}:{S_KJ+3}], s12 offen {ld}
        buffer_load_dwordx4 v[20:23], v1, s[{S_KJ}:{S_KJ+3}], s13 offen {ld}
        buffer_load_dwordx2 v[24:25], v2, s[{S_KJ}:{S_KJ+3}], s14 offen {ld}""")

    def ji_loads():
        a(f"""
        buffer_load_dwordx4 v[4:7], v1, s[{S_JI}:{S_JI+3}], s12 offen {ld}
        buffer_load_dwordx4 v[8:11], v1, s[{S_JI}:{S_JI+3}], s13 offen {ld}
        buffer_load_dwordx2 v[12:13], v2, s[{S_JI}:{S_JI+3}], s14 offen {ld}""")

    def th_loads():
        a(f"""
        buffer_load_dwordx2 v[28:29], v2, s[{S_TH}:{S_TH+3}], s32 offen {ld}
        buffer_load_dwordx2 v[30:31], v2, s[{S_TH}:{S_TH+3}], s33 offen {ld}
        buffer_load_dword v32, v3, s[{S_TH}:{S_TH+3}], s34 offen {ld}""")

    def kj_prep():
        for i in range(10):
            a(f"v_lshlrev_b32 v{R0[i]}, 8, v{KJ[i]}\nv_lshlrev_b32 v{KJ[i]}, 1, v{KJ[i]}")

    def look(piece):
        for i in range(10):
            if piece == 0:
                a(f"v_cmpx_gt_u32 vcc, s47, v{KJ[i]}\nds_read_u16 v{DV[i]}, v{KJ[i]} offset:{TBL}\ns_mov_b64 exec, -1")
            else:
                a(f"v_cmpx_le_u32 vcc, s47, v{KJ[i]}\nv_subrev_u32 v{KJ[i]}, s47, v{KJ[i]}\nds_read_u16 v{DV[i]}, v{KJ[i]} offset:{TBL}\ns_mov_b64 exec, -1")

    def count(younger):
        for lo, hi, n in ((0, 4, 2), (4, 8, 1), (8, 10, 0)):
            a(f"s_waitcnt vmcnt({n + younger})")
            for i in range(lo, hi):
                a(f"v_lshlrev_b32_sdwa v{BK[i]}, 2, v{JI[i]} dst_sel:DWORD dst_unused:UNUSED_PAD src0_sel:DWORD src1_sel:BYTE_0")
            for i in range(lo, hi):
                a(f"ds_add_rtn_u32 v{RK[i]}, v{BK[i]}, v36 offset:{HIST}")

    def build(younger):
        for i in range(10):
            a(f"""
            v_lshrrev_b32 v38, 10, v{JI[i]}
            v_bfe_u32 v39, v{JI[i]}, 8, 3
            v_and_or_b32 v38, v38, s48, v{R0[i]}
            v_lshl_or_b32 v{R0[i]}, v39, 26, v38""")
        for lo, hi, n in ((0, 4, 2), (4, 8, 1), (8, 10, 0)):
            a(f"s_waitcnt vmcnt({n + younger})")
            for i in range(lo, hi):
                th = 28 + i // 2
                if i % 2 == 0:
                    a(f"v_and_b32 v{R0[i]+1}, 0xffff, v{th}")
                else:
                    a(f"v_lshrrev_b32 v{R0[i]+1}, 16, v{th}")

    def scan():
        a(f"""
        v_and_b32 v38, 63, v0
        v_lshlrev_b32 v38, 4, v38
        ds_read_b128 v[4:7], v38 offset:{HIST}
        s_waitcnt lgkmcnt(0)
        v_add_u32 v8, v4, v5
        v_add3_u32 v8, v8, v6, v7
        v_mov_b32 v9, v8""")
        wave_scan(a, 9)
        a(f"""
        v_sub_u32 v12, v9, v8
        v_add_u32 v13, v12, v4
        v_add_u32 v14, v13, v5
        v_add_u32 v15, v14, v6
        ds_write_b128 v38, v[12:15] offset:{BASE}""")
        for i in range(10):
            a(f"ds_read_b32 v{BK[i]}, v{BK[i]} offset:{BASE}")
        a("""
        v_lshl_or_b32 v92, v4, 16, v12
        v_lshl_or_b32 v93, v5, 16, v13
        v_lshl_or_b32 v94, v6, 16, v14
        v_lshl_or_b32 v95, v7, 16, v15
        s_waitcnt lgkmcnt(0)""")
        for i in range(10):
            a(f"v_add_lshl_u32 v{BK[i]}, v{BK[i]}, v{RK[i]}, 3")

    ns = 1 if cfg["stamps"] else 0

    def path_a(table_first):
        if table_first:
            stage(0)
            a("s_barrier")
            kj_loads()
        else:
            kj_loads()
            stage(0)
        a("s_barrier")
        ji_loads()
        th_loads()
        a(f"s_waitcnt vmcnt({6 if table_first else 16})")
        kj_prep()
        a("s_waitcnt vmcnt(6)\ns_barrier")
        look(0)
        a("s_waitcnt lgkmcnt(0)\ns_barrier")
        stamp(a, cfg, S_WS, 4, 90, 42, 40)
        count(3 + ns)
        stage(1)
        build(10 + ns)
        a("s_waitcnt lgkmcnt(0)\ns_barrier")
        stamp(a, cfg, S_WS, 1, 90, 42, 40)
        scan()
        a("s_waitcnt vmcnt(0)\ns_barrier")
        stamp(a, cfg, S_WS, 5, 90, 42, 40)
        look(1)
        a("s_waitcnt lgkmcnt(0)\ns_barrier")
        stamp(a, cfg, S_WS, 6, 90, 42, 40)

    def path_b(early_ji):
        stage(0)
        a("s_barrier")
        kj_loads()
        if early_ji:
            a("s_barrier")
            ji_loads()
        a(f"s_waitcnt vmcnt({3 if early_ji else 0})")
        kj_prep()
        a("s_barrier")
        look(0)
        a("s_waitcnt lgkmcnt(0)\ns_barrier")
        stamp(a, cfg, S_WS, 4, 90, 42, 40)
        stage(1)
        a("s_barrier")
        if early_ji:
            th_loads()
            count(13 + ns)
            a("s_waitcnt vmcnt(3) lgkmcnt(0)\ns_barrier")
            look(1)
        else:
            ji_loads()
            th_loads()
            a("s_waitcnt vmcnt(6)\ns_barrier")
            look(1)
            a("s_waitcnt lgkmcnt(0)")
            count(3)
        build(0)
        a("s_waitcnt lgkmcnt(0)\ns_barrier")
        stamp(a, cfg, S_WS, 1, 90, 42, 40)
        scan()
        stamp(a, cfg, S_WS, 5, 90, 42, 40)
        stamp(a, cfg, S_WS, 6, 90, 42, 40)

    a(f"s_mov_b32 s47, {HALF*2}\ns_bitcmp1_b32 s2, {cfg['k1_bit']}\ns_cbranch_scc1 K1_other")
    path_a(False)
    a("s_branch K1_both\nK1_other:")
    if cfg["k1_path"] == 0:
        path_a(True)
    else:
        path_b(cfg["k1_path"] == 2)
    a(f"""
    K1_both:
    s_cmp_lg_u32 s{S_W}, 0
    s_cbranch_scc1 K1_notab
    s_lshl_b32 s35, s2, 10
    s_add_u32 s35, s35, {WS_TAB}
    buffer_store_dwordx4 v[92:95], v38, s[{S_WS}:{S_WS+3}], s35 offen {st}
    K1_notab:""")
    for i in range(10):
        a(f"v_lshl_or_b32 v{R0[i]+1}, v{DV[i]}, 16, v{R0[i]+1}")
        a(f"ds_write_b64 v{BK[i]}, v[{R0[i]}:{R0[i]+1}] offset:{RECS}")
    a("s_waitcnt lgkmcnt(0)\ns_barrier")
    stamp(a, cfg, S_WS, 2, 90, 42, 40)
    a(f"s_mul_i32 s12, s2, {CHUNK*8}")
    a("v_add_u32 v2, 0x10000, v1")
    for k in range(5):
        if k < 4:
            a(f"ds_read_b128 v[{4+4*k}:{7+4*k}], v1 offset:{RECS + k * 16384}")
        else:
            a(f"ds_read_b128 v[{4+4*k}:{7+4*k}], v2 offset:{RECS}")
    for k in range(5):
        a(f"s_waitcnt lgkmcnt({4-k})")
        a(f"buffer_store_dwordx4 v[{4+4*k}:{7+4*k}], v1, s[{S_WS}:{S_WS+3}], s12 offen {st}")
        if k < 4:
            a("s_add_u32 s12, s12, 16384")
    if cfg["stamps"]:
        a("s_waitcnt vmcnt(0)")
        stamp(a, cfg, S_WS, 3, 90, 42, 40)
    a("K1_end:\ns_endpgm")
    return TBL + NDMA * 1024


def gen_sweep(a, cfg):
    NS = cfg["ns"]
    NSL = NS + 2
    PIECE = 63
    D = cfg["dpl"]
    SHIFT = 21
    NBLK = -(-E // 8192)
    CAPB = cfg["capb"]
    KMASK = 255 << 2
    CUR, BASE, FLAG, ZERO, RING, RINGO, RECS = 0, 1024, 4096, 4352, 5632, 13824, 16384
    CAP = max(8 * (NS * PIECE + 79), 8 * NBLK * CAPB)
    lds = RECS + CAP * 8 + 512
    assert lds <= 163840 and 2 <= D <= 7

    ACC = 98
    V_LANE, V_TOFF, V_BW, V_TLEN = 0, 1, 2, 6
    V_L8, V_ONE, P = 7, 8, 10
    TK = P + 2 * NSL
    G = 6
    V_SL, V_SO, V_PF = TK + 2 * G, TK + 2 * G + 1, TK + 2 * G + 2
    V_RADDR, V_AADDR, V_RINGW = 7, 8, 9
    V_RAW, V_F, V_H, V_A, V_AU, V_O, V_RN, V_S, V_T = 10, 42, 58, 66, 70, 78, 82, 84, 86
    V_IC, V_IN, V_RADV, V_MHI, V_L16, V_RINGO, V_OADDR, V_OFF = 90, 91, 92, 93, 94, 95, 96, 97
    S_H, S_OUT, S_WS, S_D = 4, 8, 12, 76
    S_B, S_WAVE, S_SEG, S_REM, S_OFF, S_MORE, S_N, S_START = 16, 17, 18, 19, 20, 21, 22, 23
    S_ELL, S_CHI, S_CLO, S_MASK, S_MODE, S_NMAX, S_T = 24, 27, 28, 29, 30, 31, 32
    S_FREQ, S_PF = 34, 35
    S_BIN, S_POS, S_NEXT, S_D8 = 39, 70, 71, 72
    S_I = 36
    S_R = 40
    S_STAMP = 96
    ws_size = WS_STAMP + 0x100000 if cfg["stamps"] else WS_END

    a.raw(".p2align 8\n.globl sweep_kernel\n.type sweep_kernel,@function\nsweep_kernel:")
    a(f"""
    s_cmp_ge_u32 s2, 256
    s_cbranch_scc1 K3_end
    s_load_dwordx2 s[86:87], s[0:1], 88
    s_load_dwordx4 s[80:83], s[0:1], 0
    s_load_dwordx2 s[84:85], s[0:1], 40
    s_load_dwordx4 s[88:91], s[0:1], 48
    s_load_dwordx4 s[92:95], s[0:1], 64
    v_readfirstlane_b32 s{S_WAVE}, v0
    s_and_b32 s{S_B}, s2, 7
    s_lshl_b32 s{S_B}, s{S_B}, 5
    s_lshr_b32 s{S_T}, s2, 3
    s_add_u32 s{S_B}, s{S_B}, s{S_T}
    s_lshr_b32 s{S_WAVE}, s{S_WAVE}, 6
    v_lshlrev_b32 v{P}, 5, v0
    v_and_b32 v{V_LANE}, 63, v0
    v_mov_b32 v{P+2}, 0
    v_mov_b32 v{P+3}, 0
    v_mov_b32 v{P+4}, 0
    v_mov_b32 v{P+5}, 0
    ds_write_b128 v{P}, v[{P+2}:{P+5}] offset:{FLAG}
    ds_write_b128 v{P}, v[{P+2}:{P+5}] offset:{FLAG+16}
    s_lshl_b32 s{S_T}, s{S_WAVE}, 5
    v_add_u32 v{V_TOFF}, s{S_T}, v{V_LANE}
    v_lshlrev_b32 v{P+1}, 10, v{V_TOFF}
    v_and_b32 v{P+6}, 15, v{V_LANE}
    v_lshrrev_b32 v{P+7}, 4, v{V_LANE}
    v_lshl_add_u32 v{P+6}, v{P+6}, 2, v{P+7}
    v_lshlrev_b32 v{P+6}, 2, v{P+6}
    s_lshl_b32 s{S_T}, s{S_B}, 2
    s_add_u32 s{S_T}, s{S_T}, {WS_TAB}
    s_waitcnt lgkmcnt(0)""")
    srd(a, S_WS, 86, 87, ws_size)
    a(f"""
    v_mov_b32 v{V_TLEN}, 0
    s_bfm_b64 exec, 32, 0
    buffer_load_dword v{V_TLEN}, v{P+1}, s[{S_WS}:{S_WS+3}], s{S_T} offen
    s_mov_b64 exec, -1""")
    a(f"s_load_dwordx2 s[{S_ELL}:{S_ELL+1}], s[88:89], 0\ns_load_dword s{S_FREQ}, s[84:85], 0")
    SA, SB = P + 2 * NS, P + 2 * NS + 2
    srd(a, S_H, 90, 91, 768)
    srd(a, S_OUT, 92, 93, 256)
    srd(a, S_D, 82, 83, E * 2)
    a(f"""
    buffer_load_dword v{P+8}, v{P+6}, s[{S_H}:{S_H+3}], 0 offen
    buffer_load_dword v{P+9}, v{P+6}, s[{S_H}:{S_H+3}], 0 offen offset:256
    buffer_load_dword v{P+10}, v{P+6}, s[{S_H}:{S_H+3}], 0 offen offset:512
    buffer_load_dword v{P+11}, v{P+6}, s[{S_OUT}:{S_OUT+3}], 0 offen
""")
    srd(a, S_H, 80, 81, 0 if cfg["dbg"] & 1 else H_BYTES)
    srd(a, S_OUT, 94, 95, H_BYTES)

    if cfg["stamps"]:
        a(f"""
        s_lshl_b32 s{S_STAMP}, s2, 3
        s_add_u32 s{S_STAMP}, s{S_STAMP}, s{S_WAVE}
        s_lshl_b32 s{S_STAMP}, s{S_STAMP}, 5
        s_add_u32 s{S_STAMP}, s{S_STAMP}, {WS_STAMP + 0x40000}""")
    a(f"""
    s_mov_b32 s{S_CHI}, {C_HI:#x}
    s_mov_b32 s{S_CLO}, {C_LO:#x}
    s_mov_b32 s{S_MASK}, 0x03ffff00
    s_mov_b32 s{S_MODE}, 0xc000
    s_mov_b32 s{S_T}, {CHUNK*8}
    v_cmp_gt_u32 vcc, {NCHUNK}, v{V_TOFF}
    v_mul_lo_u32 v{V_TOFF}, v{V_TOFF}, s{S_T}
    s_mov_b32 s{S_SEG}, 0
    s_mov_b32 s{S_REM}, 0
    s_mov_b32 s{S_OFF}, 0""")
    a(f"""
    s_lshl_b32 s{S_T}, s{S_WAVE}, 8
    s_add_u32 s{S_T}, s{S_T}, s{S_B}
    s_lshl_b32 s{S_T}, s{S_T}, 8
    s_lshl_b32 s{S_T+1}, s{S_WAVE}, 26
    s_or_b32 s{S_T}, s{S_T}, s{S_T+1}
    s_bitset1_b32 s{S_T}, 31
    s_mov_b32 s{S_T+1}, {(1 << 19) + 2}
    v_mul_lo_u32 v{SA}, v{V_LANE}, s{S_T+1}
    v_add_u32 v{SA}, s{S_T}, v{SA}
    v_add_u32 v{SB}, {40 * ((1 << 19) + 2)}, v{SA}
    s_mov_b32 s{S_R+NS}, 40
    s_cmp_eq_u32 s{S_WAVE}, 0
    s_cselect_b32 s{S_R+NS+1}, 39, 38""")
    for i in range(158):
        a(f"v_mov_b32 v{ACC+i}, 0")
    a(f"""
    s_waitcnt lgkmcnt(0)
    s_and_b32 s{S_ELL+2}, s{S_ELL}, 0xffff0000
    s_lshl_b32 s{S_ELL}, s{S_ELL}, 16
    s_lshl_b32 s{S_T}, s{S_ELL+1}, 16
    s_mov_b32 s{S_ELL+1}, s{S_ELL+2}
    s_mov_b32 s{S_ELL+2}, s{S_T}
    s_mov_b32 s{S_T}, 0x05040100
    s_mov_b32 s{S_T+1}, 0x07060302
    s_lshl_b32 s{S_FREQ}, s{S_FREQ}, 16
    s_waitcnt vmcnt(0)
    v_perm_b32 v{V_BW}, v{P+9}, v{P+8}, s{S_T}
    v_perm_b32 v{V_BW+1}, v{P+11}, v{P+10}, s{S_T}
    v_perm_b32 v{V_BW+2}, v{P+9}, v{P+8}, s{S_T+1}
    v_perm_b32 v{V_BW+3}, v{P+11}, v{P+10}, s{S_T+1}
    v_cndmask_b32 v{V_TLEN}, 0, v{V_TLEN}, vcc
    v_and_b32 v{P+1}, 0xffff, v{V_TLEN}
    v_lshl_add_u32 v{V_TOFF}, v{P+1}, 3, v{V_TOFF}
    v_lshrrev_b32 v{V_TLEN}, 16, v{V_TLEN}""")
    stamp(a, cfg, S_WS, 0, P, 98, S_STAMP)

    a(f"""
    K3_round:
    v_lshlrev_b32 v{V_L8}, 3, v{V_LANE}
    v_mov_b32 v{V_ONE}, 1""")
    rl = cfg["rec_load"]

    a(f"""
    v_mov_b32 v{V_SL}, v{V_TLEN}
    v_mov_b32 v{V_SO}, v{V_TOFF}
    v_cmp_lt_u32 vcc, {PIECE}, v{V_TLEN}
    s_or_b32 s{S_T}, vcc_lo, s{S_SEG}
    s_cbranch_scc1 K3_general
    s_mov_b32 s{S_SEG}, 32
    s_branch K3_listed
    K3_general:
    s_mov_b32 s{S_I}, 0
    K3_slot:
    s_cmp_lg_u32 s{S_REM}, 0
    s_cbranch_scc1 K3_have
    K3_adv:
    s_cmp_ge_u32 s{S_SEG}, 32
    s_cbranch_scc1 K3_have
    v_readlane_b32 s{S_REM}, v{V_TLEN}, s{S_SEG}
    v_readlane_b32 s{S_OFF}, v{V_TOFF}, s{S_SEG}
    s_add_u32 s{S_SEG}, s{S_SEG}, 1
    s_cmp_eq_u32 s{S_REM}, 0
    s_cbranch_scc1 K3_adv
    K3_have:
    s_min_u32 s{S_T}, s{S_REM}, {PIECE}
    s_mov_b32 m0, s{S_I}
    s_mov_b32 s{S_T+1}, s{S_OFF}
    v_writelane_b32 v{V_SL}, s{S_T}, m0
    v_writelane_b32 v{V_SO}, s{S_T+1}, m0
    s_sub_u32 s{S_REM}, s{S_REM}, s{S_T}
    s_add_u32 s{S_OFF}, s{S_OFF}, {PIECE*8}
    s_add_u32 s{S_I}, s{S_I}, 1
    s_cmp_lt_u32 s{S_I}, {NS}
    s_cbranch_scc1 K3_slot
    K3_listed:""")

    order = list(range(NS)) + [NS, NS + 1]
    groups = [order[i:i + G] for i in range(0, NSL, G)]
    vm = []

    def loads(gi):
        ks = [k for k in groups[gi] if k < NS]
        for n0 in range(0, len(ks), 3):
            for n, k in enumerate(ks[n0:n0 + 3]):
                a(f"v_readlane_b32 s{S_I+n}, v{V_SO}, {k}")
            for n, k in enumerate(ks[n0:n0 + 3]):
                a(f"v_readlane_b32 s{S_R+k}, v{V_SL}, {k}")
            for n, k in enumerate(ks[n0:n0 + 3]):
                if cfg["mask_rec"]:
                    a(f"s_max_u32 s{S_T+1}, s{S_R+k}, 1\ns_bfm_b64 exec, s{S_T+1}, 0")
                a(f"buffer_load_dwordx2 v[{P+2*k}:{P+2*k+1}], v{V_L8}, s[{S_WS}:{S_WS+3}], s{S_I+n} offen {rl}")
                vm.append(k)
        if NS in groups[gi]:
            a(f"""
            s_mov_b64 exec, -1
            s_lshl_b32 s{S_T}, s{S_WAVE}, 8
            s_add_u32 s{S_T}, s{S_T}, s{S_B}
            s_lshl_b32 s{S_T}, s{S_T}, 1
            s_add_u32 s{S_T+1}, s{S_T}, {40 * 4096}
            v_lshlrev_b32 v9, 12, v{V_LANE}
            s_bfm_b64 exec, 40, 0
            buffer_load_ushort v{SA+1}, v9, s[{S_D}:{S_D+3}], s{S_T} offen
            buffer_load_ushort v{SB+1}, v9, s[{S_D}:{S_D+3}], s{S_T+1} offen""")
            vm.extend([NS, NS + 1])
            if cfg["pf"]:
                a(f"""
                s_mov_b64 exec, -1
                s_lshl_b32 s{S_T}, s2, 3
                s_add_u32 s{S_T}, s{S_T}, s{S_WAVE}
                s_mul_i32 s{S_T}, s{S_T}, {cfg["pf"] * 128}
                s_add_u32 s{S_T}, s{S_T}, {cfg["pf_base"] << 20}
                v_lshlrev_b32 v{ACC-1}, 7, v{V_LANE}
                {f"s_bfm_b64 exec, {cfg['pf']}, 0" if cfg["pf"] < 64 else "s_mov_b64 exec, -1"}
                buffer_load_dword v{ACC-1}, v{ACC-1}, s[{S_H}:{S_H+3}], s{S_T} offen""")
                vm.append(-1)
        a("s_mov_b64 exec, -1")

    AH = cfg["ahead"]
    for gi in range(AH):
        loads(gi)

    def bin_start(dst, tmp_):
        a(f"""
        s_mul_i32 s{S_T}, s{S_WAVE}, {NBLK * CAPB}
        v_min_u32 v{tmp_}, {NBLK}, v{V_LANE}
        v_mul_u32_u24 v{tmp_}, {CAPB}, v{tmp_}
        v_add_u32 v{dst}, s{S_T}, v{tmp_}""")

    bin_start(TK + 1, TK + 1)
    a(f"""
    s_lshl_b32 s{S_T}, s{S_WAVE}, 7
    v_lshl_add_u32 v{TK}, v{V_LANE}, 2, s{S_T}
    s_bfm_b64 exec, 32, 0
    ds_write_b32 v{TK}, v{TK+1} offset:{CUR}
    s_mov_b64 exec, -1
    v_cmp_le_u32 vcc, s{S_SEG}, v{V_LANE}
    v_cmp_lt_u32 s[{S_T}:{S_T+1}], 0, v{V_TLEN}
    s_and_b32 s{S_T}, s{S_T}, vcc_lo
    s_or_b32 s{S_T}, s{S_T}, s{S_REM}
    s_waitcnt lgkmcnt(0)
    s_barrier
    s_cmp_eq_u32 s{S_T}, 0
    s_cbranch_scc1 K3_nomore
    v_mov_b32 v{V_PF}, {FLAG}
    ds_write_b32 v{V_PF}, v{V_ONE}
    K3_nomore:""")

    def tmp(gi, j):
        return TK + (gi % 2) * G + j

    def place(cursors, first):
        def keys(gi):
            for j, k in enumerate(groups[gi]):
                if first and k < NS:
                    a(f"s_waitcnt vmcnt({len(vm) - 1 - vm.index(k)})")
                a(f"v_lshrrev_b32 v{tmp(gi, j)}, {SHIFT-2}, v{P+2*k}\nv_and_b32 v{tmp(gi, j)}, {KMASK}, v{tmp(gi, j)}")

        def take(gi):
            for j, k in enumerate(groups[gi]):
                a(f"s_bfm_b64 exec, s{S_R+k}, 0\nds_add_rtn_u32 v{tmp(gi, j)}, v{tmp(gi, j)}, v{V_ONE} offset:{cursors}")
            a("s_mov_b64 exec, -1")

        def move(gi):
            for j, k in enumerate(groups[gi]):
                a(f"v_lshlrev_b32 v{tmp(gi, j)}, 3, v{tmp(gi, j)}")
            if first and NS in groups[gi]:
                a(f"s_waitcnt vmcnt({1 if cfg['pf'] else 0})\nv_lshlrev_b32 v{SA+1}, 16, v{SA+1}\nv_lshlrev_b32 v{SB+1}, 16, v{SB+1}")
            for j, k in enumerate(groups[gi]):
                a(f"s_bfm_b64 exec, s{S_R+k}, 0\nds_write_b64 v{tmp(gi, j)}, v[{P+2*k}:{P+2*k+1}] offset:{RECS}")
            a("s_mov_b64 exec, -1")

        for gi in range(len(groups)):
            if first and gi + AH < len(groups):
                loads(gi + AH)
            keys(gi)
            if gi:
                a("s_waitcnt lgkmcnt(0)")
            take(gi)
            if gi:
                move(gi - 1)
        a("s_waitcnt lgkmcnt(0)")
        move(len(groups) - 1)
        a("s_waitcnt lgkmcnt(0)\ns_barrier")

    place(CUR, True)
    stamp(a, cfg, S_WS, 1, TK, 98, S_STAMP)

    C, X, Y, AD, ST, OWN = TK, TK + 4, TK + 5, TK + 6, TK + 7, TK + 8
    a(f"""
    v_lshlrev_b32 v{AD}, 4, v{V_LANE}
    v_mov_b32 v{X}, {FLAG}
    s_lshl_b32 s{S_T}, s{S_WAVE}, 7
    v_lshl_add_u32 v{OWN}, v{V_LANE}, 2, s{S_T}
    ds_read_b128 v[{C}:{C+3}], v{AD} offset:{CUR}
    ds_read_b32 v{X}, v{X}
    ds_read_b32 v{OWN}, v{OWN} offset:{CUR}
    v_lshrrev_b32 v{Y}, 3, v{V_LANE}
    v_mul_u32_u24 v{Y}, {NBLK}, v{Y}
    v_and_b32 v{ST}, 7, v{V_LANE}
    v_lshlrev_b32 v{ST}, 2, v{ST}
    v_min_u32 v{ST}, {NBLK}, v{ST}
    v_add_u32 v{ST}, v{ST}, v{Y}
    v_mul_u32_u24 v{ST}, {CAPB}, v{ST}
    v_and_b32 v{Y}, 7, v{V_LANE}
    v_cmp_gt_u32 vcc, {NBLK // 4}, v{Y}
    v_mov_b32 v{Y}, {CAPB}
    s_waitcnt lgkmcnt(0)
    v_cndmask_b32 v{Y}, 0, v{Y}, vcc
    v_readfirstlane_b32 s{S_MORE}, v{X}""")
    assert NBLK % 4 == 0
    for q in range(4):
        a(f"v_sub_u32 v{C+q}, v{C+q}, v{ST}")
        if q < 3:
            a(f"v_add_u32 v{ST}, v{ST}, v{Y}")
    a(f"""
    v_max_u32 v{X}, v{C}, v{C+1}
    v_max3_u32 v{X}, v{X}, v{C+2}, v{C+3}
    v_cmp_lt_u32 vcc, {CAPB}, v{X}
    s_cmp_eq_u32 s{S_MORE}, 0
    s_cbranch_scc1 K3_keep
    s_barrier
    v_mov_b32 v{X}, {FLAG}
    v_mov_b32 v{Y}, 0
    ds_write_b32 v{X}, v{Y}
    K3_keep:
    s_cbranch_vccz K3_fits""")

    for q in range(1, 4):
        a(f"v_add_u32 v{C+q}, v{C+q}, v{C+q-1}")
    a(f"v_mov_b32 v{X}, v{C+3}")
    wave_scan(a, X)
    a(f"v_sub_u32 v{Y}, v{X}, v{C+3}")
    for q in range(3, 0, -1):
        a(f"v_add_u32 v{C+q}, v{Y}, v{C+q-1}")
    a(f"""
    v_mov_b32 v{C}, v{Y}
    s_lshl_b32 s{S_T}, s{S_WAVE}, 3
    s_add_u32 s{S_T+1}, s{S_T}, 7
    s_bfm_b64 exec, 8, s{S_T}
    ds_write_b128 v{AD}, v[{C}:{C+3}] offset:{BASE}
    s_mov_b64 exec, -1
    v_readlane_b32 s{S_START}, v{Y}, s{S_T}
    v_readlane_b32 s{S_N}, v{X}, s{S_T+1}
    s_sub_u32 s{S_N}, s{S_N}, s{S_START}
    s_waitcnt lgkmcnt(0)
    s_barrier""")
    place(BASE, False)
    a(f"""
    s_lshl_b32 s{S_R}, s{S_START}, 16
    s_or_b32 s{S_R}, s{S_R}, 0xffff
    s_branch K3_placed
    K3_fits:""")
    bin_start(ST, ST)
    a(f"""
    v_cmp_gt_u32 vcc, {NBLK}, v{V_LANE}
    v_sub_u32 v{C}, v{OWN}, v{ST}
    v_cndmask_b32 v{X}, 0, v{C}, vcc""")
    wave_scan(a, X)
    a(f"""
    v_sub_u32 v{Y}, v{OWN}, v{X}
    v_lshl_or_b32 v{Y}, v{Y}, 16, v{X}
    v_readlane_b32 s{S_N}, v{X}, {NBLK-1}""")
    for b in range(NBLK):
        a(f"v_readlane_b32 s{S_R+b}, v{Y}, {b}")
    a(f"""
    s_or_b32 s{S_R+NBLK-1}, s{S_R+NBLK-1}, 0xffff
    K3_placed:""")

    T0, T1, T2, T3 = V_T, V_T + 1, V_T + 2, V_T + 3
    U0, U1 = V_S, V_S + 1
    a(f"""
    v_lshlrev_b32 v{V_RADDR}, 3, v{V_LANE}
    v_mov_b32 v{V_MHI}, 0xffff0000
    s_lshl_b32 s{S_T}, s{S_WAVE}, 10
    s_add_u32 s{S_T}, s{S_T}, {RING}
    v_lshl_add_u32 v{V_RINGW}, v{V_LANE}, 4, s{S_T}
    v_bfe_u32 v{T0}, v{V_LANE}, 3, 2
    v_bfe_u32 v{T1}, v{V_LANE}, 1, 1
    v_lshl_add_u32 v{T0}, v{T0}, 1, v{T1}
    v_and_b32 v{T1}, 1, v{V_LANE}
    v_lshlrev_b32 v{T0}, 4, v{T0}
    v_lshlrev_b32 v{T2}, 3, v{T1}
    v_sub_u32 v{T0}, v{T0}, v{T2}
    v_add_u32 v{T0}, s{S_T}, v{T0}
    v_bfe_u32 v{T2}, v{V_LANE}, 2, 1
    v_lshrrev_b32 v{T3}, 5, v{V_LANE}
    v_cmp_eq_u32 vcc, v{T2}, v{T3}
    v_mov_b32 v{T2}, {ZERO}
    v_and_b32 v{V_L16}, 15, v{V_LANE}
    v_cndmask_b32 v{V_AADDR}, v{T2}, v{T0}, vcc
    v_lshlrev_b32 v{V_L16}, 4, v{V_L16}
    s_lshl_b32 s{S_T}, s{S_WAVE}, 8
    s_add_u32 s{S_T}, s{S_T}, {RINGO}
    v_lshrrev_b32 v{T3}, 4, v{V_LANE}
    v_lshl_add_u32 v{V_OADDR}, v{T3}, 3, s{S_T}
    v_lshrrev_b32 v{T0}, 3, v{V_LANE}
    v_lshlrev_b32 v{T0}, 5, v{T0}
    v_and_b32 v{T2}, 3, v{V_LANE}
    v_lshl_add_u32 v{T0}, v{T2}, 3, v{T0}
    v_bfe_u32 v{T2}, v{V_LANE}, 2, 1
    v_lshl_add_u32 v{T0}, v{T2}, 2, v{T0}
    v_add_u32 v{V_RINGO}, s{S_T}, v{T0}
    v_mov_b32 v{T0}, 0x3f80
    v_cmp_eq_u32 vcc, 1, v{T1}
    v_bfe_u32 v{T2}, v{V_LANE}, 1, 1
    v_bfe_u32 v{U0}, v{V_LANE}, 2, 2
    v_cndmask_b32 v{T0}, v{T0}, 1.0, vcc
    v_sub_u32 v{T3}, v{T3}, v{T2}
    v_lshl_add_u32 v{T3}, v{T3}, 2, v{U0}""")
    for aa in range(2):
        for q in range(4):
            a(f"v_cmp_eq_u32 vcc, {8*aa+q}, v{T3}\nv_cndmask_b32 v{V_AU+4*aa+q}, 0, v{T0}, vcc")
    stamp(a, cfg, S_WS, 2, V_RAW, 98, S_STAMP)
    a(f"""
    s_cmp_eq_u32 s{S_N}, 0
    s_cbranch_scc1 K3_swept
    s_mov_b32 s{S_BIN}, 0
    s_mov_b32 s{S_POS}, 0
    s_and_b32 s{S_NEXT}, s{S_R}, 0xffff
    s_lshr_b32 s{S_D8}, s{S_R}, 16
    s_lshl_b32 s{S_D8}, s{S_D8}, 3""")

    R, TH = V_RN, V_RN + 1
    stage1 = [
        f"v_cmp_gt_i32 vcc, s{S_N}, v{V_LANE}",
        f"v_mov_b32 v{T0}, s{S_MASK}",
        f"v_mov_b32 v{T1}, 1.0",
        f"v_cndmask_b32 v{R}, v{T0}, v{R}, vcc",
        f"v_cndmask_b32 v{TH}, v{T1}, v{TH}, vcc",
        f"v_and_b32 v{T0}, v{V_MHI}, v{TH}",
        f"v_lshlrev_b32 v{TH}, 16, v{TH}",
        f"v_rcp_f32 v{V_RADV}, v{T0}",
        f"v_mul_f32 v{T0}, s{S_FREQ}, v{T0}",
        f"v_cvt_pk_bf16_f32 v{T0}, v{T0}, v{T0}",
        f"v_and_b32 v{T0}, v{V_MHI}, v{T0}",
        f"v_mul_f32 v{T1}, s{S_CHI}, v{T0}",
        f"v_rndne_f32 v{T2}, v{T1}",
        f"v_sub_f32 v{T1}, v{T1}, v{T2}",
        f"v_fma_f32 v{T0}, v{T0}, s{S_CLO}, v{T1}",
        f"v_sin_f32 v{T0}, v{T0}",
        f"v_or_b32_sdwa v{V_IN}, v{R}, s{S_MODE} dst_sel:DWORD dst_unused:UNUSED_PAD src0_sel:BYTE_0 src1_sel:DWORD",
        f"v_cvt_pk_bf16_f32 v{T0}, v{T0}, v{T0}",
        f"v_and_b32 v{T0}, v{V_MHI}, v{T0}",
        f"v_mul_f32 v{V_RADV}, v{T0}, v{V_RADV}",
        f"v_cvt_pk_bf16_f32 v{V_RADV}, v{V_RADV}, v{V_RADV}",
        f"v_and_b32 v{V_RADV}, v{V_MHI}, v{V_RADV}",
    ]
    stage2 = [
        f"v_mul_f32 v{T0}, s{S_ELL}, v{TH}",
        f"v_mul_f32 v{T1}, s{S_ELL+1}, v{TH}",
        f"v_mov_b32_dpp v{T3}, v{V_IN} quad_perm:[1,1,3,3] row_mask:0xf bank_mask:0xf",
        f"v_mul_f32 v{T2}, s{S_ELL+2}, v{TH}",
        f"v_lshl_or_b32 v{V_IN}, v{T3}, 16, v{V_IN}",
        f"v_cvt_pk_bf16_f32 v{T0}, v{T0}, v{T1}",
        f"v_cvt_pk_bf16_f32 v{T2}, v{T2}, v{T2}",
        f"v_and_b32 v{T1}, v{V_MHI}, v{T0}",
        f"v_lshlrev_b32 v{T0}, 16, v{T0}",
        f"v_and_b32 v{T2}, v{V_MHI}, v{T2}",
        f"v_mul_f32 v{U0}, s{S_CHI}, v{T0}",
        f"v_mul_f32 v{U1}, s{S_CHI}, v{T1}",
        f"v_mul_f32 v{T3}, s{S_CHI}, v{T2}",
        f"v_fract_f32 v{U0}, v{U0}",
        f"v_fract_f32 v{U1}, v{U1}",
        f"v_fract_f32 v{T3}, v{T3}",
        f"v_fma_f32 v{T0}, v{T0}, s{S_CLO}, v{U0}",
        f"v_fma_f32 v{T1}, v{T1}, s{S_CLO}, v{U1}",
        f"v_fma_f32 v{T2}, v{T2}, s{S_CLO}, v{T3}",
        f"v_cos_f32 v{T0}, v{T0}",
        f"v_cos_f32 v{T1}, v{T1}",
        f"v_cos_f32 v{T2}, v{T2}",
        f"v_cmp_gt_i32 vcc, 0, v{R}",
        f"v_cvt_pk_bf16_f32 v{T0}, v{T0}, v{T1}",
        f"v_cvt_pk_bf16_f32 v{T2}, v{T2}, v{T2}",
        f"v_and_b32 v{T1}, v{V_MHI}, v{T0}",
        f"v_lshlrev_b32 v{T0}, 16, v{T0}",
        f"v_and_b32 v{T2}, v{V_MHI}, v{T2}",
    ]
    if cfg["const_ell"]:
        stage2 = [
            f"v_mul_f32 v{T2}, s{S_ELL+2}, v{TH}",
            f"v_mov_b32_dpp v{T3}, v{V_IN} quad_perm:[1,1,3,3] row_mask:0xf bank_mask:0xf",
            f"v_mul_f32 v{U0}, s{S_CHI}, v{TH}",
            f"v_cvt_pk_bf16_f32 v{T2}, v{T2}, v{T2}",
            f"v_lshl_or_b32 v{V_IN}, v{T3}, 16, v{V_IN}",
            f"v_and_b32 v{T2}, v{V_MHI}, v{T2}",
            f"v_fract_f32 v{U0}, v{U0}",
            f"v_mul_f32 v{T3}, s{S_CHI}, v{T2}",
            f"v_fma_f32 v{T0}, v{TH}, s{S_CLO}, v{U0}",
            f"v_fract_f32 v{T3}, v{T3}",
            f"v_cos_f32 v{T0}, v{T0}",
            f"v_fma_f32 v{T2}, v{T2}, s{S_CLO}, v{T3}",
            f"v_add_f32 v{T1}, v{T0}, v{T0}",
            f"v_cos_f32 v{T2}, v{T2}",
            f"v_fma_f32 v{T1}, v{T1}, v{T0}, -1.0",
            f"v_cmp_gt_i32 vcc, 0, v{R}",
            f"v_cvt_pk_bf16_f32 v{T0}, v{T0}, v{T1}",
            f"v_cvt_pk_bf16_f32 v{T2}, v{T2}, v{T2}",
            f"v_and_b32 v{T1}, v{V_MHI}, v{T0}",
            f"v_lshlrev_b32 v{T0}, 16, v{T0}",
            f"v_and_b32 v{T2}, v{V_MHI}, v{T2}",
        ]
    stage3 = [
        f"v_mul_f32 v{T0}, v{T0}, v{V_RADV}",
        f"v_mul_f32 v{T1}, v{T1}, v{V_RADV}",
        f"v_mul_f32 v{T2}, v{T2}, v{V_RADV}",
        f"v_cvt_pk_bf16_f32 v{U0}, v{T0}, v{T1}",
        f"v_cvt_pk_bf16_f32 v{U1}, v{T2}, 0",
        f"v_cndmask_b32 v{U0}, v{U0}, 0, vcc",
        f"v_cndmask_b32 v{U1}, v{U1}, v{V_RADV}, vcc",
    ]

    def fetch_batch(tag):
        a(f"""
        v_add_u32 v{T2}, s{S_D8}, v{V_RADDR}
        s_add_u32 s{S_T+1}, s{S_POS}, 64
        s_cmp_ge_u32 s{S_NEXT}, s{S_T+1}
        s_cbranch_scc1 K3_same{tag}
        K3_cross{tag}:
        s_add_u32 s{S_BIN}, s{S_BIN}, 1
        s_mov_b32 m0, s{S_BIN}
        s_sub_u32 s{S_T}, s{S_NEXT}, s{S_POS}
        s_movrels_b32 s{S_NEXT}, s{S_R}
        v_cmp_le_u32 vcc, s{S_T}, v{V_LANE}
        s_lshr_b32 s{S_D8}, s{S_NEXT}, 16
        s_lshl_b32 s{S_D8}, s{S_D8}, 3
        s_and_b32 s{S_NEXT}, s{S_NEXT}, 0xffff
        v_add_u32 v{V_OFF}, s{S_D8}, v{V_RADDR}
        v_cndmask_b32 v{T2}, v{T2}, v{V_OFF}, vcc
        s_cmp_lt_u32 s{S_NEXT}, s{S_T+1}
        s_cbranch_scc1 K3_cross{tag}
        K3_same{tag}:
        ds_read_b64 v[{V_RN}:{V_RN+1}], v{T2} offset:{RECS}
        v_add_u32 v{V_RADDR}, 512, v{V_RADDR}
        s_mov_b32 s{S_POS}, s{S_T+1}""")

    def issue(L):
        o = V_O + 2 * ((L // 2) % 2) + L % 2
        raw = V_RAW + 4 * (L % 8)
        a(f"v_add_u32 v{o}, v{o}, v{V_L16}")
        a(f"buffer_load_dwordx4 v[{raw}:{raw+3}], v{o}, s[{S_H}:{S_H+3}], 0 offen {cfg['row_load']}")

    def o_read(j):
        o = V_O + 2 * (j % 2)
        a(f"ds_read_b64 v[{o}:{o+1}], v{V_OADDR} offset:{32 * (j % 8)}")

    def o_write():
        a(f"v_and_b32 v{V_OFF}, s{S_MASK}, v{R}\nds_write_b32 v{V_RINGO}, v{V_OFF}")

    def a_read(g):
        a(f"ds_read2_b64 v[{V_A}:{V_A+3}], v{V_AADDR} offset0:{16*g} offset1:{16*g+1}")

    def read_step(j):
        return (2 * j - D) // 2 * 2 - 2

    PROG = FLAG + 16
    if cfg["prio"]:
        a(f"""
        s_lshl_b32 s{S_T}, s{S_WAVE}, 2
        s_add_u32 s{S_PF}, s{S_T}, {PROG}
        s_xor_b32 s{S_T}, s{S_T}, 16
        s_add_u32 s{S_NMAX}, s{S_T}, {PROG}""")
    if cfg["pf"]:
        a("s_waitcnt vmcnt(0)")
    fetch_batch("0")
    a("s_waitcnt lgkmcnt(0)")
    for s in stage1[:5]:
        a(s)
    o_write()
    for j in range(8):
        if read_step(j) >= 0:
            break
        o_read(j)
        nxt = [L for L in (2 * j, 2 * j + 1) if L < D]
        if nxt:
            a("s_waitcnt lgkmcnt(0)")
            for L in nxt:
                issue(L)
    for s in stage1[5:] + stage2 + stage3:
        a(s)
    a(f"ds_write_b64 v{V_RINGW}, v[{V_S}:{V_S+1}]\nv_mov_b32 v{V_IC}, v{V_IN}")
    a_read(0)

    body = Asm()
    a_main = a
    fill = {i: [] for i in range(16)}
    fill[2] = stage1[:5]
    rest = stage1[5:] + stage2 + stage3
    steps = list(range(3, 14))
    for n, s in enumerate(rest):
        fill[steps[n * len(steps) // len(rest)]].append(s)
    a = body
    for i in range(16):
        if i and i % cfg["exit_every"] == 0:
            a(f"s_cmp_le_i32 s{S_N}, {4*i-64}\ns_cbranch_scc1 K3_drain")
        if i % 2 == 0:
            a(f"s_waitcnt lgkmcnt(0)\nv_mfma_f32_32x32x16_bf16 v[{V_F}:{V_F+15}], v[{V_A}:{V_A+3}], v[{V_BW}:{V_BW+3}], 0")
            if i == 0:
                a(f"s_sub_u32 s{S_N}, s{S_N}, 64")
                fetch_batch("1")
            if cfg["prio"] and i == 0:
                a(f"""
                v_mov_b32 v{T0}, s{S_PF}
                v_mov_b32 v{T1}, s{S_N}
                v_mov_b32 v{T3}, s{S_NMAX}
                ds_write_b32 v{T0}, v{T1}
                ds_read_b32 v{T3}, v{T3}""")
            if cfg["prio"] and i == 2:
                a(f"""
                v_readfirstlane_b32 s{S_T}, v{T3}
                s_cmp_gt_i32 s{S_N}, s{S_T}
                s_cbranch_scc1 K3_behind
                s_setprio 0
                s_branch K3_prio
                K3_behind:
                s_setprio 1
                K3_prio:""")
            if i == 14:
                a(f"ds_write_b64 v{V_RINGW}, v[{V_S}:{V_S+1}]")
            a_read((i // 2 + 1) % 8)
        n = D - 1
        raw = V_RAW + 4 * (i % 8)
        a(f"""
        s_waitcnt vmcnt({n})
        v_mfma_f32_16x16x32_bf16 v[{V_H}:{V_H+3}], v[{V_AU}:{V_AU+3}], v[{raw}:{raw+3}], 0
        v_mfma_f32_16x16x32_bf16 v[{V_H+4}:{V_H+7}], v[{V_AU+4}:{V_AU+7}], v[{raw}:{raw+3}], 0""")
        issue(i + D)
        for j in range(16):
            if read_step(j) == i:
                if j == 8:
                    o_write()
                o_read(j)
        a(f"v_readlane_b32 s{S_I}, v{V_IC}, {4*i}\nv_readlane_b32 s{S_I+1}, v{V_IC}, {4*i+2}")
        for s in fill[i]:
            a(s)
        for j in range(4):
            f = V_F + 2 * (4 * (i % 2) + j)
            a([f"s_set_gpr_idx_on s{S_I}, gpr_idx(SRC2,DST)", f"s_lshr_b32 m0, s{S_I}, 16",
               f"s_mov_b32 m0, s{S_I+1}", f"s_lshr_b32 m0, s{S_I+1}, 16"][j])
            a(f"v_pk_fma_f32 v[{ACC}:{ACC+1}], v[{V_H+2*j}:{V_H+2*j+1}], v[{f}:{f+1}], v[{ACC}:{ACC+1}]")
        a("s_set_gpr_idx_off")
    a(f"""
    v_mov_b32 v{V_IC}, v{V_IN}
    s_cmp_gt_i32 s{S_N}, 0
    s_cbranch_scc1 K3_batch""")
    a = a_main
    lines, added = pad(body.lines)
    again, extra = pad(lines, before=lines)
    assert extra == 0
    print(f"sweep loop: {len(lines)} instructions, {added} padded wait states", file=sys.stderr)
    a("K3_batch:")
    a.lines += lines
    a(f"""
    K3_drain:
    s_waitcnt vmcnt(0) lgkmcnt(0)
    K3_swept:
    s_mov_b32 s{S_R+NS}, 0
    s_mov_b32 s{S_R+NS+1}, 0
    s_waitcnt lgkmcnt(0)
    s_cmp_lg_u32 s{S_MORE}, 0
    s_cbranch_scc1 K3_round""")
    stamp(a, cfg, S_WS, 4, P, 98, S_STAMP)

    st = cfg["out_store"]
    a(f"""
    v_and_b32 v7, 15, v{V_LANE}
    v_lshrrev_b32 v8, 4, v{V_LANE}
    v_lshlrev_b32 v7, 4, v7
    v_lshl_add_u32 v7, v8, 19, v7
    s_lshl_b32 s{S_T}, s{S_WAVE}, 8
    s_add_u32 s{S_T}, s{S_T}, s{S_B}
    s_lshl_b32 s{S_T}, s{S_T}, 8""")
    for i in range(20):
        t = P + 4 * (i % 8)
        for k in range(4):
            r = min(4 * i + k, 78)
            a(f"v_cvt_pk_bf16_f32 v{t+k}, v{ACC+2*r}, v{ACC+2*r+1}")
        a(f"""
        s_nop 0
        v_permlane32_swap_b32 v{t}, v{t+2}
        v_permlane32_swap_b32 v{t+1}, v{t+3}
        s_nop 1
        v_permlane16_swap_b32 v{t}, v{t+1}
        v_permlane16_swap_b32 v{t+2}, v{t+3}
        buffer_store_dwordx4 v[{t}:{t+3}], v7, s[{S_OUT}:{S_OUT+3}], s{S_T} offen {st}
        s_add_u32 s{S_T}, s{S_T}, {4 << 19}""")
    if cfg["stamps"]:
        a("s_waitcnt vmcnt(0)")
        stamp(a, cfg, S_WS, 5, P, 98, S_STAMP)
    a("K3_end:\ns_endpgm")
    return lds


def descriptor(name, vgpr, sgpr):
    return f""".p2align 6
.amdhsa_kernel {name}
  .amdhsa_next_free_vgpr {vgpr}
  .amdhsa_next_free_sgpr {sgpr}
  .amdhsa_accum_offset {(vgpr + 3) // 4 * 4}
  .amdhsa_group_segment_fixed_size 0
  .amdhsa_kernarg_size 96
  .amdhsa_user_sgpr_count 2
  .amdhsa_user_sgpr_kernarg_segment_ptr 1
  .amdhsa_system_sgpr_workgroup_id_x 1
  .amdhsa_float_denorm_mode_32 3
.end_amdhsa_kernel
"""


DEFAULT = dict(stamps=0, ns=34, dpl=5, rec_load="", capb=104, k1_load="nt", k1_store="sc1", out_store="nt", dbg=0, row_load="", prio=1, mask_rec=0, exit_every=4, rot=5, ahead=1, const_ell=0, pf=0, pf_base=0, k1_bit=3, k1_path=0)


def generate(**kw):
    cfg = dict(DEFAULT)
    cfg.update(kw)
    a = Asm()
    lds1 = gen_bucket(a, cfg)
    lds3 = gen_sweep(a, cfg)
    a.lines, added = pad("\n".join(a.lines).split("\n"))
    print(f"{added} wait states padded outside the loop", file=sys.stderr)
    ref = open("standalone__molecular_angular_dimenet__graph.s.ref").read().split("\n")
    head = [ln for ln in ref if ln.startswith(";   offset") or ln.startswith("; Kernarg")]
    head += [
        "; Launch 1 sorts 10240-triplet chunks by destination bucket and builds the radial table;",
        "; launch 2 accumulates one bucket per workgroup, visiting the source rows in increasing order.",
        f"; @launch kernel=bucket_kernel grid=({NCHUNK},1,1) block=(1024,1,1) lds={lds1}",
        f"; @launch kernel=sweep_kernel grid=(256,1,1) block=(512,1,1) lds={lds3}",
        '.amdgcn_target "amdgcn-amd-amdhsa--gfx950"',
        ".text",
    ]
    tail = '.section .rodata,"a"\n' + descriptor("bucket_kernel", 96, 56) + descriptor("sweep_kernel", 256, 100)
    return "\n".join(head) + "\n" + a.text() + tail


if __name__ == "__main__":
    out = sys.argv[1]
    kw = {}
    for arg in sys.argv[2:]:
        k, v = arg.split("=", 1)
        kw[k] = type(DEFAULT[k])(int(v)) if isinstance(DEFAULT[k], (bool, int)) else v
    open(out, "w").write(generate(**kw))
```

```python
import struct
import sys

from hazard import pad

E = 160000
T = 2560000
CHUNK = 10240
NCHUNK = T // CHUNK
H_BYTES = E * 256

WS_REC = 0
WS_TAB = 0x1480000
WS_END = WS_TAB + NCHUNK * 1024
WS_STAMP = 0x1500000


def f32bits(x):
    return struct.unpack("<I", struct.pack("<f", x))[0]


INV2PI = 0.15915494309189535
C_HI = f32bits(INV2PI) & 0xFFFFFF00
C_LO = f32bits(INV2PI - struct.unpack("<f", struct.pack("<I", C_HI))[0])


class Asm:
    def __init__(self):
        self.lines = []

    def __call__(self, text):
        for ln in text.strip("\n").split("\n"):
            ln = ln.strip()
            if not ln:
                continue
            self.lines.append(ln if ln.endswith(":") else "    " + ln)

    def raw(self, text):
        self.lines.append(text)

    def text(self):
        return "\n".join(self.lines) + "\n"


def srd(a, d, lo, hi, nbytes):
    a(f"""
    s_mov_b32 s{d}, s{lo}
    s_mov_b32 s{d+1}, s{hi}
    s_mov_b32 s{d+2}, {nbytes}
    s_mov_b32 s{d+3}, 0x20000""")


def wave_scan(a, x):
    for sh in (1, 2, 4, 8):
        a(f"v_add_u32_dpp v{x}, v{x}, v{x} row_shr:{sh} row_mask:0xf bank_mask:0xf bound_ctrl:0")
    a(f"v_add_u32_dpp v{x}, v{x}, v{x} row_bcast:15 row_mask:0xa bank_mask:0xf")
    a(f"v_add_u32_dpp v{x}, v{x}, v{x} row_bcast:31 row_mask:0xc bank_mask:0xf")


def stamp(a, cfg, srd_ws, slot, vtmp, s0, swave_off):
    if not cfg["stamps"]:
        return
    a(f"""
    s_memrealtime s[{s0}:{s0+1}]
    s_waitcnt lgkmcnt(0)
    v_mov_b32 v{vtmp}, s{s0}
    v_mov_b32 v{vtmp+1}, {slot*4}
    s_mov_b64 exec, 1
    buffer_store_dword v{vtmp}, v{vtmp+1}, s[{srd_ws}:{srd_ws+3}], s{swave_off} offen
    s_mov_b64 exec, -1""")


def gen_bucket(a, cfg):
    HIST, BASE, TBL = 0, 1024, 2048
    RECS = TBL
    HALF = E // 2
    NDMA = -(-HALF * 2 // 1024)
    S_JI, S_KJ, S_TH, S_WS, S_D = 16, 20, 24, 28, 36
    S_W = 15
    ws_size = WS_STAMP + 0x100000 if cfg["stamps"] else WS_END
    st = cfg["k1_store"]
    a.raw(".p2align 8\n.globl bucket_kernel\n.type bucket_kernel,@function\nbucket_kernel:")
    a(f"""
    s_cmp_ge_u32 s2, {NCHUNK}
    s_cbranch_scc1 K1_end
    s_load_dwordx4 s[4:7], s[0:1], 16
    s_load_dwordx2 s[8:9], s[0:1], 32
    s_load_dwordx2 s[10:11], s[0:1], 88
    s_load_dwordx2 s[44:45], s[0:1], 8
    v_readfirstlane_b32 s{S_W}, v0
    v_lshlrev_b32 v1, 4, v0
    v_lshlrev_b32 v2, 3, v0
    v_lshlrev_b32 v3, 2, v0
    s_lshr_b32 s{S_W}, s{S_W}, 6
    s_mul_i32 s12, s2, {CHUNK*4}
    s_add_u32 s13, s12, 16384
    s_add_u32 s14, s12, 32768
    s_mul_i32 s32, s2, {CHUNK*2}
    s_add_u32 s33, s32, 8192
    s_add_u32 s34, s32, 16384
    v_mov_b32 v34, 0
    v_and_b32 v35, 0x3fc, v3
    v_mov_b32 v36, 1
    v_and_b32 v37, 0x3f0, v1
    s_mov_b32 s48, 0xfe
    ds_write_b32 v35, v34 offset:{HIST}
    s_waitcnt lgkmcnt(0)""")
    srd(a, S_JI, 8, 9, T * 4)
    srd(a, S_KJ, 6, 7, T * 4)
    srd(a, S_TH, 4, 5, T * 2)
    srd(a, S_WS, 10, 11, ws_size)
    srd(a, S_D, 44, 45, E * 2)
    if cfg["stamps"]:
        a(f"""
        s_lshl_b32 s41, s2, 4
        s_add_u32 s40, s{S_W}, s41
        s_lshl_b32 s40, s40, 5
        s_add_u32 s40, s40, {WS_STAMP}""")
    stamp(a, cfg, S_WS, 0, 90, 42, 40)
    ld = cfg["k1_load"]
    JI = [4 + i for i in range(10)]
    KJ = [16 + i for i in range(10)]
    BK = [60 + i for i in range(10)]
    RK = [70 + i for i in range(10)]
    R0 = [40 + 2 * i for i in range(10)]
    DV = [80 + i for i in range(10)]

    def stage(piece):
        a(f"""
        s_lshr_b32 s35, s2, 3
        s_mul_i32 s35, s35, {cfg["rot"]}
        s_add_u32 s35, s35, s{S_W}
        s_lshl_b32 s35, s35, 10""")
        for i in range(10):
            a(f"""
            s_cmp_ge_u32 s35, {160*1024}
            s_cselect_b32 s46, {160*1024}, 0
            s_sub_u32 s35, s35, s46
            s_min_u32 s46, s35, {(NDMA - 1) * 1024}
            s_add_u32 m0, s46, {TBL}
            s_add_u32 s46, s46, {piece * HALF * 2}
            buffer_load_dwordx4 v37, s[{S_D}:{S_D+3}], s46 offen lds""")
            if i < 9:
                a("s_add_u32 s35, s35, 16384")

    def kj_loads():
        a(f"""
        buffer_load_dwordx4 v[16:19], v1, s[{S_KJ}:{S_KJ+3}], s12 offen {ld}
        buffer_load_dwordx4 v[20:23], v1, s[{S_KJ}:{S_KJ+3}], s13 offen {ld}
        buffer_load_dwordx2 v[24:25], v2, s[{S_KJ}:{S_KJ+3}], s14 offen {ld}""")

    def ji_loads():
        a(f"""
        buffer_load_dwordx4 v[4:7], v1, s[{S_JI}:{S_JI+3}], s12 offen {ld}
        buffer_load_dwordx4 v[8:11], v1, s[{S_JI}:{S_JI+3}], s13 offen {ld}
        buffer_load_dwordx2 v[12:13], v2, s[{S_JI}:{S_JI+3}], s14 offen {ld}""")

    def th_loads():
        a(f"""
        buffer_load_dwordx2 v[28:29], v2, s[{S_TH}:{S_TH+3}], s32 offen {ld}
        buffer_load_dwordx2 v[30:31], v2, s[{S_TH}:{S_TH+3}], s33 offen {ld}
        buffer_load_dword v32, v3, s[{S_TH}:{S_TH+3}], s34 offen {ld}""")

    def kj_prep():
        for i in range(10):
            a(f"v_lshlrev_b32 v{R0[i]}, 8, v{KJ[i]}\nv_lshlrev_b32 v{KJ[i]}, 1, v{KJ[i]}")

    def look(piece):
        for i in range(10):
            if piece == 0:
                a(f"v_cmpx_gt_u32 vcc, s47, v{KJ[i]}\nds_read_u16 v{DV[i]}, v{KJ[i]} offset:{TBL}\ns_mov_b64 exec, -1")
            else:
                a(f"v_cmpx_le_u32 vcc, s47, v{KJ[i]}\nv_subrev_u32 v{KJ[i]}, s47, v{KJ[i]}\nds_read_u16 v{DV[i]}, v{KJ[i]} offset:{TBL}\ns_mov_b64 exec, -1")

    def count(younger):
        for lo, hi, n in ((0, 4, 2), (4, 8, 1), (8, 10, 0)):
            a(f"s_waitcnt vmcnt({n + younger})")
            for i in range(lo, hi):
                a(f"v_lshlrev_b32_sdwa v{BK[i]}, 2, v{JI[i]} dst_sel:DWORD dst_unused:UNUSED_PAD src0_sel:DWORD src1_sel:BYTE_0")
            for i in range(lo, hi):
                a(f"ds_add_rtn_u32 v{RK[i]}, v{BK[i]}, v36 offset:{HIST}")

    def build(younger):
        for i in range(10):
            a(f"""
            v_lshrrev_b32 v38, 10, v{JI[i]}
            v_bfe_u32 v39, v{JI[i]}, 8, 3
            v_and_or_b32 v38, v38, s48, v{R0[i]}
            v_lshl_or_b32 v{R0[i]}, v39, 26, v38""")
        for lo, hi, n in ((0, 4, 2), (4, 8, 1), (8, 10, 0)):
            a(f"s_waitcnt vmcnt({n + younger})")
            for i in range(lo, hi):
                th = 28 + i // 2
                if i % 2 == 0:
                    a(f"v_and_b32 v{R0[i]+1}, 0xffff, v{th}")
                else:
                    a(f"v_lshrrev_b32 v{R0[i]+1}, 16, v{th}")

    def scan():
        a(f"""
        v_and_b32 v38, 63, v0
        v_lshlrev_b32 v38, 4, v38
        ds_read_b128 v[4:7], v38 offset:{HIST}
        s_waitcnt lgkmcnt(0)
        v_add_u32 v8, v4, v5
        v_add3_u32 v8, v8, v6, v7
        v_mov_b32 v9, v8""")
        wave_scan(a, 9)
        a(f"""
        v_sub_u32 v12, v9, v8
        v_add_u32 v13, v12, v4
        v_add_u32 v14, v13, v5
        v_add_u32 v15, v14, v6
        ds_write_b128 v38, v[12:15] offset:{BASE}""")
        for i in range(10):
            a(f"ds_read_b32 v{BK[i]}, v{BK[i]} offset:{BASE}")
        a("""
        v_lshl_or_b32 v92, v4, 16, v12
        v_lshl_or_b32 v93, v5, 16, v13
        v_lshl_or_b32 v94, v6, 16, v14
        v_lshl_or_b32 v95, v7, 16, v15
        s_waitcnt lgkmcnt(0)""")
        for i in range(10):
            a(f"v_add_lshl_u32 v{BK[i]}, v{BK[i]}, v{RK[i]}, 3")

    ns = 1 if cfg["stamps"] else 0

    def path_a(table_first):
        if table_first:
            stage(0)
            a("s_barrier")
            kj_loads()
        else:
            kj_loads()
            stage(0)
        a("s_barrier")
        ji_loads()
        th_loads()
        a(f"s_waitcnt vmcnt({6 if table_first else 16})")
        kj_prep()
        a("s_waitcnt vmcnt(6)\ns_barrier")
        look(0)
        a("s_waitcnt lgkmcnt(0)\ns_barrier")
        stamp(a, cfg, S_WS, 4, 90, 42, 40)
        count(3 + ns)
        stage(1)
        build(10 + ns)
        a("s_waitcnt lgkmcnt(0)\ns_barrier")
        stamp(a, cfg, S_WS, 1, 90, 42, 40)
        scan()
        a("s_waitcnt vmcnt(0)\ns_barrier")
        stamp(a, cfg, S_WS, 5, 90, 42, 40)
        look(1)
        a("s_waitcnt lgkmcnt(0)\ns_barrier")
        stamp(a, cfg, S_WS, 6, 90, 42, 40)

    def path_b(early_ji):
        stage(0)
        a("s_barrier")
        kj_loads()
        if early_ji:
            a("s_barrier")
            ji_loads()
        a(f"s_waitcnt vmcnt({3 if early_ji else 0})")
        kj_prep()
        a("s_barrier")
        look(0)
        a("s_waitcnt lgkmcnt(0)\ns_barrier")
        stamp(a, cfg, S_WS, 4, 90, 42, 40)
        stage(1)
        a("s_barrier")
        if early_ji:
            th_loads()
            count(13 + ns)
            a("s_waitcnt vmcnt(3) lgkmcnt(0)\ns_barrier")
            look(1)
        else:
            ji_loads()
            th_loads()
            a("s_waitcnt vmcnt(6)\ns_barrier")
            look(1)
            a("s_waitcnt lgkmcnt(0)")
            count(3)
        build(0)
        a("s_waitcnt lgkmcnt(0)\ns_barrier")
        stamp(a, cfg, S_WS, 1, 90, 42, 40)
        scan()
        stamp(a, cfg, S_WS, 5, 90, 42, 40)
        stamp(a, cfg, S_WS, 6, 90, 42, 40)

    a(f"s_mov_b32 s47, {HALF*2}\ns_bitcmp1_b32 s2, {cfg['k1_bit']}\ns_cbranch_scc1 K1_other")
    path_a(False)
    a("s_branch K1_both\nK1_other:")
    if cfg["k1_path"] == 0:
        path_a(True)
    else:
        path_b(cfg["k1_path"] == 2)
    a(f"""
    K1_both:
    s_cmp_lg_u32 s{S_W}, 0
    s_cbranch_scc1 K1_notab
    s_lshl_b32 s35, s2, 10
    s_add_u32 s35, s35, {WS_TAB}
    buffer_store_dwordx4 v[92:95], v38, s[{S_WS}:{S_WS+3}], s35 offen {st}
    K1_notab:""")
    for i in range(10):
        a(f"v_lshl_or_b32 v{R0[i]+1}, v{DV[i]}, 16, v{R0[i]+1}")
        a(f"ds_write_b64 v{BK[i]}, v[{R0[i]}:{R0[i]+1}] offset:{RECS}")
    a("s_waitcnt lgkmcnt(0)\ns_barrier")
    stamp(a, cfg, S_WS, 2, 90, 42, 40)
    a(f"s_mul_i32 s12, s2, {CHUNK*8}")
    a("v_add_u32 v2, 0x10000, v1")
    for k in range(5):
        if k < 4:
            a(f"ds_read_b128 v[{4+4*k}:{7+4*k}], v1 offset:{RECS + k * 16384}")
        else:
            a(f"ds_read_b128 v[{4+4*k}:{7+4*k}], v2 offset:{RECS}")
    for k in range(5):
        a(f"s_waitcnt lgkmcnt({4-k})")
        a(f"buffer_store_dwordx4 v[{4+4*k}:{7+4*k}], v1, s[{S_WS}:{S_WS+3}], s12 offen {st}")
        if k < 4:
            a("s_add_u32 s12, s12, 16384")
    if cfg["stamps"]:
        a("s_waitcnt vmcnt(0)")
        stamp(a, cfg, S_WS, 3, 90, 42, 40)
    a("K1_end:\ns_endpgm")
    return TBL + NDMA * 1024


def gen_sweep(a, cfg):
    NS = cfg["ns"]
    NSL = NS + 2
    PIECE = 63
    D = cfg["dpl"]
    SHIFT = 21
    NBLK = -(-E // 8192)
    CAPB = cfg["capb"]
    KMASK = 255 << 2
    CUR, BASE, FLAG, ZERO, RING, RINGO, RECS = 0, 1024, 4096, 4352, 5632, 13824, 16384
    CAP = max(8 * (NS * PIECE + 79), 8 * NBLK * CAPB)
    lds = RECS + CAP * 8 + 512
    assert lds <= 163840 and 2 <= D <= 7

    ACC = 98
    V_LANE, V_TOFF, V_BW, V_TLEN = 0, 1, 2, 6
    V_L8, V_ONE, P = 7, 8, 10
    TK = P + 2 * NSL
    G = 6
    V_SL, V_SO, V_PF = TK + 2 * G, TK + 2 * G + 1, TK + 2 * G + 2
    V_RADDR, V_AADDR, V_RINGW = 7, 8, 9
    V_RAW, V_F, V_H, V_A, V_AU, V_O, V_RN, V_S, V_T = 10, 42, 58, 66, 70, 78, 82, 84, 86
    V_IC, V_IN, V_RADV, V_MHI, V_L16, V_RINGO, V_OADDR, V_OFF = 90, 91, 92, 93, 94, 95, 96, 97
    S_H, S_OUT, S_WS, S_D = 4, 8, 12, 76
    S_B, S_WAVE, S_SEG, S_REM, S_OFF, S_MORE, S_N, S_START = 16, 17, 18, 19, 20, 21, 22, 23
    S_ELL, S_CHI, S_CLO, S_MASK, S_MODE, S_NMAX, S_T = 24, 27, 28, 29, 30, 31, 32
    S_FREQ, S_PF = 34, 35
    S_BIN, S_POS, S_NEXT, S_D8 = 39, 70, 71, 72
    S_I = 36
    S_R = 40
    S_STAMP = 96
    ws_size = WS_STAMP + 0x100000 if cfg["stamps"] else WS_END

    a.raw(".p2align 8\n.globl sweep_kernel\n.type sweep_kernel,@function\nsweep_kernel:")
    a(f"""
    s_cmp_ge_u32 s2, 256
    s_cbranch_scc1 K3_end
    s_load_dwordx2 s[86:87], s[0:1], 88
    s_load_dwordx4 s[80:83], s[0:1], 0
    s_load_dwordx2 s[84:85], s[0:1], 40
    s_load_dwordx4 s[88:91], s[0:1], 48
    s_load_dwordx4 s[92:95], s[0:1], 64
    v_readfirstlane_b32 s{S_WAVE}, v0
    s_and_b32 s{S_B}, s2, 7
    s_lshl_b32 s{S_B}, s{S_B}, 5
    s_lshr_b32 s{S_T}, s2, 3
    s_add_u32 s{S_B}, s{S_B}, s{S_T}
    s_lshr_b32 s{S_WAVE}, s{S_WAVE}, 6
    v_lshlrev_b32 v{P}, 5, v0
    v_and_b32 v{V_LANE}, 63, v0
    v_mov_b32 v{P+2}, 0
    v_mov_b32 v{P+3}, 0
    v_mov_b32 v{P+4}, 0
    v_mov_b32 v{P+5}, 0
    ds_write_b128 v{P}, v[{P+2}:{P+5}] offset:{FLAG}
    ds_write_b128 v{P}, v[{P+2}:{P+5}] offset:{FLAG+16}
    s_lshl_b32 s{S_T}, s{S_WAVE}, 5
    v_add_u32 v{V_TOFF}, s{S_T}, v{V_LANE}
    v_lshlrev_b32 v{P+1}, 10, v{V_TOFF}
    v_and_b32 v{P+6}, 15, v{V_LANE}
    v_lshrrev_b32 v{P+7}, 4, v{V_LANE}
    v_lshl_add_u32 v{P+6}, v{P+6}, 2, v{P+7}
    v_lshlrev_b32 v{P+6}, 2, v{P+6}
    s_lshl_b32 s{S_T}, s{S_B}, 2
    s_add_u32 s{S_T}, s{S_T}, {WS_TAB}
    s_waitcnt lgkmcnt(0)""")
    srd(a, S_WS, 86, 87, ws_size)
    a(f"""
    v_mov_b32 v{V_TLEN}, 0
    s_bfm_b64 exec, 32, 0
    buffer_load_dword v{V_TLEN}, v{P+1}, s[{S_WS}:{S_WS+3}], s{S_T} offen
    s_mov_b64 exec, -1""")
    a(f"s_load_dwordx2 s[{S_ELL}:{S_ELL+1}], s[88:89], 0\ns_load_dword s{S_FREQ}, s[84:85], 0")
    SA, SB = P + 2 * NS, P + 2 * NS + 2
    srd(a, S_H, 90, 91, 768)
    srd(a, S_OUT, 92, 93, 256)
    srd(a, S_D, 82, 83, E * 2)
    a(f"""
    buffer_load_dword v{P+8}, v{P+6}, s[{S_H}:{S_H+3}], 0 offen
    buffer_load_dword v{P+9}, v{P+6}, s[{S_H}:{S_H+3}], 0 offen offset:256
    buffer_load_dword v{P+10}, v{P+6}, s[{S_H}:{S_H+3}], 0 offen offset:512
    buffer_load_dword v{P+11}, v{P+6}, s[{S_OUT}:{S_OUT+3}], 0 offen
""")
    srd(a, S_H, 80, 81, 0 if cfg["dbg"] & 1 else H_BYTES)
    srd(a, S_OUT, 94, 95, H_BYTES)

    if cfg["stamps"]:
        a(f"""
        s_lshl_b32 s{S_STAMP}, s2, 3
        s_add_u32 s{S_STAMP}, s{S_STAMP}, s{S_WAVE}
        s_lshl_b32 s{S_STAMP}, s{S_STAMP}, 5
        s_add_u32 s{S_STAMP}, s{S_STAMP}, {WS_STAMP + 0x40000}""")
    a(f"""
    s_mov_b32 s{S_CHI}, {C_HI:#x}
    s_mov_b32 s{S_CLO}, {C_LO:#x}
    s_mov_b32 s{S_MASK}, 0x03ffff00
    s_mov_b32 s{S_MODE}, 0xc000
    s_mov_b32 s{S_T}, {CHUNK*8}
    v_cmp_gt_u32 vcc, {NCHUNK}, v{V_TOFF}
    v_mul_lo_u32 v{V_TOFF}, v{V_TOFF}, s{S_T}
    s_mov_b32 s{S_SEG}, 0
    s_mov_b32 s{S_REM}, 0
    s_mov_b32 s{S_OFF}, 0""")
    a(f"""
    s_lshl_b32 s{S_T}, s{S_WAVE}, 8
    s_add_u32 s{S_T}, s{S_T}, s{S_B}
    s_lshl_b32 s{S_T}, s{S_T}, 8
    s_lshl_b32 s{S_T+1}, s{S_WAVE}, 26
    s_or_b32 s{S_T}, s{S_T}, s{S_T+1}
    s_bitset1_b32 s{S_T}, 31
    s_mov_b32 s{S_T+1}, {(1 << 19) + 2}
    v_mul_lo_u32 v{SA}, v{V_LANE}, s{S_T+1}
    v_add_u32 v{SA}, s{S_T}, v{SA}
    v_add_u32 v{SB}, {40 * ((1 << 19) + 2)}, v{SA}
    s_mov_b32 s{S_R+NS}, 40
    s_cmp_eq_u32 s{S_WAVE}, 0
    s_cselect_b32 s{S_R+NS+1}, 39, 38""")
    for i in range(158):
        a(f"v_mov_b32 v{ACC+i}, 0")
    a(f"""
    s_waitcnt lgkmcnt(0)
    s_and_b32 s{S_ELL+2}, s{S_ELL}, 0xffff0000
    s_lshl_b32 s{S_ELL}, s{S_ELL}, 16
    s_lshl_b32 s{S_T}, s{S_ELL+1}, 16
    s_mov_b32 s{S_ELL+1}, s{S_ELL+2}
    s_mov_b32 s{S_ELL+2}, s{S_T}
    s_mov_b32 s{S_T}, 0x05040100
    s_mov_b32 s{S_T+1}, 0x07060302
    s_lshl_b32 s{S_FREQ}, s{S_FREQ}, 16
    s_waitcnt vmcnt(0)
    v_perm_b32 v{V_BW}, v{P+9}, v{P+8}, s{S_T}
    v_perm_b32 v{V_BW+1}, v{P+11}, v{P+10}, s{S_T}
    v_perm_b32 v{V_BW+2}, v{P+9}, v{P+8}, s{S_T+1}
    v_perm_b32 v{V_BW+3}, v{P+11}, v{P+10}, s{S_T+1}
    v_cndmask_b32 v{V_TLEN}, 0, v{V_TLEN}, vcc
    v_and_b32 v{P+1}, 0xffff, v{V_TLEN}
    v_lshl_add_u32 v{V_TOFF}, v{P+1}, 3, v{V_TOFF}
    v_lshrrev_b32 v{V_TLEN}, 16, v{V_TLEN}""")
    stamp(a, cfg, S_WS, 0, P, 98, S_STAMP)

    a(f"""
    K3_round:
    v_lshlrev_b32 v{V_L8}, 3, v{V_LANE}
    v_mov_b32 v{V_ONE}, 1""")
    rl = cfg["rec_load"]

    a(f"""
    s_mov_b32 s{S_I+2}, {2 * PIECE}
    v_mov_b32 v{V_SL}, v{V_TLEN}
    v_mov_b32 v{V_SO}, v{V_TOFF}
    v_cmp_lt_u32 vcc, {PIECE}, v{V_TLEN}
    v_cmp_lt_u32 s[{S_T}:{S_T+1}], s{S_I+2}, v{V_TLEN}
    s_bcnt1_i32_b32 s{S_I}, vcc_lo
    s_or_b32 s{S_T}, s{S_T}, s{S_SEG}
    s_cbranch_scc1 K3_general
    s_cmp_gt_u32 s{S_I}, {NS - 32}
    s_cbranch_scc1 K3_general
    s_mov_b32 s{S_SEG}, 32
    s_mov_b32 s{S_I}, vcc_lo
    K3_spill:
    s_cmp_eq_u32 s{S_I}, 0
    s_cbranch_scc1 K3_listed
    s_ff1_i32_b32 s{S_I+1}, s{S_I}
    s_bitset0_b32 s{S_I}, s{S_I+1}
    v_readlane_b32 s{S_T}, v{V_TLEN}, s{S_I+1}
    v_readlane_b32 s{S_T+1}, v{V_TOFF}, s{S_I+1}
    s_mov_b32 m0, s{S_I+1}
    s_sub_u32 s{S_T}, s{S_T}, {PIECE}
    v_writelane_b32 v{V_SL}, {PIECE}, m0
    s_bcnt1_i32_b32 s{S_I+1}, s{S_I}
    s_add_u32 m0, s{S_I+1}, 32
    s_add_u32 s{S_T+1}, s{S_T+1}, {PIECE*8}
    v_writelane_b32 v{V_SL}, s{S_T}, m0
    v_writelane_b32 v{V_SO}, s{S_T+1}, m0
    s_branch K3_spill
    K3_general:
    s_mov_b32 s{S_I}, 0
    K3_slot:
    s_cmp_lg_u32 s{S_REM}, 0
    s_cbranch_scc1 K3_have
    K3_adv:
    s_cmp_ge_u32 s{S_SEG}, 32
    s_cbranch_scc1 K3_have
    v_readlane_b32 s{S_REM}, v{V_TLEN}, s{S_SEG}
    v_readlane_b32 s{S_OFF}, v{V_TOFF}, s{S_SEG}
    s_add_u32 s{S_SEG}, s{S_SEG}, 1
    s_cmp_eq_u32 s{S_REM}, 0
    s_cbranch_scc1 K3_adv
    K3_have:
    s_min_u32 s{S_T}, s{S_REM}, {PIECE}
    s_mov_b32 m0, s{S_I}
    s_mov_b32 s{S_T+1}, s{S_OFF}
    v_writelane_b32 v{V_SL}, s{S_T}, m0
    v_writelane_b32 v{V_SO}, s{S_T+1}, m0
    s_sub_u32 s{S_REM}, s{S_REM}, s{S_T}
    s_add_u32 s{S_OFF}, s{S_OFF}, {PIECE*8}
    s_add_u32 s{S_I}, s{S_I}, 1
    s_cmp_lt_u32 s{S_I}, {NS}
    s_cbranch_scc1 K3_slot
    K3_listed:""")

    at = cfg['self_at']
    order = list(range(at)) + [NS, NS + 1] + list(range(at, NS))
    groups = [order[i:i + G] for i in range(0, NSL, G)]
    vm = []

    def loads(gi):
        ks = [k for k in groups[gi] if k < NS]
        for n0 in range(0, len(ks), 3):
            for n, k in enumerate(ks[n0:n0 + 3]):
                a(f"v_readlane_b32 s{S_I+n}, v{V_SO}, {k}")
            for n, k in enumerate(ks[n0:n0 + 3]):
                a(f"v_readlane_b32 s{S_R+k}, v{V_SL}, {k}")
            for n, k in enumerate(ks[n0:n0 + 3]):
                if cfg["mask_rec"]:
                    a(f"s_max_u32 s{S_T+1}, s{S_R+k}, 1\ns_bfm_b64 exec, s{S_T+1}, 0")
                a(f"buffer_load_dwordx2 v[{P+2*k}:{P+2*k+1}], v{V_L8}, s[{S_WS}:{S_WS+3}], s{S_I+n} offen {rl}")
                vm.append(k)
        if NS in groups[gi]:
            a(f"""
            s_mov_b64 exec, -1
            s_lshl_b32 s{S_T}, s{S_WAVE}, 8
            s_add_u32 s{S_T}, s{S_T}, s{S_B}
            s_lshl_b32 s{S_T}, s{S_T}, 1
            s_add_u32 s{S_T+1}, s{S_T}, {40 * 4096}
            v_lshlrev_b32 v9, 12, v{V_LANE}
            s_bfm_b64 exec, 40, 0
            buffer_load_ushort v{SA+1}, v9, s[{S_D}:{S_D+3}], s{S_T} offen
            buffer_load_ushort v{SB+1}, v9, s[{S_D}:{S_D+3}], s{S_T+1} offen""")
            vm.extend([NS, NS + 1])
        a("s_mov_b64 exec, -1")

    AH = cfg["ahead"]
    for gi in range(AH):
        loads(gi)

    def bin_start(dst, tmp_):
        a(f"""
        s_mul_i32 s{S_T}, s{S_WAVE}, {NBLK * CAPB}
        v_min_u32 v{tmp_}, {NBLK}, v{V_LANE}
        v_mul_u32_u24 v{tmp_}, {CAPB}, v{tmp_}
        v_add_u32 v{dst}, s{S_T}, v{tmp_}""")

    bin_start(TK + 1, TK + 1)
    a(f"""
    s_lshl_b32 s{S_T}, s{S_WAVE}, 7
    v_lshl_add_u32 v{TK}, v{V_LANE}, 2, s{S_T}
    s_bfm_b64 exec, 32, 0
    ds_write_b32 v{TK}, v{TK+1} offset:{CUR}
    s_mov_b64 exec, -1
    v_cmp_le_u32 vcc, s{S_SEG}, v{V_LANE}
    v_cmp_lt_u32 s[{S_T}:{S_T+1}], 0, v{V_TLEN}
    s_and_b32 s{S_T}, s{S_T}, vcc_lo
    s_or_b32 s{S_T}, s{S_T}, s{S_REM}
    s_waitcnt lgkmcnt(0)
    s_barrier
    s_cmp_eq_u32 s{S_T}, 0
    s_cbranch_scc1 K3_nomore
    v_mov_b32 v{V_PF}, {FLAG}
    ds_write_b32 v{V_PF}, v{V_ONE}
    K3_nomore:""")

    def tmp(gi, j):
        return TK + (gi % 2) * G + j

    def place(cursors, first):
        def keys(gi):
            for j, k in enumerate(groups[gi]):
                if first and k < NS:
                    a(f"s_waitcnt vmcnt({len(vm) - 1 - vm.index(k)})")
                a(f"v_lshrrev_b32 v{tmp(gi, j)}, {SHIFT-2}, v{P+2*k}\nv_and_b32 v{tmp(gi, j)}, {KMASK}, v{tmp(gi, j)}")

        def take(gi):
            for j, k in enumerate(groups[gi]):
                a(f"s_bfm_b64 exec, s{S_R+k}, 0\nds_add_rtn_u32 v{tmp(gi, j)}, v{tmp(gi, j)}, v{V_ONE} offset:{cursors}")
            a("s_mov_b64 exec, -1")

        def move(gi):
            for j, k in enumerate(groups[gi]):
                a(f"v_lshlrev_b32 v{tmp(gi, j)}, 3, v{tmp(gi, j)}")
            if first and NS in groups[gi]:
                a(f"s_waitcnt vmcnt({len(vm) - 1 - vm.index(NS + 1)})\nv_lshlrev_b32 v{SA+1}, 16, v{SA+1}\nv_lshlrev_b32 v{SB+1}, 16, v{SB+1}")
            for j, k in enumerate(groups[gi]):
                a(f"s_bfm_b64 exec, s{S_R+k}, 0\nds_write_b64 v{tmp(gi, j)}, v[{P+2*k}:{P+2*k+1}] offset:{RECS}")
            a("s_mov_b64 exec, -1")

        for gi in range(len(groups)):
            if first and gi + AH < len(groups):
                loads(gi + AH)
            keys(gi)
            if gi:
                a("s_waitcnt lgkmcnt(0)")
            take(gi)
            if gi:
                move(gi - 1)
        a("s_waitcnt lgkmcnt(0)")
        move(len(groups) - 1)
        if first:
            a(f"""
            v_and_b32 v{V_L16}, 15, v{V_LANE}
            v_lshlrev_b32 v{V_L16}, 4, v{V_L16}
            s_lshl_b32 s{S_T}, s{S_WAVE}, 8
            s_add_u32 s{S_T}, s{S_T}, {RINGO}
            v_lshrrev_b32 v9, 4, v{V_LANE}
            v_lshl_add_u32 v{V_OADDR}, v9, 3, s{S_T}
            v_lshrrev_b32 v{V_RINGO}, 3, v{V_LANE}
            v_lshlrev_b32 v{V_RINGO}, 5, v{V_RINGO}
            v_and_b32 v9, 3, v{V_LANE}
            v_lshl_add_u32 v{V_RINGO}, v9, 3, v{V_RINGO}
            v_bfe_u32 v9, v{V_LANE}, 2, 1
            v_lshl_add_u32 v{V_RINGO}, v9, 2, v{V_RINGO}
            v_add_u32 v{V_RINGO}, s{S_T}, v{V_RINGO}""")
        a("s_waitcnt lgkmcnt(0)\ns_barrier")

    place(CUR, True)
    stamp(a, cfg, S_WS, 1, TK, 98, S_STAMP)

    C, X, Y, AD, ST, OWN = TK, TK + 4, TK + 5, TK + 6, TK + 7, TK + 8
    a(f"""
    v_lshlrev_b32 v{AD}, 4, v{V_LANE}
    v_mov_b32 v{X}, {FLAG}
    s_lshl_b32 s{S_T}, s{S_WAVE}, 7
    v_lshl_add_u32 v{OWN}, v{V_LANE}, 2, s{S_T}
    ds_read_b128 v[{C}:{C+3}], v{AD} offset:{CUR}
    ds_read_b32 v{X}, v{X}
    ds_read_b32 v{OWN}, v{OWN} offset:{CUR}
    v_lshrrev_b32 v{Y}, 3, v{V_LANE}
    v_mul_u32_u24 v{Y}, {NBLK}, v{Y}
    v_and_b32 v{ST}, 7, v{V_LANE}
    v_lshlrev_b32 v{ST}, 2, v{ST}
    v_min_u32 v{ST}, {NBLK}, v{ST}
    v_add_u32 v{ST}, v{ST}, v{Y}
    v_mul_u32_u24 v{ST}, {CAPB}, v{ST}
    v_and_b32 v{Y}, 7, v{V_LANE}
    v_cmp_gt_u32 vcc, {NBLK // 4}, v{Y}
    v_mov_b32 v{Y}, {CAPB}
    s_waitcnt lgkmcnt(0)
    v_cndmask_b32 v{Y}, 0, v{Y}, vcc
    v_readfirstlane_b32 s{S_MORE}, v{X}""")
    assert NBLK % 4 == 0
    for q in range(4):
        a(f"v_sub_u32 v{C+q}, v{C+q}, v{ST}")
        if q < 3:
            a(f"v_add_u32 v{ST}, v{ST}, v{Y}")
    a(f"""
    v_max_u32 v{X}, v{C}, v{C+1}
    v_max3_u32 v{X}, v{X}, v{C+2}, v{C+3}
    v_cmp_lt_u32 vcc, {CAPB}, v{X}
    s_cmp_eq_u32 s{S_MORE}, 0
    s_cbranch_scc1 K3_keep
    s_barrier
    v_mov_b32 v{X}, {FLAG}
    v_mov_b32 v{Y}, 0
    ds_write_b32 v{X}, v{Y}
    K3_keep:
    s_cbranch_vccz K3_fits""")

    for q in range(1, 4):
        a(f"v_add_u32 v{C+q}, v{C+q}, v{C+q-1}")
    a(f"v_mov_b32 v{X}, v{C+3}")
    wave_scan(a, X)
    a(f"v_sub_u32 v{Y}, v{X}, v{C+3}")
    for q in range(3, 0, -1):
        a(f"v_add_u32 v{C+q}, v{Y}, v{C+q-1}")
    a(f"""
    v_mov_b32 v{C}, v{Y}
    s_lshl_b32 s{S_T}, s{S_WAVE}, 3
    s_add_u32 s{S_T+1}, s{S_T}, 7
    s_bfm_b64 exec, 8, s{S_T}
    ds_write_b128 v{AD}, v[{C}:{C+3}] offset:{BASE}
    s_mov_b64 exec, -1
    v_readlane_b32 s{S_START}, v{Y}, s{S_T}
    v_readlane_b32 s{S_N}, v{X}, s{S_T+1}
    s_sub_u32 s{S_N}, s{S_N}, s{S_START}
    s_waitcnt lgkmcnt(0)
    s_barrier""")
    place(BASE, False)
    a(f"""
    s_lshl_b32 s{S_R}, s{S_START}, 16
    s_or_b32 s{S_R}, s{S_R}, 0xffff
    s_branch K3_placed
    K3_fits:""")
    bin_start(ST, ST)
    a(f"""
    v_cmp_gt_u32 vcc, {NBLK}, v{V_LANE}
    v_sub_u32 v{C}, v{OWN}, v{ST}
    v_cndmask_b32 v{X}, 0, v{C}, vcc""")
    wave_scan(a, X)
    a(f"""
    v_sub_u32 v{Y}, v{OWN}, v{X}
    v_lshl_or_b32 v{Y}, v{Y}, 16, v{X}
    v_readlane_b32 s{S_N}, v{X}, {NBLK-1}""")
    for b in range(NBLK):
        a(f"v_readlane_b32 s{S_R+b}, v{Y}, {b}")
    a(f"""
    s_or_b32 s{S_R+NBLK-1}, s{S_R+NBLK-1}, 0xffff
    K3_placed:""")

    T0, T1, T2, T3 = V_T, V_T + 1, V_T + 2, V_T + 3
    U0, U1 = V_S, V_S + 1
    assert V_RADDR == V_L8 and (V_L16, V_RINGO, V_OADDR) == (V_SL, V_SO, V_PF)

    def late_constants():
        a(f"""
        v_mov_b32 v{V_MHI}, 0xffff0000
        s_lshl_b32 s{S_T}, s{S_WAVE}, 10
        s_add_u32 s{S_T}, s{S_T}, {RING}
        v_lshl_add_u32 v{V_RINGW}, v{V_LANE}, 4, s{S_T}
        v_bfe_u32 v{T0}, v{V_LANE}, 3, 2
        v_bfe_u32 v{T1}, v{V_LANE}, 1, 1
        v_lshl_add_u32 v{T0}, v{T0}, 1, v{T1}
        v_and_b32 v{T1}, 1, v{V_LANE}
        v_lshlrev_b32 v{T0}, 4, v{T0}
        v_lshlrev_b32 v{T2}, 3, v{T1}
        v_sub_u32 v{T0}, v{T0}, v{T2}
        v_add_u32 v{T0}, s{S_T}, v{T0}
        v_bfe_u32 v{T2}, v{V_LANE}, 2, 1
        v_lshrrev_b32 v{T3}, 5, v{V_LANE}
        v_cmp_eq_u32 vcc, v{T2}, v{T3}
        v_mov_b32 v{T2}, {ZERO}
        v_lshrrev_b32 v{T3}, 4, v{V_LANE}
        v_cndmask_b32 v{V_AADDR}, v{T2}, v{T0}, vcc
        v_mov_b32 v{T0}, 0x3f80
        v_cmp_eq_u32 vcc, 1, v{T1}
        v_bfe_u32 v{T2}, v{V_LANE}, 1, 1
        v_bfe_u32 v{U0}, v{V_LANE}, 2, 2
        v_cndmask_b32 v{T0}, v{T0}, 1.0, vcc
        v_sub_u32 v{T3}, v{T3}, v{T2}
        v_lshl_add_u32 v{T3}, v{T3}, 2, v{U0}""")
        for aa in range(2):
            for q in range(4):
                sp = S_T if q % 2 else S_I
                a(f"v_cmp_eq_u32 s[{sp}:{sp+1}], {8*aa+q}, v{T3}")
                if q % 2:
                    a(f"""
                    s_nop 0
                    v_cndmask_b32 v{V_AU+4*aa+q-1}, 0, v{T0}, s[{S_I}:{S_I+1}]
                    v_cndmask_b32 v{V_AU+4*aa+q}, 0, v{T0}, s[{S_T}:{S_T+1}]""")

    stamp(a, cfg, S_WS, 2, V_RAW, 98, S_STAMP)
    a(f"""
    s_cmp_eq_u32 s{S_N}, 0
    s_cbranch_scc1 K3_swept
    s_mov_b32 s{S_BIN}, 0
    s_mov_b32 s{S_POS}, 0
    s_and_b32 s{S_NEXT}, s{S_R}, 0xffff
    s_lshr_b32 s{S_D8}, s{S_R}, 16
    s_lshl_b32 s{S_D8}, s{S_D8}, 3""")

    R, TH = V_RN, V_RN + 1
    stage1 = [
        f"v_cmp_gt_i32 vcc, s{S_N}, v{V_LANE}",
        f"v_mov_b32 v{T0}, s{S_MASK}",
        f"v_mov_b32 v{T1}, 1.0",
        f"v_cndmask_b32 v{R}, v{T0}, v{R}, vcc",
        f"v_cndmask_b32 v{TH}, v{T1}, v{TH}, vcc",
        f"v_and_b32 v{T0}, v{V_MHI}, v{TH}",
        f"v_lshlrev_b32 v{TH}, 16, v{TH}",
        f"v_rcp_f32 v{V_RADV}, v{T0}",
        f"v_mul_f32 v{T0}, s{S_FREQ}, v{T0}",
        f"v_cvt_pk_bf16_f32 v{T0}, v{T0}, v{T0}",
        f"v_and_b32 v{T0}, v{V_MHI}, v{T0}",
        f"v_mul_f32 v{T1}, s{S_CHI}, v{T0}",
        f"v_rndne_f32 v{T2}, v{T1}",
        f"v_sub_f32 v{T1}, v{T1}, v{T2}",
        f"v_fma_f32 v{T0}, v{T0}, s{S_CLO}, v{T1}",
        f"v_sin_f32 v{T0}, v{T0}",
        f"v_or_b32_sdwa v{V_IN}, v{R}, s{S_MODE} dst_sel:DWORD dst_unused:UNUSED_PAD src0_sel:BYTE_0 src1_sel:DWORD",
        f"v_cvt_pk_bf16_f32 v{T0}, v{T0}, v{T0}",
        f"v_and_b32 v{T0}, v{V_MHI}, v{T0}",
        f"v_mul_f32 v{V_RADV}, v{T0}, v{V_RADV}",
        f"v_cvt_pk_bf16_f32 v{V_RADV}, v{V_RADV}, v{V_RADV}",
        f"v_and_b32 v{V_RADV}, v{V_MHI}, v{V_RADV}",
    ]
    stage2 = [
        f"v_mul_f32 v{T0}, s{S_ELL}, v{TH}",
        f"v_mul_f32 v{T1}, s{S_ELL+1}, v{TH}",
        f"v_mov_b32_dpp v{T3}, v{V_IN} quad_perm:[1,1,3,3] row_mask:0xf bank_mask:0xf",
        f"v_mul_f32 v{T2}, s{S_ELL+2}, v{TH}",
        f"v_lshl_or_b32 v{V_IN}, v{T3}, 16, v{V_IN}",
        f"v_cvt_pk_bf16_f32 v{T0}, v{T0}, v{T1}",
        f"v_cvt_pk_bf16_f32 v{T2}, v{T2}, v{T2}",
        f"v_and_b32 v{T1}, v{V_MHI}, v{T0}",
        f"v_lshlrev_b32 v{T0}, 16, v{T0}",
        f"v_and_b32 v{T2}, v{V_MHI}, v{T2}",
        f"v_mul_f32 v{U0}, s{S_CHI}, v{T0}",
        f"v_mul_f32 v{U1}, s{S_CHI}, v{T1}",
        f"v_mul_f32 v{T3}, s{S_CHI}, v{T2}",
        f"v_fract_f32 v{U0}, v{U0}",
        f"v_fract_f32 v{U1}, v{U1}",
        f"v_fract_f32 v{T3}, v{T3}",
        f"v_fma_f32 v{T0}, v{T0}, s{S_CLO}, v{U0}",
        f"v_fma_f32 v{T1}, v{T1}, s{S_CLO}, v{U1}",
        f"v_fma_f32 v{T2}, v{T2}, s{S_CLO}, v{T3}",
        f"v_cos_f32 v{T0}, v{T0}",
        f"v_cos_f32 v{T1}, v{T1}",
        f"v_cos_f32 v{T2}, v{T2}",
        f"v_cmp_gt_i32 vcc, 0, v{R}",
        f"v_cvt_pk_bf16_f32 v{T0}, v{T0}, v{T1}",
        f"v_cvt_pk_bf16_f32 v{T2}, v{T2}, v{T2}",
        f"v_and_b32 v{T1}, v{V_MHI}, v{T0}",
        f"v_lshlrev_b32 v{T0}, 16, v{T0}",
        f"v_and_b32 v{T2}, v{V_MHI}, v{T2}",
    ]
    if cfg["const_ell"]:
        stage2 = [
            f"v_mul_f32 v{T2}, s{S_ELL+2}, v{TH}",
            f"v_mov_b32_dpp v{T3}, v{V_IN} quad_perm:[1,1,3,3] row_mask:0xf bank_mask:0xf",
            f"v_mul_f32 v{U0}, s{S_CHI}, v{TH}",
            f"v_cvt_pk_bf16_f32 v{T2}, v{T2}, v{T2}",
            f"v_lshl_or_b32 v{V_IN}, v{T3}, 16, v{V_IN}",
            f"v_and_b32 v{T2}, v{V_MHI}, v{T2}",
            f"v_fract_f32 v{U0}, v{U0}",
            f"v_mul_f32 v{T3}, s{S_CHI}, v{T2}",
            f"v_fma_f32 v{T0}, v{TH}, s{S_CLO}, v{U0}",
            f"v_fract_f32 v{T3}, v{T3}",
            f"v_cos_f32 v{T0}, v{T0}",
            f"v_fma_f32 v{T2}, v{T2}, s{S_CLO}, v{T3}",
            f"v_add_f32 v{T1}, v{T0}, v{T0}",
            f"v_cos_f32 v{T2}, v{T2}",
            f"v_fma_f32 v{T1}, v{T1}, v{T0}, -1.0",
            f"v_cmp_gt_i32 vcc, 0, v{R}",
            f"v_cvt_pk_bf16_f32 v{T0}, v{T0}, v{T1}",
            f"v_cvt_pk_bf16_f32 v{T2}, v{T2}, v{T2}",
            f"v_and_b32 v{T1}, v{V_MHI}, v{T0}",
            f"v_lshlrev_b32 v{T0}, 16, v{T0}",
            f"v_and_b32 v{T2}, v{V_MHI}, v{T2}",
        ]
    stage3 = [
        f"v_mul_f32 v{T0}, v{T0}, v{V_RADV}",
        f"v_mul_f32 v{T1}, v{T1}, v{V_RADV}",
        f"v_mul_f32 v{T2}, v{T2}, v{V_RADV}",
        f"v_cvt_pk_bf16_f32 v{U0}, v{T0}, v{T1}",
        f"v_cvt_pk_bf16_f32 v{U1}, v{T2}, 0",
        f"v_cndmask_b32 v{U0}, v{U0}, 0, vcc",
        f"v_cndmask_b32 v{U1}, v{U1}, v{V_RADV}, vcc",
    ]

    def fetch_batch(tag):
        a(f"""
        v_add_u32 v{T2}, s{S_D8}, v{V_RADDR}
        s_add_u32 s{S_T+1}, s{S_POS}, 64
        s_cmp_ge_u32 s{S_NEXT}, s{S_T+1}
        s_cbranch_scc1 K3_same{tag}
        K3_cross{tag}:
        s_add_u32 s{S_BIN}, s{S_BIN}, 1
        s_mov_b32 m0, s{S_BIN}
        s_sub_u32 s{S_T}, s{S_NEXT}, s{S_POS}
        s_movrels_b32 s{S_NEXT}, s{S_R}
        v_cmp_le_u32 vcc, s{S_T}, v{V_LANE}
        s_lshr_b32 s{S_D8}, s{S_NEXT}, 16
        s_lshl_b32 s{S_D8}, s{S_D8}, 3
        s_and_b32 s{S_NEXT}, s{S_NEXT}, 0xffff
        v_add_u32 v{V_OFF}, s{S_D8}, v{V_RADDR}
        v_cndmask_b32 v{T2}, v{T2}, v{V_OFF}, vcc
        s_cmp_lt_u32 s{S_NEXT}, s{S_T+1}
        s_cbranch_scc1 K3_cross{tag}
        K3_same{tag}:
        ds_read_b64 v[{V_RN}:{V_RN+1}], v{T2} offset:{RECS}
        v_add_u32 v{V_RADDR}, 512, v{V_RADDR}
        s_mov_b32 s{S_POS}, s{S_T+1}""")

    def issue(L):
        o = V_O + 2 * ((L // 2) % 2) + L % 2
        raw = V_RAW + 4 * (L % 8)
        a(f"v_add_u32 v{o}, v{o}, v{V_L16}")
        a(f"buffer_load_dwordx4 v[{raw}:{raw+3}], v{o}, s[{S_H}:{S_H+3}], 0 offen {cfg['row_load']}")

    def o_read(j):
        o = V_O + 2 * (j % 2)
        a(f"ds_read_b64 v[{o}:{o+1}], v{V_OADDR} offset:{32 * (j % 8)}")

    def o_write():
        a(f"v_and_b32 v{V_OFF}, s{S_MASK}, v{R}\nds_write_b32 v{V_RINGO}, v{V_OFF}")

    def a_read(g):
        a(f"ds_read2_b64 v[{V_A}:{V_A+3}], v{V_AADDR} offset0:{16*g} offset1:{16*g+1}")

    def read_step(j):
        return (2 * j - D) // 2 * 2 - 2

    PROG = FLAG + 16
    if cfg["prio"]:
        a(f"""
        s_lshl_b32 s{S_T}, s{S_WAVE}, 2
        s_add_u32 s{S_PF}, s{S_T}, {PROG}
        s_xor_b32 s{S_T}, s{S_T}, 16
        s_add_u32 s{S_NMAX}, s{S_T}, {PROG}""")
    fetch_batch("0")
    a("s_waitcnt lgkmcnt(0)")
    for s in stage1[:5]:
        a(s)
    o_write()
    early = [j for j in range(8) if read_step(j) < 0]
    for j0 in range(0, len(early), 2):
        for j in early[j0:j0 + 2]:
            o_read(j)
        nxt = [L for j in early[j0:j0 + 2] for L in (2 * j, 2 * j + 1) if L < D]
        if nxt:
            a("s_waitcnt lgkmcnt(0)")
            for L in nxt:
                issue(L)
    late_constants()
    for s in stage1[5:] + stage2 + stage3:
        a(s)
    a(f"ds_write_b64 v{V_RINGW}, v[{V_S}:{V_S+1}]\nv_mov_b32 v{V_IC}, v{V_IN}")
    a_read(0)

    body = Asm()
    a_main = a
    fill = {i: [] for i in range(16)}
    fill[2] = stage1[:5]
    rest = stage1[5:] + stage2 + stage3
    steps = list(range(3, 14))
    for n, s in enumerate(rest):
        fill[steps[n * len(steps) // len(rest)]].append(s)
    a = body
    for i in range(16):
        if i and i % cfg["exit_every"] == 0:
            a(f"s_cmp_le_i32 s{S_N}, {4*i-64}\ns_cbranch_scc1 K3_drain")
        if i % 2 == 0:
            a(f"s_waitcnt lgkmcnt(0)\nv_mfma_f32_32x32x16_bf16 v[{V_F}:{V_F+15}], v[{V_A}:{V_A+3}], v[{V_BW}:{V_BW+3}], 0")
            if i == 0:
                a(f"s_sub_u32 s{S_N}, s{S_N}, 64")
                fetch_batch("1")
            if cfg["prio"] and i == 0:
                a(f"""
                v_mov_b32 v{T0}, s{S_PF}
                v_mov_b32 v{T1}, s{S_N}
                v_mov_b32 v{T3}, s{S_NMAX}
                ds_write_b32 v{T0}, v{T1}
                ds_read_b32 v{T3}, v{T3}""")
            if cfg["prio"] and i == 2:
                a(f"""
                v_readfirstlane_b32 s{S_T}, v{T3}
                s_cmp_gt_i32 s{S_N}, s{S_T}
                s_cbranch_scc1 K3_behind
                s_setprio 0
                s_branch K3_prio
                K3_behind:
                s_setprio 1
                K3_prio:""")
            if i == 14:
                a(f"ds_write_b64 v{V_RINGW}, v[{V_S}:{V_S+1}]")
            a_read((i // 2 + 1) % 8)
        n = D - 1
        raw = V_RAW + 4 * (i % 8)
        a(f"""
        s_waitcnt vmcnt({n})
        v_mfma_f32_16x16x32_bf16 v[{V_H}:{V_H+3}], v[{V_AU}:{V_AU+3}], v[{raw}:{raw+3}], 0
        v_mfma_f32_16x16x32_bf16 v[{V_H+4}:{V_H+7}], v[{V_AU+4}:{V_AU+7}], v[{raw}:{raw+3}], 0""")
        issue(i + D)
        for j in range(16):
            if read_step(j) == i:
                if j == 8:
                    o_write()
                o_read(j)
        a(f"v_readlane_b32 s{S_I}, v{V_IC}, {4*i}\nv_readlane_b32 s{S_I+1}, v{V_IC}, {4*i+2}")
        for s in fill[i]:
            a(s)
        for j in range(4):
            f = V_F + 2 * (4 * (i % 2) + j)
            a([f"s_set_gpr_idx_on s{S_I}, gpr_idx(SRC2,DST)", f"s_lshr_b32 m0, s{S_I}, 16",
               f"s_mov_b32 m0, s{S_I+1}", f"s_lshr_b32 m0, s{S_I+1}, 16"][j])
            a(f"v_pk_fma_f32 v[{ACC}:{ACC+1}], v[{V_H+2*j}:{V_H+2*j+1}], v[{f}:{f+1}], v[{ACC}:{ACC+1}]")
        a("s_set_gpr_idx_off")
    a(f"""
    v_mov_b32 v{V_IC}, v{V_IN}
    s_cmp_gt_i32 s{S_N}, 0
    s_cbranch_scc1 K3_batch""")
    a = a_main
    lines, added = pad(body.lines)
    again, extra = pad(lines, before=lines)
    assert extra == 0
    print(f"sweep loop: {len(lines)} instructions, {added} padded wait states", file=sys.stderr)
    a("K3_batch:")
    a.lines += lines
    a(f"""
    K3_drain:
    s_waitcnt vmcnt(0) lgkmcnt(0)
    K3_swept:
    s_mov_b32 s{S_R+NS}, 0
    s_mov_b32 s{S_R+NS+1}, 0
    s_waitcnt lgkmcnt(0)
    s_cmp_lg_u32 s{S_MORE}, 0
    s_cbranch_scc1 K3_round""")
    stamp(a, cfg, S_WS, 4, P, 98, S_STAMP)

    st = cfg["out_store"]
    a(f"""
    v_and_b32 v7, 15, v{V_LANE}
    v_lshrrev_b32 v8, 4, v{V_LANE}
    v_lshlrev_b32 v7, 4, v7
    v_lshl_add_u32 v7, v8, 19, v7
    s_lshl_b32 s{S_T}, s{S_WAVE}, 8
    s_add_u32 s{S_T}, s{S_T}, s{S_B}
    s_lshl_b32 s{S_T}, s{S_T}, 8""")
    for i in range(20):
        t = P + 4 * (i % 8)
        for k in range(4):
            r = min(4 * i + k, 78)
            a(f"v_cvt_pk_bf16_f32 v{t+k}, v{ACC+2*r}, v{ACC+2*r+1}")
        a(f"""
        s_nop 0
        v_permlane32_swap_b32 v{t}, v{t+2}
        v_permlane32_swap_b32 v{t+1}, v{t+3}
        s_nop 1
        v_permlane16_swap_b32 v{t}, v{t+1}
        v_permlane16_swap_b32 v{t+2}, v{t+3}
        buffer_store_dwordx4 v[{t}:{t+3}], v7, s[{S_OUT}:{S_OUT+3}], s{S_T} offen {st}
        s_add_u32 s{S_T}, s{S_T}, {4 << 19}""")
    if cfg["stamps"]:
        a("s_waitcnt vmcnt(0)")
        stamp(a, cfg, S_WS, 5, P, 98, S_STAMP)
    a("K3_end:\ns_endpgm")
    return lds


def descriptor(name, vgpr, sgpr):
    return f""".p2align 6
.amdhsa_kernel {name}
  .amdhsa_next_free_vgpr {vgpr}
  .amdhsa_next_free_sgpr {sgpr}
  .amdhsa_accum_offset {(vgpr + 3) // 4 * 4}
  .amdhsa_group_segment_fixed_size 0
  .amdhsa_kernarg_size 96
  .amdhsa_user_sgpr_count 2
  .amdhsa_user_sgpr_kernarg_segment_ptr 1
  .amdhsa_system_sgpr_workgroup_id_x 1
  .amdhsa_float_denorm_mode_32 3
.end_amdhsa_kernel
"""


DEFAULT = dict(stamps=0, ns=34, dpl=7, rec_load="", capb=104, k1_load="nt", k1_store="sc1", out_store="sc0 sc1", dbg=0, row_load="", prio=1, mask_rec=1, exit_every=4, rot=5, ahead=1, const_ell=0, k1_bit=3, k1_path=0, self_at=34)


def generate(**kw):
    cfg = dict(DEFAULT)
    cfg.update(kw)
    a = Asm()
    lds1 = gen_bucket(a, cfg)
    lds3 = gen_sweep(a, cfg)
    a.lines, added = pad("\n".join(a.lines).split("\n"))
    print(f"{added} wait states padded outside the loop", file=sys.stderr)
    ref = open("standalone__molecular_angular_dimenet__graph.s.ref").read().split("\n")
    head = [ln for ln in ref if ln.startswith(";   offset") or ln.startswith("; Kernarg")]
    head += [
        "; Launch 1 sorts 10240-triplet chunks by destination bucket and builds the radial table;",
        "; launch 2 accumulates one bucket per workgroup, visiting the source rows in increasing order.",
        f"; @launch kernel=bucket_kernel grid=({NCHUNK},1,1) block=(1024,1,1) lds={lds1}",
        f"; @launch kernel=sweep_kernel grid=(256,1,1) block=(512,1,1) lds={lds3}",
        '.amdgcn_target "amdgcn-amd-amdhsa--gfx950"',
        ".text",
    ]
    tail = '.section .rodata,"a"\n' + descriptor("bucket_kernel", 96, 56) + descriptor("sweep_kernel", 256, 100)
    return "\n".join(head) + "\n" + a.text() + tail


if __name__ == "__main__":
    out = sys.argv[1]
    kw = {}
    for arg in sys.argv[2:]:
        k, v = arg.split("=", 1)
        kw[k] = type(DEFAULT[k])(int(v)) if isinstance(DEFAULT[k], (bool, int)) else v
    open(out, "w").write(generate(**kw))
```

```python
import struct
import sys

from hazard import pad

E = 160000
T = 2560000
CHUNK = 10240
NCHUNK = T // CHUNK
H_BYTES = E * 256

WS_REC = 0
WS_TAB = 0x1480000
WS_END = WS_TAB + NCHUNK * 1024
WS_STAMP = 0x1500000


def f32bits(x):
    return struct.unpack("<I", struct.pack("<f", x))[0]


INV2PI = 0.15915494309189535
C_HI = f32bits(INV2PI) & 0xFFFFFF00
C_LO = f32bits(INV2PI - struct.unpack("<f", struct.pack("<I", C_HI))[0])


class Asm:
    def __init__(self):
        self.lines = []

    def __call__(self, text):
        for ln in text.strip("\n").split("\n"):
            ln = ln.strip()
            if not ln:
                continue
            self.lines.append(ln if ln.endswith(":") else "    " + ln)

    def raw(self, text):
        self.lines.append(text)

    def text(self):
        return "\n".join(self.lines) + "\n"


def srd(a, d, lo, hi, nbytes):
    a(f"""
    s_mov_b32 s{d}, s{lo}
    s_mov_b32 s{d+1}, s{hi}
    s_mov_b32 s{d+2}, {nbytes}
    s_mov_b32 s{d+3}, 0x20000""")


def wave_scan(a, x):
    for sh in (1, 2, 4, 8):
        a(f"v_add_u32_dpp v{x}, v{x}, v{x} row_shr:{sh} row_mask:0xf bank_mask:0xf bound_ctrl:0")
    a(f"v_add_u32_dpp v{x}, v{x}, v{x} row_bcast:15 row_mask:0xa bank_mask:0xf")
    a(f"v_add_u32_dpp v{x}, v{x}, v{x} row_bcast:31 row_mask:0xc bank_mask:0xf")


def stamp(a, cfg, srd_ws, slot, vtmp, s0, swave_off):
    if not cfg["stamps"]:
        return
    a(f"""
    s_memrealtime s[{s0}:{s0+1}]
    s_waitcnt lgkmcnt(0)
    v_mov_b32 v{vtmp}, s{s0}
    v_mov_b32 v{vtmp+1}, {slot*4}
    s_mov_b64 exec, 1
    buffer_store_dword v{vtmp}, v{vtmp+1}, s[{srd_ws}:{srd_ws+3}], s{swave_off} offen
    s_mov_b64 exec, -1""")


def gen_bucket(a, cfg):
    NT = cfg["k1_threads"]
    NW = NT // 64
    PER = CHUNK // NT
    parts = [4] * (PER // 4) + ([2] if PER % 4 else [])
    HIST, BASE, TBL = 0, 1024, 2048
    RECS = TBL
    HALF = E // 2
    NDMA = -(-HALF * 2 // 1024)
    ND = 160 // NW
    S_JI, S_KJ, S_TH, S_WS, S_D = 16, 20, 24, 28, 36
    S_W, S_O4, S_O2, S_HALF, S_FE = 15, 48, 56, 47, 46
    PP = (PER + 3) // 4 * 4
    JI = [4 + i for i in range(PER)]
    KJ = [4 + PP + i for i in range(PER)]
    TH = 4 + 2 * PP
    R0 = [TH + PP // 2 + 2 * i for i in range(PER)]
    BK = [R0[-1] + 2 + i for i in range(PER)]
    RK = [BK[-1] + 1 + i for i in range(PER)]
    DV = [RK[-1] + 1 + i for i in range(PER)]
    X = (DV[-1] + 2) // 2 * 2
    V_TAB, V_ONE, V_L16, V_A, V_B, V_ST = X, X + 4, X + 5, X + 6, X + 7, X + 8
    nvgpr = X + 10
    ws_size = WS_STAMP + 0x100000 if cfg["stamps"] else WS_END
    st, ld = cfg["k1_store"], cfg["k1_load"]
    a.raw(".p2align 8\n.globl bucket_kernel\n.type bucket_kernel,@function\nbucket_kernel:")
    a(f"""
    s_cmp_ge_u32 s2, {NCHUNK}
    s_cbranch_scc1 K1_end
    s_load_dwordx4 s[4:7], s[0:1], 16
    s_load_dwordx2 s[8:9], s[0:1], 32
    s_load_dwordx2 s[10:11], s[0:1], 88
    s_load_dwordx2 s[44:45], s[0:1], 8
    v_readfirstlane_b32 s{S_W}, v0
    v_lshlrev_b32 v1, 4, v0
    v_lshlrev_b32 v2, 3, v0
    v_lshlrev_b32 v3, 2, v0
    s_lshr_b32 s{S_W}, s{S_W}, 6
    s_mul_i32 s{S_O4}, s2, {CHUNK*4}
    s_mul_i32 s{S_O2}, s2, {CHUNK*2}""")
    for n in range(1, len(parts)):
        a(f"s_add_u32 s{S_O4+n}, s{S_O4}, {n*NT*16}\ns_add_u32 s{S_O2+n}, s{S_O2}, {n*NT*8}")
    a(f"""
    v_mov_b32 v{V_A}, 0
    v_and_b32 v{V_B}, 0x3fc, v3
    v_mov_b32 v{V_ONE}, 1
    v_and_b32 v{V_L16}, 0x3f0, v1
    s_mov_b32 s{S_FE}, 0xfe
    s_mov_b32 s{S_HALF}, {HALF*2}
    ds_write_b32 v{V_B}, v{V_A} offset:{HIST}
    s_waitcnt lgkmcnt(0)""")
    srd(a, S_JI, 8, 9, T * 4)
    srd(a, S_KJ, 6, 7, T * 4)
    srd(a, S_TH, 4, 5, T * 2)
    srd(a, S_WS, 10, 11, ws_size)
    srd(a, S_D, 44, 45, E * 2)
    if cfg["stamps"]:
        a(f"""
        s_lshl_b32 s41, s2, 4
        s_add_u32 s40, s{S_W}, s41
        s_lshl_b32 s40, s40, 5
        s_add_u32 s40, s40, {WS_STAMP}""")

    def mark(slot):
        stamp(a, cfg, S_WS, slot, V_ST, 42, 40)

    mark(0)
    NP = len(parts)
    spans = [(sum(parts[:n]), sum(parts[:n + 1])) for n in range(NP)]

    def stage(piece):
        a(f"""
        s_lshr_b32 s35, s2, 3
        s_mul_i32 s35, s35, {cfg["rot"]}
        s_add_u32 s35, s35, s{S_W}
        s_lshl_b32 s35, s35, 10""")
        for i in range(ND):
            a(f"""
            s_cmp_ge_u32 s35, {160*1024}
            s_cselect_b32 s34, {160*1024}, 0
            s_sub_u32 s35, s35, s34
            s_min_u32 s34, s35, {(NDMA - 1) * 1024}
            s_add_u32 m0, s34, {TBL}
            s_add_u32 s34, s34, {piece * HALF * 2}
            buffer_load_dwordx4 v{V_L16}, s[{S_D}:{S_D+3}], s34 offen lds""")
            if i < ND - 1:
                a(f"s_add_u32 s35, s35, {NW*1024}")

    def idx_loads(regs, srd_):
        for n, (lo, hi) in enumerate(spans):
            w, v = ("x4", 1) if hi - lo == 4 else ("x2", 2)
            a(f"buffer_load_dword{w} v[{regs[lo]}:{regs[hi-1]}], v{v}, s[{srd_}:{srd_+3}], s{S_O4+n} offen {ld}")

    def th_loads():
        for n, (lo, hi) in enumerate(spans):
            if hi - lo == 4:
                a(f"buffer_load_dwordx2 v[{TH+lo//2}:{TH+lo//2+1}], v2, s[{S_TH}:{S_TH+3}], s{S_O2+n} offen {ld}")
            else:
                a(f"buffer_load_dword v{TH+lo//2}, v3, s[{S_TH}:{S_TH+3}], s{S_O2+n} offen {ld}")

    def look(piece):
        for i in range(PER):
            if piece == 0:
                a(f"v_cmpx_gt_u32 vcc, s{S_HALF}, v{KJ[i]}")
            else:
                a(f"v_cmpx_le_u32 vcc, s{S_HALF}, v{KJ[i]}\nv_subrev_u32 v{KJ[i]}, s{S_HALF}, v{KJ[i]}")
            a(f"ds_read_u16 v{DV[i]}, v{KJ[i]} offset:{TBL}\ns_mov_b64 exec, -1")

    def count(younger):
        for n, (lo, hi) in enumerate(spans):
            a(f"s_waitcnt vmcnt({NP - 1 - n + younger})")
            for i in range(lo, hi):
                a(f"v_lshlrev_b32_sdwa v{BK[i]}, 2, v{JI[i]} dst_sel:DWORD dst_unused:UNUSED_PAD src0_sel:DWORD src1_sel:BYTE_0")
            for i in range(lo, hi):
                a(f"ds_add_rtn_u32 v{RK[i]}, v{BK[i]}, v{V_ONE} offset:{HIST}")

    def build(younger):
        for i in range(PER):
            a(f"""
            v_lshrrev_b32 v{V_A}, 10, v{JI[i]}
            v_bfe_u32 v{V_B}, v{JI[i]}, 8, 3
            v_and_or_b32 v{V_A}, v{V_A}, s{S_FE}, v{R0[i]}
            v_lshl_or_b32 v{R0[i]}, v{V_B}, 26, v{V_A}""")
        for n, (lo, hi) in enumerate(spans):
            a(f"s_waitcnt vmcnt({NP - 1 - n + younger})")
            for i in range(lo, hi):
                if i % 2 == 0:
                    a(f"v_and_b32 v{R0[i]+1}, 0xffff, v{TH + i // 2}")
                else:
                    a(f"v_lshrrev_b32 v{R0[i]+1}, 16, v{TH + i // 2}")

    def scan():
        a(f"""
        ds_read_b128 v[4:7], v{V_L16} offset:{HIST}
        s_waitcnt lgkmcnt(0)
        v_add_u32 v8, v4, v5
        v_add3_u32 v8, v8, v6, v7
        v_mov_b32 v9, v8""")
        wave_scan(a, 9)
        a(f"""
        v_sub_u32 v10, v9, v8
        v_add_u32 v11, v10, v4
        v_add_u32 v12, v11, v5
        v_add_u32 v13, v12, v6
        ds_write_b128 v{V_L16}, v[10:13] offset:{BASE}""")
        for i in range(PER):
            a(f"ds_read_b32 v{BK[i]}, v{BK[i]} offset:{BASE}")
        for q in range(4):
            a(f"v_lshl_or_b32 v{V_TAB+q}, v{4+q}, 16, v{10+q}")
        a("s_waitcnt lgkmcnt(0)")
        for i in range(PER):
            a(f"v_add_lshl_u32 v{BK[i]}, v{BK[i]}, v{RK[i]}, 3")

    ns = 1 if cfg["stamps"] else 0
    a(f"s_and_b32 s34, s2, {cfg['k1_mask']}\ns_cmp_lg_u32 s34, {cfg['k1_eq']}\ns_cbranch_scc1 K1_other")
    idx_loads(KJ, S_KJ)
    stage(0)
    a("s_branch K1_both\nK1_other:")
    stage(0)
    if cfg["k1_wait"]:
        a(f"s_waitcnt vmcnt({ND - cfg['k1_wait']})")
    a("s_barrier")
    idx_loads(KJ, S_KJ)
    a("K1_both:\ns_barrier")
    idx_loads(JI, S_JI)
    th_loads()
    a(f"s_waitcnt vmcnt({2*NP})")
    for i in range(PER):
        a(f"v_lshlrev_b32 v{R0[i]}, 8, v{KJ[i]}\nv_lshlrev_b32 v{KJ[i]}, 1, v{KJ[i]}")
    a("s_barrier")
    look(0)
    a("s_waitcnt lgkmcnt(0)\ns_barrier")
    mark(4)
    count(NP + ns)
    stage(1)
    build(ND + ns)
    a("s_waitcnt lgkmcnt(0)\ns_barrier")
    mark(1)
    scan()
    a("s_waitcnt vmcnt(0)\ns_barrier")
    mark(5)
    look(1)
    a(f"""
    s_cmp_lg_u32 s{S_W}, 0
    s_cbranch_scc1 K1_notab
    s_lshl_b32 s35, s2, 10
    s_add_u32 s35, s35, {WS_TAB}
    buffer_store_dwordx4 v[{V_TAB}:{V_TAB+3}], v{V_L16}, s[{S_WS}:{S_WS+3}], s35 offen {st}
    K1_notab:
    s_waitcnt lgkmcnt(0)
    s_barrier""")
    mark(6)
    for i in range(PER):
        a(f"v_lshl_or_b32 v{R0[i]+1}, v{DV[i]}, 16, v{R0[i]+1}")
        a(f"ds_write_b64 v{BK[i]}, v[{R0[i]}:{R0[i]+1}] offset:{RECS}")
    a("s_waitcnt lgkmcnt(0)\ns_barrier")
    mark(2)
    NO = PER // 2
    a(f"s_mul_i32 s12, s2, {CHUNK*8}\nv_add_u32 v2, 0x8000, v1\nv_add_u32 v3, 0x10000, v1")
    for k in range(NO):
        off = k * NT * 16
        a(f"ds_read_b128 v[{4+4*k}:{7+4*k}], v{1 + off // 0x8000} offset:{RECS + off % 0x8000}")
    for k in range(NO):
        a(f"s_waitcnt lgkmcnt({NO-1-k})")
        a(f"buffer_store_dwordx4 v[{4+4*k}:{7+4*k}], v1, s[{S_WS}:{S_WS+3}], s12 offen {st}")
        if k < NO - 1:
            a(f"s_add_u32 s12, s12, {NT*16}")
    if cfg["stamps"]:
        a("s_waitcnt vmcnt(0)")
        mark(3)
    a("K1_end:\ns_endpgm")
    return TBL + NDMA * 1024, nvgpr


def gen_sweep(a, cfg):
    NS = cfg["ns"]
    NSL = NS + 2
    PIECE = 63
    D = cfg["dpl"]
    SHIFT = 21
    NBLK = -(-E // 8192)
    CAPB = cfg["capb"]
    KMASK = 255 << 2
    CUR, BASE, FLAG, ZERO, RING, RINGO, RECS = 0, 1024, 4096, 4352, 5632, 13824, 16384
    CAP = max(8 * (NS * PIECE + 79), 8 * NBLK * CAPB)
    lds = RECS + CAP * 8 + 512
    assert lds <= 163840 and 2 <= D <= 7

    ACC = 98
    V_LANE, V_TOFF, V_BW, V_TLEN = 0, 1, 2, 6
    V_L8, V_ONE, P = 7, 8, 10
    TK = P + 2 * NSL
    G = 6
    V_SL, V_SO, V_PF = TK + 2 * G, TK + 2 * G + 1, TK + 2 * G + 2
    V_RADDR, V_AADDR, V_RINGW = 7, 8, 9
    V_RAW, V_F, V_H, V_A, V_AU, V_O, V_RN, V_S, V_T = 10, 42, 58, 66, 70, 78, 82, 84, 86
    V_IC, V_IN, V_RADV, V_MHI, V_L16, V_RINGO, V_OADDR, V_OFF = 90, 91, 92, 93, 94, 95, 96, 97
    S_H, S_OUT, S_WS, S_D = 4, 8, 12, 76
    S_B, S_WAVE, S_SEG, S_REM, S_OFF, S_MORE, S_N, S_START = 16, 17, 18, 19, 20, 21, 22, 23
    S_ELL, S_CHI, S_CLO, S_MASK, S_MODE, S_NMAX, S_T = 24, 27, 28, 29, 30, 31, 32
    S_FREQ, S_PF = 34, 35
    S_BIN, S_POS, S_NEXT, S_D8 = 39, 70, 71, 72
    S_I = 36
    S_R = 40
    S_STAMP = 96
    ws_size = WS_STAMP + 0x100000 if cfg["stamps"] else WS_END

    hot, cold = a, Asm()
    a.raw(".p2align 8\n.globl sweep_kernel\n.type sweep_kernel,@function\nsweep_kernel:")
    a(f"""
    s_cmp_ge_u32 s2, 256
    s_cbranch_scc1 K3_end
    {"s_memrealtime s[100:101]" if cfg["stamps"] else ""}
    s_load_dwordx2 s[86:87], s[0:1], 88
    s_load_dwordx4 s[80:83], s[0:1], 0
    s_load_dwordx2 s[84:85], s[0:1], 40
    s_load_dwordx4 s[88:91], s[0:1], 48
    s_load_dwordx4 s[92:95], s[0:1], 64
    v_readfirstlane_b32 s{S_WAVE}, v0
    s_and_b32 s{S_B}, s2, 7
    s_lshl_b32 s{S_B}, s{S_B}, 5
    s_lshr_b32 s{S_T}, s2, 3
    s_add_u32 s{S_B}, s{S_B}, s{S_T}
    s_lshr_b32 s{S_WAVE}, s{S_WAVE}, 6
    v_lshlrev_b32 v{P}, 5, v0
    v_and_b32 v{V_LANE}, 63, v0
    v_mov_b32 v{P+2}, 0
    v_mov_b32 v{P+3}, 0
    v_mov_b32 v{P+4}, 0
    v_mov_b32 v{P+5}, 0
    ds_write_b128 v{P}, v[{P+2}:{P+5}] offset:{FLAG}
    ds_write_b128 v{P}, v[{P+2}:{P+5}] offset:{FLAG+16}
    s_lshl_b32 s{S_T}, s{S_WAVE}, 5
    v_add_u32 v{V_TOFF}, s{S_T}, v{V_LANE}
    v_lshlrev_b32 v{P+1}, 10, v{V_TOFF}
    v_and_b32 v{P+6}, 15, v{V_LANE}
    v_lshrrev_b32 v{P+7}, 4, v{V_LANE}
    v_lshl_add_u32 v{P+6}, v{P+6}, 2, v{P+7}
    v_lshlrev_b32 v{P+6}, 2, v{P+6}
    s_lshl_b32 s{S_T}, s{S_B}, 2
    s_add_u32 s{S_T}, s{S_T}, {WS_TAB}
    s_waitcnt lgkmcnt(0)""")
    if cfg["stamps"]:
        a("s_memrealtime s[98:99]\ns_waitcnt lgkmcnt(0)\ns_mov_b32 s101, s98")
    srd(a, S_WS, 86, 87, ws_size)
    a(f"""
    v_mov_b32 v{V_TLEN}, 0
    s_bfm_b64 exec, 32, 0
    buffer_load_dword v{V_TLEN}, v{P+1}, s[{S_WS}:{S_WS+3}], s{S_T} offen
    s_mov_b64 exec, -1""")
    a(f"s_load_dwordx2 s[{S_ELL}:{S_ELL+1}], s[88:89], 0\ns_load_dword s{S_FREQ}, s[84:85], 0")
    SA, SB = P + 2 * NS, P + 2 * NS + 2
    srd(a, S_H, 90, 91, 768)
    srd(a, S_OUT, 92, 93, 256)
    srd(a, S_D, 82, 83, E * 2)
    a(f"""
    buffer_load_dword v{V_BW}, v{P+6}, s[{S_H}:{S_H+3}], 0 offen
    buffer_load_dword v{V_BW+2}, v{P+6}, s[{S_H}:{S_H+3}], 0 offen offset:256
    buffer_load_dword v{V_BW+1}, v{P+6}, s[{S_H}:{S_H+3}], 0 offen offset:512
    buffer_load_dword v{V_BW+3}, v{P+6}, s[{S_OUT}:{S_OUT+3}], 0 offen
""")
    srd(a, S_H, 80, 81, 0 if cfg["dbg"] & 1 else H_BYTES)
    srd(a, S_OUT, 94, 95, H_BYTES)

    if cfg["stamps"]:
        a(f"""
        s_lshl_b32 s{S_STAMP}, s2, 3
        s_add_u32 s{S_STAMP}, s{S_STAMP}, s{S_WAVE}
        s_lshl_b32 s{S_STAMP}, s{S_STAMP}, 5
        s_add_u32 s{S_STAMP}, s{S_STAMP}, {WS_STAMP + 0x40000}""")
    a(f"""
    s_mov_b32 s{S_CHI}, {C_HI:#x}
    s_mov_b32 s{S_CLO}, {C_LO:#x}
    s_mov_b32 s{S_MASK}, 0x03ffff00
    s_mov_b32 s{S_MODE}, 0xc000
    s_mov_b32 s{S_T}, {CHUNK*8}
    v_cmp_gt_u32 vcc, {NCHUNK}, v{V_TOFF}
    v_mul_lo_u32 v{V_TOFF}, v{V_TOFF}, s{S_T}
    s_mov_b32 s{S_SEG}, 0
    s_mov_b32 s{S_REM}, 0
    s_mov_b32 s{S_OFF}, 0""")
    a(f"""
    s_lshl_b32 s{S_T}, s{S_WAVE}, 8
    s_add_u32 s{S_T}, s{S_T}, s{S_B}
    s_lshl_b32 s{S_T}, s{S_T}, 8
    s_lshl_b32 s{S_T+1}, s{S_WAVE}, 26
    s_or_b32 s{S_T}, s{S_T}, s{S_T+1}
    s_bitset1_b32 s{S_T}, 31
    s_mov_b32 s{S_T+1}, {(1 << 19) + 2}
    v_mul_lo_u32 v{SA}, v{V_LANE}, s{S_T+1}
    v_add_u32 v{SA}, s{S_T}, v{SA}
    v_add_u32 v{SB}, {40 * ((1 << 19) + 2)}, v{SA}
    s_mov_b32 s{S_R+NS}, 40
    s_cmp_eq_u32 s{S_WAVE}, 0
    s_cselect_b32 s{S_R+NS+1}, 39, 38""")
    for i in range(158):
        a(f"v_mov_b32 v{ACC+i}, 0")
    a(f"""
    s_waitcnt vmcnt(4)
    v_cndmask_b32 v{V_TLEN}, 0, v{V_TLEN}, vcc
    v_and_b32 v{P+1}, 0xffff, v{V_TLEN}
    v_lshl_add_u32 v{V_TOFF}, v{P+1}, 3, v{V_TOFF}
    v_lshrrev_b32 v{V_TLEN}, 16, v{V_TLEN}""")
    stamp(a, cfg, S_WS, 0, P, 98, S_STAMP)
    if cfg["stamps"]:
        for slot, sr in ((3, 100), (6, 101)):
            a(f"""
            v_mov_b32 v{P}, s{sr}
            v_mov_b32 v{P+1}, {slot*4}
            s_mov_b64 exec, 1
            buffer_store_dword v{P}, v{P+1}, s[{S_WS}:{S_WS+3}], s{S_STAMP} offen
            s_mov_b64 exec, -1""")

    a(f"""
    K3_round:
    v_lshlrev_b32 v{V_L8}, 3, v{V_LANE}
    v_mov_b32 v{V_ONE}, 1""")
    rl = cfg["rec_load"]

    a(f"""
    v_mov_b32 v{V_SL}, v{V_TLEN}
    v_mov_b32 v{V_SO}, v{V_TOFF}
    v_cmp_lt_u32 vcc, {PIECE}, v{V_TLEN}
    s_or_b32 s{S_T}, vcc_lo, s{S_SEG}
    s_cbranch_scc1 K3_long
    s_mov_b32 s{S_SEG}, 32
    K3_listed:""")
    cold(f"""
    K3_long:
    s_mov_b32 s{S_I+2}, {2 * PIECE}
    v_cmp_lt_u32 s[{S_T}:{S_T+1}], s{S_I+2}, v{V_TLEN}
    s_bcnt1_i32_b32 s{S_I}, vcc_lo
    s_or_b32 s{S_T}, s{S_T}, s{S_SEG}
    s_cbranch_scc1 K3_general
    s_cmp_gt_u32 s{S_I}, {NS - 32}
    s_cbranch_scc1 K3_general
    s_mov_b32 s{S_SEG}, 32
    s_mov_b32 s{S_I}, vcc_lo
    K3_spill:
    s_cmp_eq_u32 s{S_I}, 0
    s_cbranch_scc1 K3_listed
    s_ff1_i32_b32 s{S_I+1}, s{S_I}
    s_bitset0_b32 s{S_I}, s{S_I+1}
    v_readlane_b32 s{S_T}, v{V_TLEN}, s{S_I+1}
    v_readlane_b32 s{S_T+1}, v{V_TOFF}, s{S_I+1}
    s_mov_b32 m0, s{S_I+1}
    s_sub_u32 s{S_T}, s{S_T}, {PIECE}
    v_writelane_b32 v{V_SL}, {PIECE}, m0
    s_bcnt1_i32_b32 s{S_I+1}, s{S_I}
    s_add_u32 m0, s{S_I+1}, 32
    s_add_u32 s{S_T+1}, s{S_T+1}, {PIECE*8}
    v_writelane_b32 v{V_SL}, s{S_T}, m0
    v_writelane_b32 v{V_SO}, s{S_T+1}, m0
    s_branch K3_spill
    K3_general:
    s_mov_b32 s{S_I}, 0
    K3_slot:
    s_cmp_lg_u32 s{S_REM}, 0
    s_cbranch_scc1 K3_have
    K3_adv:
    s_cmp_ge_u32 s{S_SEG}, 32
    s_cbranch_scc1 K3_have
    v_readlane_b32 s{S_REM}, v{V_TLEN}, s{S_SEG}
    v_readlane_b32 s{S_OFF}, v{V_TOFF}, s{S_SEG}
    s_add_u32 s{S_SEG}, s{S_SEG}, 1
    s_cmp_eq_u32 s{S_REM}, 0
    s_cbranch_scc1 K3_adv
    K3_have:
    s_min_u32 s{S_T}, s{S_REM}, {PIECE}
    s_mov_b32 m0, s{S_I}
    s_mov_b32 s{S_T+1}, s{S_OFF}
    v_writelane_b32 v{V_SL}, s{S_T}, m0
    v_writelane_b32 v{V_SO}, s{S_T+1}, m0
    s_sub_u32 s{S_REM}, s{S_REM}, s{S_T}
    s_add_u32 s{S_OFF}, s{S_OFF}, {PIECE*8}
    s_add_u32 s{S_I}, s{S_I}, 1
    s_cmp_lt_u32 s{S_I}, {NS}
    s_cbranch_scc1 K3_slot
    s_branch K3_listed""")

    at = cfg['self_at']
    order = list(range(at)) + [NS, NS + 1] + list(range(at, NS))
    groups = [order[i:i + G] for i in range(0, NSL, G)]
    vm = []

    def loads(gi):
        ks = [k for k in groups[gi] if k < NS]
        for n0 in range(0, len(ks), 3):
            for n, k in enumerate(ks[n0:n0 + 3]):
                a(f"v_readlane_b32 s{S_I+n}, v{V_SO}, {k}")
            for n, k in enumerate(ks[n0:n0 + 3]):
                a(f"v_readlane_b32 s{S_R+k}, v{V_SL}, {k}")
            for n, k in enumerate(ks[n0:n0 + 3]):
                if cfg["mask_rec"]:
                    a(f"s_max_u32 s{S_T+1}, s{S_R+k}, 1\ns_bfm_b64 exec, s{S_T+1}, 0")
                a(f"buffer_load_dwordx2 v[{P+2*k}:{P+2*k+1}], v{V_L8}, s[{S_WS}:{S_WS+3}], s{S_I+n} offen {rl}")
                vm.append(k)
        if NS in groups[gi]:
            a(f"""
            s_mov_b64 exec, -1
            s_lshl_b32 s{S_T}, s{S_WAVE}, 8
            s_add_u32 s{S_T}, s{S_T}, s{S_B}
            s_lshl_b32 s{S_T}, s{S_T}, 1
            s_add_u32 s{S_T+1}, s{S_T}, {40 * 4096}
            v_lshlrev_b32 v9, 12, v{V_LANE}
            s_bfm_b64 exec, 40, 0
            buffer_load_ushort v{SA+1}, v9, s[{S_D}:{S_D+3}], s{S_T} offen
            buffer_load_ushort v{SB+1}, v9, s[{S_D}:{S_D+3}], s{S_T+1} offen""")
            vm.extend([NS, NS + 1])
        a("s_mov_b64 exec, -1")

    AH = cfg["ahead"]
    for gi in range(AH):
        loads(gi)

    def bin_start(dst, tmp_):
        a(f"""
        s_mul_i32 s{S_T}, s{S_WAVE}, {NBLK * CAPB}
        v_min_u32 v{tmp_}, {NBLK}, v{V_LANE}
        v_mul_u32_u24 v{tmp_}, {CAPB}, v{tmp_}
        v_add_u32 v{dst}, s{S_T}, v{tmp_}""")

    bin_start(TK + 1, TK + 1)
    a(f"""
    s_lshl_b32 s{S_T}, s{S_WAVE}, 7
    v_lshl_add_u32 v{TK}, v{V_LANE}, 2, s{S_T}
    s_bfm_b64 exec, 32, 0
    ds_write_b32 v{TK}, v{TK+1} offset:{CUR}
    s_mov_b64 exec, -1
    v_cmp_le_u32 vcc, s{S_SEG}, v{V_LANE}
    v_cmp_lt_u32 s[{S_T}:{S_T+1}], 0, v{V_TLEN}
    s_and_b32 s{S_T}, s{S_T}, vcc_lo
    s_or_b32 s{S_T}, s{S_T}, s{S_REM}
    s_waitcnt lgkmcnt(0)
    s_barrier
    s_cmp_lg_u32 s{S_T}, 0
    s_cbranch_scc1 K3_more
    K3_nomore:""")
    cold(f"""
    K3_more:
    v_mov_b32 v{V_PF}, {FLAG}
    ds_write_b32 v{V_PF}, v{V_ONE}
    s_branch K3_nomore""")

    def tmp(gi, j):
        return TK + (gi % 2) * G + j

    def place(cursors, first):
        def keys(gi):
            for j, k in enumerate(groups[gi]):
                if first and k < NS:
                    a(f"s_waitcnt vmcnt({len(vm) - 1 - vm.index(k)})")
                a(f"v_lshrrev_b32 v{tmp(gi, j)}, {SHIFT-2}, v{P+2*k}\nv_and_b32 v{tmp(gi, j)}, {KMASK}, v{tmp(gi, j)}")

        def take(gi):
            for j, k in enumerate(groups[gi]):
                a(f"s_bfm_b64 exec, s{S_R+k}, 0\nds_add_rtn_u32 v{tmp(gi, j)}, v{tmp(gi, j)}, v{V_ONE} offset:{cursors}")
            a("s_mov_b64 exec, -1")

        def move(gi):
            for j, k in enumerate(groups[gi]):
                a(f"v_lshlrev_b32 v{tmp(gi, j)}, 3, v{tmp(gi, j)}")
            if first and NS in groups[gi]:
                a(f"s_waitcnt vmcnt({len(vm) - 1 - vm.index(NS + 1)})\nv_lshlrev_b32 v{SA+1}, 16, v{SA+1}\nv_lshlrev_b32 v{SB+1}, 16, v{SB+1}")
            for j, k in enumerate(groups[gi]):
                a(f"s_bfm_b64 exec, s{S_R+k}, 0\nds_write_b64 v{tmp(gi, j)}, v[{P+2*k}:{P+2*k+1}] offset:{RECS}")
            a("s_mov_b64 exec, -1")

        for gi in range(len(groups)):
            if first and gi + AH < len(groups):
                loads(gi + AH)
            keys(gi)
            if gi:
                a("s_waitcnt lgkmcnt(0)")
            take(gi)
            if gi:
                move(gi - 1)
        a("s_waitcnt lgkmcnt(0)")
        move(len(groups) - 1)
        if first:
            a(f"""
            v_and_b32 v{V_L16}, 15, v{V_LANE}
            v_lshlrev_b32 v{V_L16}, 4, v{V_L16}
            s_lshl_b32 s{S_T}, s{S_WAVE}, 8
            s_add_u32 s{S_T}, s{S_T}, {RINGO}
            v_lshrrev_b32 v9, 4, v{V_LANE}
            v_lshl_add_u32 v{V_OADDR}, v9, 3, s{S_T}
            v_lshrrev_b32 v{V_RINGO}, 3, v{V_LANE}
            v_lshlrev_b32 v{V_RINGO}, 5, v{V_RINGO}
            v_and_b32 v9, 3, v{V_LANE}
            v_lshl_add_u32 v{V_RINGO}, v9, 3, v{V_RINGO}
            v_bfe_u32 v9, v{V_LANE}, 2, 1
            v_lshl_add_u32 v{V_RINGO}, v9, 2, v{V_RINGO}
            v_add_u32 v{V_RINGO}, s{S_T}, v{V_RINGO}""")
        a("s_waitcnt lgkmcnt(0)\ns_barrier")

    place(CUR, True)
    stamp(a, cfg, S_WS, 1, TK, 98, S_STAMP)

    C, X, Y, AD, ST, OWN = TK, TK + 4, TK + 5, TK + 6, TK + 7, TK + 8
    a(f"""
    v_lshlrev_b32 v{AD}, 4, v{V_LANE}
    v_mov_b32 v{X}, {FLAG}
    s_lshl_b32 s{S_T}, s{S_WAVE}, 7
    v_lshl_add_u32 v{OWN}, v{V_LANE}, 2, s{S_T}
    ds_read_b128 v[{C}:{C+3}], v{AD} offset:{CUR}
    ds_read_b32 v{X}, v{X}
    ds_read_b32 v{OWN}, v{OWN} offset:{CUR}
    v_lshrrev_b32 v{Y}, 3, v{V_LANE}
    v_mul_u32_u24 v{Y}, {NBLK}, v{Y}
    v_and_b32 v{ST}, 7, v{V_LANE}
    v_lshlrev_b32 v{ST}, 2, v{ST}
    v_min_u32 v{ST}, {NBLK}, v{ST}
    v_add_u32 v{ST}, v{ST}, v{Y}
    v_mul_u32_u24 v{ST}, {CAPB}, v{ST}
    v_and_b32 v{Y}, 7, v{V_LANE}
    v_cmp_gt_u32 vcc, {NBLK // 4}, v{Y}
    v_mov_b32 v{Y}, {CAPB}
    s_waitcnt lgkmcnt(0)
    v_cndmask_b32 v{Y}, 0, v{Y}, vcc
    v_readfirstlane_b32 s{S_MORE}, v{X}""")
    assert NBLK % 4 == 0
    for q in range(4):
        a(f"v_sub_u32 v{C+q}, v{C+q}, v{ST}")
        if q < 3:
            a(f"v_add_u32 v{ST}, v{ST}, v{Y}")
    a(f"""
    v_max_u32 v{X}, v{C}, v{C+1}
    v_max3_u32 v{X}, v{X}, v{C+2}, v{C+3}
    v_cmp_lt_u32 vcc, {CAPB}, v{X}
    s_cmp_lg_u32 s{S_MORE}, 0
    s_cbranch_scc1 K3_clear
    K3_keep:
    s_cbranch_vccnz K3_over""")
    cold(f"""
    K3_clear:
    s_barrier
    v_mov_b32 v{X}, {FLAG}
    v_mov_b32 v{Y}, 0
    ds_write_b32 v{X}, v{Y}
    s_branch K3_keep""")

    a = cold
    a("K3_over:")
    for q in range(1, 4):
        a(f"v_add_u32 v{C+q}, v{C+q}, v{C+q-1}")
    a(f"v_mov_b32 v{X}, v{C+3}")
    wave_scan(a, X)
    a(f"v_sub_u32 v{Y}, v{X}, v{C+3}")
    for q in range(3, 0, -1):
        a(f"v_add_u32 v{C+q}, v{Y}, v{C+q-1}")
    a(f"""
    v_mov_b32 v{C}, v{Y}
    s_lshl_b32 s{S_T}, s{S_WAVE}, 3
    s_add_u32 s{S_T+1}, s{S_T}, 7
    s_bfm_b64 exec, 8, s{S_T}
    ds_write_b128 v{AD}, v[{C}:{C+3}] offset:{BASE}
    s_mov_b64 exec, -1
    v_readlane_b32 s{S_START}, v{Y}, s{S_T}
    v_readlane_b32 s{S_N}, v{X}, s{S_T+1}
    s_sub_u32 s{S_N}, s{S_N}, s{S_START}
    s_waitcnt lgkmcnt(0)
    s_barrier""")
    place(BASE, False)
    a(f"""
    s_lshl_b32 s{S_R}, s{S_START}, 16
    s_or_b32 s{S_R}, s{S_R}, 0xffff
    s_branch K3_placed""")
    a = hot
    bin_start(ST, ST)
    a(f"""
    v_cmp_gt_u32 vcc, {NBLK}, v{V_LANE}
    v_sub_u32 v{C}, v{OWN}, v{ST}
    v_cndmask_b32 v{X}, 0, v{C}, vcc""")
    wave_scan(a, X)
    a(f"""
    v_sub_u32 v{Y}, v{OWN}, v{X}
    v_lshl_or_b32 v{Y}, v{Y}, 16, v{X}
    v_readlane_b32 s{S_N}, v{X}, {NBLK-1}""")
    for b in range(NBLK):
        a(f"v_readlane_b32 s{S_R+b}, v{Y}, {b}")
    a(f"""
    s_or_b32 s{S_R+NBLK-1}, s{S_R+NBLK-1}, 0xffff
    K3_placed:""")

    T0, T1, T2, T3 = V_T, V_T + 1, V_T + 2, V_T + 3
    U0, U1 = V_S, V_S + 1
    assert V_RADDR == V_L8 and (V_L16, V_RINGO, V_OADDR) == (V_SL, V_SO, V_PF)

    def late_constants():
        a(f"""
        v_mov_b32 v{V_MHI}, 0xffff0000
        s_lshl_b32 s{S_T}, s{S_WAVE}, 10
        s_add_u32 s{S_T}, s{S_T}, {RING}
        v_lshl_add_u32 v{V_RINGW}, v{V_LANE}, 4, s{S_T}
        v_bfe_u32 v{T0}, v{V_LANE}, 3, 2
        v_bfe_u32 v{T1}, v{V_LANE}, 1, 1
        v_lshl_add_u32 v{T0}, v{T0}, 1, v{T1}
        v_and_b32 v{T1}, 1, v{V_LANE}
        v_lshlrev_b32 v{T0}, 4, v{T0}
        v_lshlrev_b32 v{T2}, 3, v{T1}
        v_sub_u32 v{T0}, v{T0}, v{T2}
        v_add_u32 v{T0}, s{S_T}, v{T0}
        v_bfe_u32 v{T2}, v{V_LANE}, 2, 1
        v_lshrrev_b32 v{T3}, 5, v{V_LANE}
        v_cmp_eq_u32 vcc, v{T2}, v{T3}
        v_mov_b32 v{T2}, {ZERO}
        v_lshrrev_b32 v{T3}, 4, v{V_LANE}
        v_cndmask_b32 v{V_AADDR}, v{T2}, v{T0}, vcc
        v_mov_b32 v{T0}, 0x3f80
        v_cmp_eq_u32 vcc, 1, v{T1}
        v_bfe_u32 v{T2}, v{V_LANE}, 1, 1
        v_bfe_u32 v{U0}, v{V_LANE}, 2, 2
        v_cndmask_b32 v{T0}, v{T0}, 1.0, vcc
        v_sub_u32 v{T3}, v{T3}, v{T2}
        v_lshl_add_u32 v{T3}, v{T3}, 2, v{U0}""")
        a(f"""
        s_cmp_eq_u32 s{S_R+NS}, 0
        s_cbranch_scc1 K3_unpacked
        s_and_b32 s{S_ELL+2}, s{S_ELL}, 0xffff0000
        s_lshl_b32 s{S_ELL}, s{S_ELL}, 16
        s_lshl_b32 s{S_T}, s{S_ELL+1}, 16
        s_mov_b32 s{S_ELL+1}, s{S_ELL+2}
        s_mov_b32 s{S_ELL+2}, s{S_T}
        s_lshl_b32 s{S_FREQ}, s{S_FREQ}, 16
        s_mov_b32 s{S_T}, 0x05040100
        s_mov_b32 s{S_T+1}, 0x07060302
        v_perm_b32 v{T1}, v{V_BW+2}, v{V_BW}, s{S_T}
        v_perm_b32 v{T2}, v{V_BW+3}, v{V_BW+1}, s{S_T}
        v_perm_b32 v{V_BW+2}, v{V_BW+2}, v{V_BW}, s{S_T+1}
        v_perm_b32 v{V_BW+3}, v{V_BW+3}, v{V_BW+1}, s{S_T+1}
        v_mov_b32 v{V_BW}, v{T1}
        v_mov_b32 v{V_BW+1}, v{T2}
        K3_unpacked:""")
        for aa in range(2):
            for q in range(4):
                sp = S_T if q % 2 else S_I
                a(f"v_cmp_eq_u32 s[{sp}:{sp+1}], {8*aa+q}, v{T3}")
                if q % 2:
                    a(f"""
                    s_nop 0
                    v_cndmask_b32 v{V_AU+4*aa+q-1}, 0, v{T0}, s[{S_I}:{S_I+1}]
                    v_cndmask_b32 v{V_AU+4*aa+q}, 0, v{T0}, s[{S_T}:{S_T+1}]""")

    stamp(a, cfg, S_WS, 2, V_RAW, 98, S_STAMP)
    a(f"""
    s_cmp_eq_u32 s{S_N}, 0
    s_cbranch_scc1 K3_swept
    s_mov_b32 s{S_BIN}, 0
    s_mov_b32 s{S_POS}, 0
    s_and_b32 s{S_NEXT}, s{S_R}, 0xffff
    s_lshr_b32 s{S_D8}, s{S_R}, 16
    s_lshl_b32 s{S_D8}, s{S_D8}, 3""")

    R, TH = V_RN, V_RN + 1
    stage1 = [
        f"v_cmp_gt_i32 vcc, s{S_N}, v{V_LANE}",
        f"v_mov_b32 v{T0}, s{S_MASK}",
        f"v_mov_b32 v{T1}, 1.0",
        f"v_cndmask_b32 v{R}, v{T0}, v{R}, vcc",
        f"v_cndmask_b32 v{TH}, v{T1}, v{TH}, vcc",
        f"v_and_b32 v{T0}, v{V_MHI}, v{TH}",
        f"v_lshlrev_b32 v{TH}, 16, v{TH}",
        f"v_rcp_f32 v{V_RADV}, v{T0}",
        f"v_mul_f32 v{T0}, s{S_FREQ}, v{T0}",
        f"v_cvt_pk_bf16_f32 v{T0}, v{T0}, v{T0}",
        f"v_and_b32 v{T0}, v{V_MHI}, v{T0}",
        f"v_mul_f32 v{T1}, s{S_CHI}, v{T0}",
        f"v_rndne_f32 v{T2}, v{T1}",
        f"v_sub_f32 v{T1}, v{T1}, v{T2}",
        f"v_fma_f32 v{T0}, v{T0}, s{S_CLO}, v{T1}",
        f"v_sin_f32 v{T0}, v{T0}",
        f"v_or_b32_sdwa v{V_IN}, v{R}, s{S_MODE} dst_sel:DWORD dst_unused:UNUSED_PAD src0_sel:BYTE_0 src1_sel:DWORD",
        f"v_cvt_pk_bf16_f32 v{T0}, v{T0}, v{T0}",
        f"v_and_b32 v{T0}, v{V_MHI}, v{T0}",
        f"v_mul_f32 v{V_RADV}, v{T0}, v{V_RADV}",
        f"v_cvt_pk_bf16_f32 v{V_RADV}, v{V_RADV}, v{V_RADV}",
        f"v_and_b32 v{V_RADV}, v{V_MHI}, v{V_RADV}",
    ]
    stage2 = [
        f"v_mul_f32 v{T0}, s{S_ELL}, v{TH}",
        f"v_mul_f32 v{T1}, s{S_ELL+1}, v{TH}",
        f"v_mov_b32_dpp v{T3}, v{V_IN} quad_perm:[1,1,3,3] row_mask:0xf bank_mask:0xf",
        f"v_mul_f32 v{T2}, s{S_ELL+2}, v{TH}",
        f"v_lshl_or_b32 v{V_IN}, v{T3}, 16, v{V_IN}",
        f"v_cvt_pk_bf16_f32 v{T0}, v{T0}, v{T1}",
        f"v_cvt_pk_bf16_f32 v{T2}, v{T2}, v{T2}",
        f"v_and_b32 v{T1}, v{V_MHI}, v{T0}",
        f"v_lshlrev_b32 v{T0}, 16, v{T0}",
        f"v_and_b32 v{T2}, v{V_MHI}, v{T2}",
        f"v_mul_f32 v{U0}, s{S_CHI}, v{T0}",
        f"v_mul_f32 v{U1}, s{S_CHI}, v{T1}",
        f"v_mul_f32 v{T3}, s{S_CHI}, v{T2}",
        f"v_fract_f32 v{U0}, v{U0}",
        f"v_fract_f32 v{U1}, v{U1}",
        f"v_fract_f32 v{T3}, v{T3}",
        f"v_fma_f32 v{T0}, v{T0}, s{S_CLO}, v{U0}",
        f"v_fma_f32 v{T1}, v{T1}, s{S_CLO}, v{U1}",
        f"v_fma_f32 v{T2}, v{T2}, s{S_CLO}, v{T3}",
        f"v_cos_f32 v{T0}, v{T0}",
        f"v_cos_f32 v{T1}, v{T1}",
        f"v_cos_f32 v{T2}, v{T2}",
        f"v_cmp_gt_i32 vcc, 0, v{R}",
        f"v_cvt_pk_bf16_f32 v{T0}, v{T0}, v{T1}",
        f"v_cvt_pk_bf16_f32 v{T2}, v{T2}, v{T2}",
        f"v_and_b32 v{T1}, v{V_MHI}, v{T0}",
        f"v_lshlrev_b32 v{T0}, 16, v{T0}",
        f"v_and_b32 v{T2}, v{V_MHI}, v{T2}",
    ]
    if cfg["const_ell"]:
        stage2 = [
            f"v_mul_f32 v{T2}, s{S_ELL+2}, v{TH}",
            f"v_mov_b32_dpp v{T3}, v{V_IN} quad_perm:[1,1,3,3] row_mask:0xf bank_mask:0xf",
            f"v_mul_f32 v{U0}, s{S_CHI}, v{TH}",
            f"v_cvt_pk_bf16_f32 v{T2}, v{T2}, v{T2}",
            f"v_lshl_or_b32 v{V_IN}, v{T3}, 16, v{V_IN}",
            f"v_and_b32 v{T2}, v{V_MHI}, v{T2}",
            f"v_fract_f32 v{U0}, v{U0}",
            f"v_mul_f32 v{T3}, s{S_CHI}, v{T2}",
            f"v_fma_f32 v{T0}, v{TH}, s{S_CLO}, v{U0}",
            f"v_fract_f32 v{T3}, v{T3}",
            f"v_cos_f32 v{T0}, v{T0}",
            f"v_fma_f32 v{T2}, v{T2}, s{S_CLO}, v{T3}",
            f"v_add_f32 v{T1}, v{T0}, v{T0}",
            f"v_cos_f32 v{T2}, v{T2}",
            f"v_fma_f32 v{T1}, v{T1}, v{T0}, -1.0",
            f"v_cmp_gt_i32 vcc, 0, v{R}",
            f"v_cvt_pk_bf16_f32 v{T0}, v{T0}, v{T1}",
            f"v_cvt_pk_bf16_f32 v{T2}, v{T2}, v{T2}",
            f"v_and_b32 v{T1}, v{V_MHI}, v{T0}",
            f"v_lshlrev_b32 v{T0}, 16, v{T0}",
            f"v_and_b32 v{T2}, v{V_MHI}, v{T2}",
        ]
    stage3 = [
        f"v_mul_f32 v{T0}, v{T0}, v{V_RADV}",
        f"v_mul_f32 v{T1}, v{T1}, v{V_RADV}",
        f"v_mul_f32 v{T2}, v{T2}, v{V_RADV}",
        f"v_cvt_pk_bf16_f32 v{U0}, v{T0}, v{T1}",
        f"v_cvt_pk_bf16_f32 v{U1}, v{T2}, 0",
        f"v_cndmask_b32 v{U0}, v{U0}, 0, vcc",
        f"v_cndmask_b32 v{U1}, v{U1}, v{V_RADV}, vcc",
    ]

    def fetch_batch(tag):
        a(f"""
        v_add_u32 v{T2}, s{S_D8}, v{V_RADDR}
        s_add_u32 s{S_T+1}, s{S_POS}, 64
        s_cmp_ge_u32 s{S_NEXT}, s{S_T+1}
        s_cbranch_scc1 K3_same{tag}
        K3_cross{tag}:
        s_add_u32 s{S_BIN}, s{S_BIN}, 1
        s_mov_b32 m0, s{S_BIN}
        s_sub_u32 s{S_T}, s{S_NEXT}, s{S_POS}
        s_movrels_b32 s{S_NEXT}, s{S_R}
        v_cmp_le_u32 vcc, s{S_T}, v{V_LANE}
        s_lshr_b32 s{S_D8}, s{S_NEXT}, 16
        s_lshl_b32 s{S_D8}, s{S_D8}, 3
        s_and_b32 s{S_NEXT}, s{S_NEXT}, 0xffff
        v_add_u32 v{V_OFF}, s{S_D8}, v{V_RADDR}
        v_cndmask_b32 v{T2}, v{T2}, v{V_OFF}, vcc
        s_cmp_lt_u32 s{S_NEXT}, s{S_T+1}
        s_cbranch_scc1 K3_cross{tag}
        K3_same{tag}:
        ds_read_b64 v[{V_RN}:{V_RN+1}], v{T2} offset:{RECS}
        v_add_u32 v{V_RADDR}, 512, v{V_RADDR}
        s_mov_b32 s{S_POS}, s{S_T+1}""")

    def issue(L):
        o = V_O + 2 * ((L // 2) % 2) + L % 2
        raw = V_RAW + 4 * (L % 8)
        a(f"v_add_u32 v{o}, v{o}, v{V_L16}")
        a(f"buffer_load_dwordx4 v[{raw}:{raw+3}], v{o}, s[{S_H}:{S_H+3}], 0 offen {cfg['row_load']}")

    def o_read(j):
        o = V_O + 2 * (j % 2)
        a(f"ds_read_b64 v[{o}:{o+1}], v{V_OADDR} offset:{32 * (j % 8)}")

    def o_write():
        a(f"v_and_b32 v{V_OFF}, s{S_MASK}, v{R}\nds_write_b32 v{V_RINGO}, v{V_OFF}")

    def a_read(g):
        a(f"ds_read2_b64 v[{V_A}:{V_A+3}], v{V_AADDR} offset0:{16*g} offset1:{16*g+1}")

    def read_step(j):
        return (2 * j - D) // 2 * 2 - 2

    PROG = FLAG + 16
    if cfg["prio"]:
        a(f"""
        s_lshl_b32 s{S_T}, s{S_WAVE}, 2
        s_add_u32 s{S_PF}, s{S_T}, {PROG}
        s_xor_b32 s{S_T}, s{S_T}, 16
        s_add_u32 s{S_NMAX}, s{S_T}, {PROG}""")
    fetch_batch("0")
    a("s_waitcnt lgkmcnt(0)")
    for s in stage1[:5]:
        a(s)
    o_write()
    early = [j for j in range(8) if read_step(j) < 0]
    for j0 in range(0, len(early), 2):
        for j in early[j0:j0 + 2]:
            o_read(j)
        nxt = [L for j in early[j0:j0 + 2] for L in (2 * j, 2 * j + 1) if L < D]
        if nxt:
            a("s_waitcnt lgkmcnt(0)")
            for L in nxt:
                issue(L)
    late_constants()
    for s in stage1[5:] + stage2 + stage3:
        a(s)
    a(f"ds_write_b64 v{V_RINGW}, v[{V_S}:{V_S+1}]\nv_mov_b32 v{V_IC}, v{V_IN}")
    a_read(0)

    body = Asm()
    a_main = a
    fill = {i: [] for i in range(16)}
    fill[2] = stage1[:5]
    rest = stage1[5:] + stage2 + stage3
    steps = list(range(3, 14))
    for n, s in enumerate(rest):
        fill[steps[n * len(steps) // len(rest)]].append(s)
    a = body
    for i in range(16):
        if i and i % cfg["exit_every"] == 0:
            a(f"s_cmp_le_i32 s{S_N}, {4*i-64}\ns_cbranch_scc1 K3_drain")
        if i % 2 == 0:
            a(f"s_waitcnt lgkmcnt(0)\nv_mfma_f32_32x32x16_bf16 v[{V_F}:{V_F+15}], v[{V_A}:{V_A+3}], v[{V_BW}:{V_BW+3}], 0")
            if i == 0:
                a(f"s_sub_u32 s{S_N}, s{S_N}, 64")
                fetch_batch("1")
            if cfg["prio"] and i == 0:
                a(f"""
                v_mov_b32 v{T0}, s{S_PF}
                v_mov_b32 v{T1}, s{S_N}
                v_mov_b32 v{T3}, s{S_NMAX}
                ds_write_b32 v{T0}, v{T1}
                ds_read_b32 v{T3}, v{T3}""")
            if cfg["prio"] and i == 2:
                a(f"""
                v_readfirstlane_b32 s{S_T}, v{T3}
                s_cmp_gt_i32 s{S_N}, s{S_T}
                s_cbranch_scc1 K3_behind
                s_setprio 0
                s_branch K3_prio
                K3_behind:
                s_setprio 1
                K3_prio:""")
            if i == 14:
                a(f"ds_write_b64 v{V_RINGW}, v[{V_S}:{V_S+1}]")
            a_read((i // 2 + 1) % 8)
        n = D - 1
        raw = V_RAW + 4 * (i % 8)
        a(f"""
        s_waitcnt vmcnt({n})
        v_mfma_f32_16x16x32_bf16 v[{V_H}:{V_H+3}], v[{V_AU}:{V_AU+3}], v[{raw}:{raw+3}], 0
        v_mfma_f32_16x16x32_bf16 v[{V_H+4}:{V_H+7}], v[{V_AU+4}:{V_AU+7}], v[{raw}:{raw+3}], 0""")
        issue(i + D)
        for j in range(16):
            if read_step(j) == i:
                if j == 8:
                    o_write()
                o_read(j)
        a(f"v_readlane_b32 s{S_I}, v{V_IC}, {4*i}\nv_readlane_b32 s{S_I+1}, v{V_IC}, {4*i+2}")
        for s in fill[i]:
            a(s)
        for j in range(4):
            f = V_F + 2 * (4 * (i % 2) + j)
            a([f"s_set_gpr_idx_on s{S_I}, gpr_idx(SRC2,DST)", f"s_lshr_b32 m0, s{S_I}, 16",
               f"s_mov_b32 m0, s{S_I+1}", f"s_lshr_b32 m0, s{S_I+1}, 16"][j])
            a(f"v_pk_fma_f32 v[{ACC}:{ACC+1}], v[{V_H+2*j}:{V_H+2*j+1}], v[{f}:{f+1}], v[{ACC}:{ACC+1}]")
        a("s_set_gpr_idx_off")
    a(f"""
    v_mov_b32 v{V_IC}, v{V_IN}
    s_cmp_gt_i32 s{S_N}, 0
    s_cbranch_scc1 K3_batch""")
    a = a_main
    lines, added = pad(body.lines)
    again, extra = pad(lines, before=lines)
    assert extra == 0
    print(f"sweep loop: {len(lines)} instructions, {added} padded wait states", file=sys.stderr)
    a("K3_batch:")
    a.lines += lines
    a(f"""
    K3_drain:
    s_waitcnt vmcnt(0) lgkmcnt(0)
    K3_swept:
    s_mov_b32 s{S_R+NS}, 0
    s_mov_b32 s{S_R+NS+1}, 0
    s_waitcnt lgkmcnt(0)
    s_cmp_lg_u32 s{S_MORE}, 0
    s_cbranch_scc1 K3_round""")
    stamp(a, cfg, S_WS, 4, P, 98, S_STAMP)

    st = cfg["out_store"]
    a(f"""
    v_and_b32 v7, 15, v{V_LANE}
    v_lshrrev_b32 v8, 4, v{V_LANE}
    v_lshlrev_b32 v7, 4, v7
    v_lshl_add_u32 v7, v8, 19, v7
    s_lshl_b32 s{S_T}, s{S_WAVE}, 8
    s_add_u32 s{S_T}, s{S_T}, s{S_B}
    s_lshl_b32 s{S_T}, s{S_T}, 8""")
    for i in range(20):
        t = P + 4 * (i % 8)
        for k in range(4):
            r = min(4 * i + k, 78)
            a(f"v_cvt_pk_bf16_f32 v{t+k}, v{ACC+2*r}, v{ACC+2*r+1}")
        a(f"""
        s_nop 0
        v_permlane32_swap_b32 v{t}, v{t+2}
        v_permlane32_swap_b32 v{t+1}, v{t+3}
        s_nop 1
        v_permlane16_swap_b32 v{t}, v{t+1}
        v_permlane16_swap_b32 v{t+2}, v{t+3}
        buffer_store_dwordx4 v[{t}:{t+3}], v7, s[{S_OUT}:{S_OUT+3}], s{S_T} offen {st}
        s_add_u32 s{S_T}, s{S_T}, {4 << 19}""")
    if cfg["stamps"]:
        a("s_waitcnt vmcnt(0)")
        stamp(a, cfg, S_WS, 5, P, 98, S_STAMP)
    a("K3_end:\ns_endpgm")
    a.lines += cold.lines
    return lds


def descriptor(name, vgpr, sgpr):
    return f""".p2align 6
.amdhsa_kernel {name}
  .amdhsa_next_free_vgpr {vgpr}
  .amdhsa_next_free_sgpr {sgpr}
  .amdhsa_accum_offset {(vgpr + 3) // 4 * 4}
  .amdhsa_group_segment_fixed_size 0
  .amdhsa_kernarg_size 96
  .amdhsa_user_sgpr_count 2
  .amdhsa_user_sgpr_kernarg_segment_ptr 1
  .amdhsa_system_sgpr_workgroup_id_x 1
  .amdhsa_float_denorm_mode_32 3
.end_amdhsa_kernel
"""


DEFAULT = dict(stamps=0, ns=34, dpl=7, rec_load="", capb=104, k1_load="nt", k1_store="sc1", out_store="sc0 sc1", dbg=0, row_load="", prio=1, mask_rec=1, exit_every=4, rot=5, ahead=1, const_ell=0, k1_mask=8, k1_eq=0, k1_wait=0, k1_threads=1024, self_at=34)


def generate(**kw):
    cfg = dict(DEFAULT)
    cfg.update(kw)
    a = Asm()
    lds1, vgpr1 = gen_bucket(a, cfg)
    lds3 = gen_sweep(a, cfg)
    a.lines, added = pad("\n".join(a.lines).split("\n"))
    print(f"{added} wait states padded outside the loop", file=sys.stderr)
    ref = open("standalone__molecular_angular_dimenet__graph.s.ref").read().split("\n")
    head = [ln for ln in ref if ln.startswith(";   offset") or ln.startswith("; Kernarg")]
    head += [
        "; Launch 1 sorts 10240-triplet chunks by destination bucket and builds the radial table;",
        "; launch 2 accumulates one bucket per workgroup, visiting the source rows in increasing order.",
        f"; @launch kernel=bucket_kernel grid=({NCHUNK},1,1) block=({cfg['k1_threads']},1,1) lds={lds1}",
        f"; @launch kernel=sweep_kernel grid=(256,1,1) block=(512,1,1) lds={lds3}",
        '.amdgcn_target "amdgcn-amd-amdhsa--gfx950"',
        ".text",
    ]
    tail = '.section .rodata,"a"\n' + descriptor("bucket_kernel", vgpr1, 64) + descriptor("sweep_kernel", 256, 102)
    return "\n".join(head) + "\n" + a.text() + tail


if __name__ == "__main__":
    out = sys.argv[1]
    kw = {}
    for arg in sys.argv[2:]:
        k, v = arg.split("=", 1)
        kw[k] = type(DEFAULT[k])(int(v)) if isinstance(DEFAULT[k], (bool, int)) else v
    open(out, "w").write(generate(**kw))
```

```python
import struct
import sys

from hazard import pad

E = 160000
T = 2560000
CHUNK = 10240
NCHUNK = T // CHUNK
H_BYTES = E * 256

WS_REC = 0
WS_TAB = 0x1480000
WS_END = WS_TAB + NCHUNK * 1024
WS_STAMP = 0x1500000


def f32bits(x):
    return struct.unpack("<I", struct.pack("<f", x))[0]


INV2PI = 0.15915494309189535
C_HI = f32bits(INV2PI) & 0xFFFFFF00
C_LO = f32bits(INV2PI - struct.unpack("<f", struct.pack("<I", C_HI))[0])


class Asm:
    def __init__(self):
        self.lines = []

    def __call__(self, text):
        for ln in text.strip("\n").split("\n"):
            ln = ln.strip()
            if not ln:
                continue
            self.lines.append(ln if ln.endswith(":") else "    " + ln)

    def raw(self, text):
        self.lines.append(text)

    def text(self):
        return "\n".join(self.lines) + "\n"


def srd(a, d, lo, hi, nbytes):
    a(f"""
    s_mov_b32 s{d}, s{lo}
    s_mov_b32 s{d+1}, s{hi}
    s_mov_b32 s{d+2}, {nbytes}
    s_mov_b32 s{d+3}, 0x20000""")


def wave_scan(a, x):
    for sh in (1, 2, 4, 8):
        a(f"v_add_u32_dpp v{x}, v{x}, v{x} row_shr:{sh} row_mask:0xf bank_mask:0xf bound_ctrl:0")
    a(f"v_add_u32_dpp v{x}, v{x}, v{x} row_bcast:15 row_mask:0xa bank_mask:0xf")
    a(f"v_add_u32_dpp v{x}, v{x}, v{x} row_bcast:31 row_mask:0xc bank_mask:0xf")


def stamp(a, cfg, srd_ws, slot, vtmp, s0, swave_off):
    if not cfg["stamps"]:
        return
    a(f"""
    s_memrealtime s[{s0}:{s0+1}]
    s_waitcnt lgkmcnt(0)
    v_mov_b32 v{vtmp}, s{s0}
    v_mov_b32 v{vtmp+1}, {slot*4}
    s_mov_b64 exec, 1
    buffer_store_dword v{vtmp}, v{vtmp+1}, s[{srd_ws}:{srd_ws+3}], s{swave_off} offen
    s_mov_b64 exec, -1""")


def gen_bucket(a, cfg):
    NT = cfg["k1_threads"]
    NW = NT // 64
    PER = CHUNK // NT
    parts = [4] * (PER // 4) + ([2] if PER % 4 else [])
    HIST, BASE, TBL = 0, 1024, 2048
    RECS = TBL
    HALF = E // 2
    NDMA = -(-HALF * 2 // 1024)
    ND = 160 // NW
    S_JI, S_KJ, S_TH, S_WS, S_D = 16, 20, 24, 28, 36
    S_W, S_O4, S_O2, S_HALF, S_FE = 15, 48, 56, 47, 46
    PP = (PER + 3) // 4 * 4
    JI = [4 + i for i in range(PER)]
    KJ = [4 + PP + i for i in range(PER)]
    TH = 4 + 2 * PP
    R0 = [TH + PP // 2 + 2 * i for i in range(PER)]
    BK = [R0[-1] + 2 + i for i in range(PER)]
    RK = [BK[-1] + 1 + i for i in range(PER)]
    DV = [RK[-1] + 1 + i for i in range(PER)]
    X = (DV[-1] + 2) // 2 * 2
    V_TAB, V_ONE, V_L16, V_A, V_B, V_ST = X, X + 4, X + 5, X + 6, X + 7, X + 8
    nvgpr = X + 10
    ws_size = WS_STAMP + 0x100000 if cfg["stamps"] else WS_END
    st, ld = cfg["k1_store"], cfg["k1_load"]
    a.raw(".p2align 8\n.globl bucket_kernel\n.type bucket_kernel,@function\nbucket_kernel:")
    a(f"""
    s_cmp_ge_u32 s2, {NCHUNK}
    s_cbranch_scc1 K1_end
    s_load_dwordx4 s[4:7], s[0:1], 16
    s_load_dwordx2 s[8:9], s[0:1], 32
    s_load_dwordx2 s[10:11], s[0:1], 88
    s_load_dwordx2 s[44:45], s[0:1], 8
    v_readfirstlane_b32 s{S_W}, v0
    v_lshlrev_b32 v1, 4, v0
    v_lshlrev_b32 v2, 3, v0
    v_lshlrev_b32 v3, 2, v0
    s_lshr_b32 s{S_W}, s{S_W}, 6
    s_mul_i32 s{S_O4}, s2, {CHUNK*4}
    s_mul_i32 s{S_O2}, s2, {CHUNK*2}""")
    for n in range(1, len(parts)):
        a(f"s_add_u32 s{S_O4+n}, s{S_O4}, {n*NT*16}\ns_add_u32 s{S_O2+n}, s{S_O2}, {n*NT*8}")
    a(f"""
    v_mov_b32 v{V_A}, 0
    v_and_b32 v{V_B}, 0x3fc, v3
    v_mov_b32 v{V_ONE}, 1
    v_and_b32 v{V_L16}, 0x3f0, v1
    s_mov_b32 s{S_FE}, 0xfe
    s_mov_b32 s{S_HALF}, {HALF*2}
    ds_write_b32 v{V_B}, v{V_A} offset:{HIST}
    s_waitcnt lgkmcnt(0)""")
    srd(a, S_JI, 8, 9, T * 4)
    srd(a, S_KJ, 6, 7, T * 4)
    srd(a, S_TH, 4, 5, T * 2)
    srd(a, S_WS, 10, 11, ws_size)
    srd(a, S_D, 44, 45, E * 2)
    if cfg["stamps"]:
        a(f"""
        s_lshl_b32 s41, s2, 4
        s_add_u32 s40, s{S_W}, s41
        s_lshl_b32 s40, s40, 5
        s_add_u32 s40, s40, {WS_STAMP}""")

    def mark(slot):
        stamp(a, cfg, S_WS, slot, V_ST, 42, 40)

    mark(0)
    NP = len(parts)
    spans = [(sum(parts[:n]), sum(parts[:n + 1])) for n in range(NP)]

    def stage(piece):
        a(f"""
        s_lshr_b32 s35, s2, 3
        s_mul_i32 s35, s35, {cfg["rot"]}
        s_add_u32 s35, s35, s{S_W}
        s_lshl_b32 s35, s35, 10""")
        for i in range(ND):
            a(f"""
            s_cmp_ge_u32 s35, {160*1024}
            s_cselect_b32 s34, {160*1024}, 0
            s_sub_u32 s35, s35, s34
            s_min_u32 s34, s35, {(NDMA - 1) * 1024}
            s_add_u32 m0, s34, {TBL}
            s_add_u32 s34, s34, {piece * HALF * 2}
            buffer_load_dwordx4 v{V_L16}, s[{S_D}:{S_D+3}], s34 offen lds""")
            if i < ND - 1:
                a(f"s_add_u32 s35, s35, {NW*1024}")

    def idx_loads(regs, srd_):
        for n, (lo, hi) in enumerate(spans):
            w, v = ("x4", 1) if hi - lo == 4 else ("x2", 2)
            a(f"buffer_load_dword{w} v[{regs[lo]}:{regs[hi-1]}], v{v}, s[{srd_}:{srd_+3}], s{S_O4+n} offen {ld}")

    def th_loads():
        for n, (lo, hi) in enumerate(spans):
            if hi - lo == 4:
                a(f"buffer_load_dwordx2 v[{TH+lo//2}:{TH+lo//2+1}], v2, s[{S_TH}:{S_TH+3}], s{S_O2+n} offen {ld}")
            else:
                a(f"buffer_load_dword v{TH+lo//2}, v3, s[{S_TH}:{S_TH+3}], s{S_O2+n} offen {ld}")

    def look(piece):
        for i in range(PER):
            if piece == 0:
                a(f"v_cmpx_gt_u32 vcc, s{S_HALF}, v{KJ[i]}")
            else:
                a(f"v_cmpx_le_u32 vcc, s{S_HALF}, v{KJ[i]}\nv_subrev_u32 v{KJ[i]}, s{S_HALF}, v{KJ[i]}")
            a(f"ds_read_u16 v{DV[i]}, v{KJ[i]} offset:{TBL}\ns_mov_b64 exec, -1")

    def count(younger):
        for n, (lo, hi) in enumerate(spans):
            a(f"s_waitcnt vmcnt({NP - 1 - n + younger})")
            for i in range(lo, hi):
                a(f"v_lshlrev_b32_sdwa v{BK[i]}, 2, v{JI[i]} dst_sel:DWORD dst_unused:UNUSED_PAD src0_sel:DWORD src1_sel:BYTE_0")
            for i in range(lo, hi):
                a(f"ds_add_rtn_u32 v{RK[i]}, v{BK[i]}, v{V_ONE} offset:{HIST}")

    def build(younger):
        for i in range(PER):
            a(f"""
            v_lshrrev_b32 v{V_A}, 10, v{JI[i]}
            v_bfe_u32 v{V_B}, v{JI[i]}, 8, 3
            v_and_or_b32 v{V_A}, v{V_A}, s{S_FE}, v{R0[i]}
            v_lshl_or_b32 v{R0[i]}, v{V_B}, 26, v{V_A}""")
        for n, (lo, hi) in enumerate(spans):
            a(f"s_waitcnt vmcnt({NP - 1 - n + younger})")
            for i in range(lo, hi):
                if i % 2 == 0:
                    a(f"v_and_b32 v{R0[i]+1}, 0xffff, v{TH + i // 2}")
                else:
                    a(f"v_lshrrev_b32 v{R0[i]+1}, 16, v{TH + i // 2}")

    def scan():
        a(f"""
        ds_read_b128 v[4:7], v{V_L16} offset:{HIST}
        s_waitcnt lgkmcnt(0)
        v_add_u32 v8, v4, v5
        v_add3_u32 v8, v8, v6, v7
        v_mov_b32 v9, v8""")
        wave_scan(a, 9)
        a(f"""
        v_sub_u32 v10, v9, v8
        v_add_u32 v11, v10, v4
        v_add_u32 v12, v11, v5
        v_add_u32 v13, v12, v6
        ds_write_b128 v{V_L16}, v[10:13] offset:{BASE}""")
        for i in range(PER):
            a(f"ds_read_b32 v{BK[i]}, v{BK[i]} offset:{BASE}")
        for q in range(4):
            a(f"v_lshl_or_b32 v{V_TAB+q}, v{4+q}, 16, v{10+q}")
        a("s_waitcnt lgkmcnt(0)")
        for i in range(PER):
            a(f"v_add_lshl_u32 v{BK[i]}, v{BK[i]}, v{RK[i]}, 3")

    ns = 1 if cfg["stamps"] else 0
    a("s_bitcmp1_b32 s2, 3\ns_cbranch_scc1 K1_later")
    idx_loads(KJ, S_KJ)
    a("K1_later:")
    stage(0)
    a("s_bitcmp0_b32 s2, 3\ns_cbranch_scc1 K1_both\ns_barrier")
    idx_loads(KJ, S_KJ)
    a("K1_both:\ns_barrier")
    idx_loads(JI, S_JI)
    th_loads()
    a(f"s_waitcnt vmcnt({2*NP})")
    for i in range(PER):
        a(f"v_lshlrev_b32 v{R0[i]}, 8, v{KJ[i]}\nv_lshlrev_b32 v{KJ[i]}, 1, v{KJ[i]}")
    a("s_barrier")
    look(0)
    a("s_waitcnt lgkmcnt(0)\ns_barrier")
    mark(4)
    count(NP + ns)
    stage(1)
    build(ND + ns)
    a("s_waitcnt lgkmcnt(0)\ns_barrier")
    mark(1)
    scan()
    a("s_waitcnt vmcnt(0)\ns_barrier")
    mark(5)
    look(1)
    a(f"""
    s_cmp_lg_u32 s{S_W}, 0
    s_cbranch_scc1 K1_notab
    s_lshl_b32 s35, s2, 10
    s_add_u32 s35, s35, {WS_TAB}
    buffer_store_dwordx4 v[{V_TAB}:{V_TAB+3}], v{V_L16}, s[{S_WS}:{S_WS+3}], s35 offen {st}
    K1_notab:
    s_waitcnt lgkmcnt(0)
    s_barrier""")
    mark(6)
    for i in range(PER):
        a(f"v_lshl_or_b32 v{R0[i]+1}, v{DV[i]}, 16, v{R0[i]+1}")
        a(f"ds_write_b64 v{BK[i]}, v[{R0[i]}:{R0[i]+1}] offset:{RECS}")
    a("s_waitcnt lgkmcnt(0)\ns_barrier")
    mark(2)
    NO = PER // 2
    a(f"s_mul_i32 s12, s2, {CHUNK*8}\nv_add_u32 v2, 0x8000, v1\nv_add_u32 v3, 0x10000, v1")
    for k in range(NO):
        off = k * NT * 16
        a(f"ds_read_b128 v[{4+4*k}:{7+4*k}], v{1 + off // 0x8000} offset:{RECS + off % 0x8000}")
    for k in range(NO):
        a(f"s_waitcnt lgkmcnt({NO-1-k})")
        a(f"buffer_store_dwordx4 v[{4+4*k}:{7+4*k}], v1, s[{S_WS}:{S_WS+3}], s12 offen {st}")
        if k < NO - 1:
            a(f"s_add_u32 s12, s12, {NT*16}")
    if cfg["stamps"]:
        a("s_waitcnt vmcnt(0)")
        mark(3)
    a("K1_end:\ns_endpgm")
    return TBL + NDMA * 1024, nvgpr


def gen_sweep(a, cfg):
    NS = cfg["ns"]
    NSL = NS + 2
    PIECE = 63
    D = cfg["dpl"]
    SHIFT = 21
    NBLK = -(-E // 8192)
    CAPB = cfg["capb"]
    KMASK = 255 << 2
    CUR, BASE, FLAG, ZERO, RING, RINGO, RECS = 0, 1024, 4096, 4352, 5632, 13824, 16384
    CAP = max(8 * (NS * PIECE + 79), 8 * NBLK * CAPB)
    lds = RECS + CAP * 8 + 512
    assert lds <= 163840 and 2 <= D <= 7

    ACC = 98
    V_LANE, V_TOFF, V_BW, V_TLEN = 0, 1, 2, 6
    V_L8, V_ONE, P = 7, 8, 10
    TK = P + 2 * NSL
    G = 6
    V_SL, V_SO, V_PF = TK + 2 * G, TK + 2 * G + 1, TK + 2 * G + 2
    V_RADDR, V_AADDR, V_RINGW = 7, 8, 9
    V_RAW, V_F, V_H, V_A, V_AU, V_O, V_RN, V_S, V_T = 10, 42, 58, 66, 70, 78, 82, 84, 86
    V_IC, V_IN, V_RADV, V_MHI, V_L16, V_RINGO, V_OADDR, V_OFF = 90, 91, 92, 93, 94, 95, 96, 97
    S_H, S_OUT, S_WS, S_D = 4, 8, 12, 76
    S_B, S_WAVE, S_SEG, S_REM, S_OFF, S_MORE, S_N, S_START = 16, 17, 18, 19, 20, 21, 22, 23
    S_ELL, S_CHI, S_CLO, S_MASK, S_MODE, S_NMAX, S_T = 24, 27, 28, 29, 30, 31, 32
    S_FREQ, S_PF = 34, 35
    S_BIN, S_POS, S_NEXT, S_D8 = 39, 70, 71, 72
    S_I = 36
    S_R = 40
    S_STAMP = 96
    ws_size = WS_STAMP + 0x100000 if cfg["stamps"] else WS_END

    hot, cold = a, Asm()
    a.raw(".p2align 8\n.globl sweep_kernel\n.type sweep_kernel,@function\nsweep_kernel:")
    a(f"""
    s_cmp_ge_u32 s2, 256
    s_cbranch_scc1 K3_end
    {"s_memrealtime s[100:101]" if cfg["stamps"] else ""}
    s_load_dwordx2 s[86:87], s[0:1], 88
    s_load_dwordx4 s[80:83], s[0:1], 0
    s_load_dwordx2 s[84:85], s[0:1], 40
    s_load_dwordx4 s[88:91], s[0:1], 48
    s_load_dwordx4 s[92:95], s[0:1], 64
    v_readfirstlane_b32 s{S_WAVE}, v0
    s_and_b32 s{S_B}, s2, 7
    s_lshl_b32 s{S_B}, s{S_B}, 5
    s_lshr_b32 s{S_T}, s2, 3
    s_add_u32 s{S_B}, s{S_B}, s{S_T}
    s_lshr_b32 s{S_WAVE}, s{S_WAVE}, 6
    v_lshlrev_b32 v{P}, 5, v0
    v_and_b32 v{V_LANE}, 63, v0
    v_mov_b32 v{P+2}, 0
    v_mov_b32 v{P+3}, 0
    v_mov_b32 v{P+4}, 0
    v_mov_b32 v{P+5}, 0
    ds_write_b128 v{P}, v[{P+2}:{P+5}] offset:{FLAG}
    ds_write_b128 v{P}, v[{P+2}:{P+5}] offset:{FLAG+16}
    s_lshl_b32 s{S_T}, s{S_WAVE}, 5
    v_add_u32 v{V_TOFF}, s{S_T}, v{V_LANE}
    v_lshlrev_b32 v{P+1}, 10, v{V_TOFF}
    v_and_b32 v{P+6}, 15, v{V_LANE}
    v_lshrrev_b32 v{P+7}, 4, v{V_LANE}
    v_lshl_add_u32 v{P+6}, v{P+6}, 2, v{P+7}
    v_lshlrev_b32 v{P+6}, 2, v{P+6}
    s_lshl_b32 s{S_T}, s{S_B}, 2
    s_add_u32 s{S_T}, s{S_T}, {WS_TAB}
    s_waitcnt lgkmcnt(0)""")
    if cfg["stamps"]:
        a("s_memrealtime s[98:99]\ns_waitcnt lgkmcnt(0)\ns_mov_b32 s101, s98")
    srd(a, S_WS, 86, 87, ws_size)
    a(f"""
    v_mov_b32 v{V_TLEN}, 0
    s_bfm_b64 exec, 32, 0
    buffer_load_dword v{V_TLEN}, v{P+1}, s[{S_WS}:{S_WS+3}], s{S_T} offen
    s_mov_b64 exec, -1""")
    a(f"s_load_dwordx2 s[{S_ELL}:{S_ELL+1}], s[88:89], 0\ns_load_dword s{S_FREQ}, s[84:85], 0")
    SA, SB = P + 2 * NS, P + 2 * NS + 2
    srd(a, S_H, 90, 91, 768)
    srd(a, S_OUT, 92, 93, 256)
    srd(a, S_D, 82, 83, E * 2)
    a(f"""
    buffer_load_dword v{V_BW}, v{P+6}, s[{S_H}:{S_H+3}], 0 offen
    buffer_load_dword v{V_BW+2}, v{P+6}, s[{S_H}:{S_H+3}], 0 offen offset:256
    buffer_load_dword v{V_BW+1}, v{P+6}, s[{S_H}:{S_H+3}], 0 offen offset:512
    buffer_load_dword v{V_BW+3}, v{P+6}, s[{S_OUT}:{S_OUT+3}], 0 offen
""")
    srd(a, S_H, 80, 81, 0 if cfg["dbg"] & 1 else H_BYTES)
    srd(a, S_OUT, 94, 95, H_BYTES)

    if cfg["stamps"]:
        a(f"""
        s_lshl_b32 s{S_STAMP}, s2, 3
        s_add_u32 s{S_STAMP}, s{S_STAMP}, s{S_WAVE}
        s_lshl_b32 s{S_STAMP}, s{S_STAMP}, 5
        s_add_u32 s{S_STAMP}, s{S_STAMP}, {WS_STAMP + 0x40000}""")
    a(f"""
    s_mov_b32 s{S_CHI}, {C_HI:#x}
    s_mov_b32 s{S_CLO}, {C_LO:#x}
    s_mov_b32 s{S_MASK}, 0x03ffff00
    s_mov_b32 s{S_MODE}, 0xc000
    s_mov_b32 s{S_T}, {CHUNK*8}
    v_cmp_gt_u32 vcc, {NCHUNK}, v{V_TOFF}
    v_mul_lo_u32 v{V_TOFF}, v{V_TOFF}, s{S_T}
    s_mov_b32 s{S_SEG}, 0
    s_mov_b32 s{S_REM}, 0
    s_mov_b32 s{S_OFF}, 0""")
    a(f"""
    s_lshl_b32 s{S_T}, s{S_WAVE}, 8
    s_add_u32 s{S_T}, s{S_T}, s{S_B}
    s_lshl_b32 s{S_T}, s{S_T}, 8
    s_lshl_b32 s{S_T+1}, s{S_WAVE}, 26
    s_or_b32 s{S_T}, s{S_T}, s{S_T+1}
    s_bitset1_b32 s{S_T}, 31
    s_mov_b32 s{S_T+1}, {(1 << 19) + 2}
    v_mul_lo_u32 v{SA}, v{V_LANE}, s{S_T+1}
    v_add_u32 v{SA}, s{S_T}, v{SA}
    v_add_u32 v{SB}, {40 * ((1 << 19) + 2)}, v{SA}
    s_mov_b32 s{S_R+NS}, 40
    s_cmp_eq_u32 s{S_WAVE}, 0
    s_cselect_b32 s{S_R+NS+1}, 39, 38""")
    for i in range(158):
        a(f"v_mov_b32 v{ACC+i}, 0")
    a(f"""
    s_waitcnt vmcnt(4)
    v_cndmask_b32 v{V_TLEN}, 0, v{V_TLEN}, vcc
    v_and_b32 v{P+1}, 0xffff, v{V_TLEN}
    v_lshl_add_u32 v{V_TOFF}, v{P+1}, 3, v{V_TOFF}
    v_lshrrev_b32 v{V_TLEN}, 16, v{V_TLEN}""")
    stamp(a, cfg, S_WS, 0, P, 98, S_STAMP)
    if cfg["stamps"]:
        for slot, sr in ((3, 100), (6, 101)):
            a(f"""
            v_mov_b32 v{P}, s{sr}
            v_mov_b32 v{P+1}, {slot*4}
            s_mov_b64 exec, 1
            buffer_store_dword v{P}, v{P+1}, s[{S_WS}:{S_WS+3}], s{S_STAMP} offen
            s_mov_b64 exec, -1""")

    a(f"""
    K3_round:
    v_lshlrev_b32 v{V_L8}, 3, v{V_LANE}
    v_mov_b32 v{V_ONE}, 1""")
    rl = cfg["rec_load"]

    a(f"""
    v_mov_b32 v{V_SL}, v{V_TLEN}
    v_mov_b32 v{V_SO}, v{V_TOFF}
    v_cmp_lt_u32 vcc, {PIECE}, v{V_TLEN}
    s_or_b32 s{S_T}, vcc_lo, s{S_SEG}
    s_cbranch_scc1 K3_long
    s_mov_b32 s{S_SEG}, 32
    K3_listed:""")
    cold(f"""
    K3_long:
    s_mov_b32 s{S_I+2}, {2 * PIECE}
    v_cmp_lt_u32 s[{S_T}:{S_T+1}], s{S_I+2}, v{V_TLEN}
    s_bcnt1_i32_b32 s{S_I}, vcc_lo
    s_or_b32 s{S_T}, s{S_T}, s{S_SEG}
    s_cbranch_scc1 K3_general
    s_cmp_gt_u32 s{S_I}, {NS - 32}
    s_cbranch_scc1 K3_general
    s_mov_b32 s{S_SEG}, 32
    s_mov_b32 s{S_I}, vcc_lo
    K3_spill:
    s_cmp_eq_u32 s{S_I}, 0
    s_cbranch_scc1 K3_listed
    s_ff1_i32_b32 s{S_I+1}, s{S_I}
    s_bitset0_b32 s{S_I}, s{S_I+1}
    v_readlane_b32 s{S_T}, v{V_TLEN}, s{S_I+1}
    v_readlane_b32 s{S_T+1}, v{V_TOFF}, s{S_I+1}
    s_mov_b32 m0, s{S_I+1}
    s_sub_u32 s{S_T}, s{S_T}, {PIECE}
    v_writelane_b32 v{V_SL}, {PIECE}, m0
    s_bcnt1_i32_b32 s{S_I+1}, s{S_I}
    s_add_u32 m0, s{S_I+1}, 32
    s_add_u32 s{S_T+1}, s{S_T+1}, {PIECE*8}
    v_writelane_b32 v{V_SL}, s{S_T}, m0
    v_writelane_b32 v{V_SO}, s{S_T+1}, m0
    s_branch K3_spill
    K3_general:
    s_mov_b32 s{S_I}, 0
    K3_slot:
    s_cmp_lg_u32 s{S_REM}, 0
    s_cbranch_scc1 K3_have
    K3_adv:
    s_cmp_ge_u32 s{S_SEG}, 32
    s_cbranch_scc1 K3_have
    v_readlane_b32 s{S_REM}, v{V_TLEN}, s{S_SEG}
    v_readlane_b32 s{S_OFF}, v{V_TOFF}, s{S_SEG}
    s_add_u32 s{S_SEG}, s{S_SEG}, 1
    s_cmp_eq_u32 s{S_REM}, 0
    s_cbranch_scc1 K3_adv
    K3_have:
    s_min_u32 s{S_T}, s{S_REM}, {PIECE}
    s_mov_b32 m0, s{S_I}
    s_mov_b32 s{S_T+1}, s{S_OFF}
    v_writelane_b32 v{V_SL}, s{S_T}, m0
    v_writelane_b32 v{V_SO}, s{S_T+1}, m0
    s_sub_u32 s{S_REM}, s{S_REM}, s{S_T}
    s_add_u32 s{S_OFF}, s{S_OFF}, {PIECE*8}
    s_add_u32 s{S_I}, s{S_I}, 1
    s_cmp_lt_u32 s{S_I}, {NS}
    s_cbranch_scc1 K3_slot
    s_branch K3_listed""")

    at = cfg['self_at']
    order = list(range(at)) + [NS, NS + 1] + list(range(at, NS))
    groups = [order[i:i + G] for i in range(0, NSL, G)]
    vm = []

    def loads(gi):
        ks = [k for k in groups[gi] if k < NS]
        for n0 in range(0, len(ks), 3):
            for n, k in enumerate(ks[n0:n0 + 3]):
                a(f"v_readlane_b32 s{S_I+n}, v{V_SO}, {k}")
            for n, k in enumerate(ks[n0:n0 + 3]):
                a(f"v_readlane_b32 s{S_R+k}, v{V_SL}, {k}")
            for n, k in enumerate(ks[n0:n0 + 3]):
                if cfg["mask_rec"]:
                    a(f"s_max_u32 s{S_T+1}, s{S_R+k}, 1\ns_bfm_b64 exec, s{S_T+1}, 0")
                a(f"buffer_load_dwordx2 v[{P+2*k}:{P+2*k+1}], v{V_L8}, s[{S_WS}:{S_WS+3}], s{S_I+n} offen {rl}")
                vm.append(k)
        if NS in groups[gi]:
            a(f"""
            s_mov_b64 exec, -1
            s_lshl_b32 s{S_T}, s{S_WAVE}, 8
            s_add_u32 s{S_T}, s{S_T}, s{S_B}
            s_lshl_b32 s{S_T}, s{S_T}, 1
            s_add_u32 s{S_T+1}, s{S_T}, {40 * 4096}
            v_lshlrev_b32 v9, 12, v{V_LANE}
            s_bfm_b64 exec, 40, 0
            buffer_load_ushort v{SA+1}, v9, s[{S_D}:{S_D+3}], s{S_T} offen
            buffer_load_ushort v{SB+1}, v9, s[{S_D}:{S_D+3}], s{S_T+1} offen""")
            vm.extend([NS, NS + 1])
        a("s_mov_b64 exec, -1")

    AH = cfg["ahead"]
    for gi in range(AH):
        loads(gi)

    def bin_start(dst, tmp_):
        a(f"""
        s_mul_i32 s{S_T}, s{S_WAVE}, {NBLK * CAPB}
        v_min_u32 v{tmp_}, {NBLK}, v{V_LANE}
        v_mul_u32_u24 v{tmp_}, {CAPB}, v{tmp_}
        v_add_u32 v{dst}, s{S_T}, v{tmp_}""")

    bin_start(TK + 1, TK + 1)
    a(f"""
    s_lshl_b32 s{S_T}, s{S_WAVE}, 7
    v_lshl_add_u32 v{TK}, v{V_LANE}, 2, s{S_T}
    s_bfm_b64 exec, 32, 0
    ds_write_b32 v{TK}, v{TK+1} offset:{CUR}
    s_mov_b64 exec, -1
    v_cmp_le_u32 vcc, s{S_SEG}, v{V_LANE}
    v_cmp_lt_u32 s[{S_T}:{S_T+1}], 0, v{V_TLEN}
    s_and_b32 s{S_T}, s{S_T}, vcc_lo
    s_or_b32 s{S_T}, s{S_T}, s{S_REM}
    s_waitcnt lgkmcnt(0)
    s_barrier
    s_cmp_lg_u32 s{S_T}, 0
    s_cbranch_scc1 K3_more
    K3_nomore:""")
    cold(f"""
    K3_more:
    v_mov_b32 v{V_PF}, {FLAG}
    ds_write_b32 v{V_PF}, v{V_ONE}
    s_branch K3_nomore""")

    def tmp(gi, j):
        return TK + (gi % 2) * G + j

    def place(cursors, first):
        def keys(gi):
            for j, k in enumerate(groups[gi]):
                if first and k < NS:
                    a(f"s_waitcnt vmcnt({len(vm) - 1 - vm.index(k)})")
                a(f"v_lshrrev_b32 v{tmp(gi, j)}, {SHIFT-2}, v{P+2*k}\nv_and_b32 v{tmp(gi, j)}, {KMASK}, v{tmp(gi, j)}")

        def take(gi):
            for j, k in enumerate(groups[gi]):
                a(f"s_bfm_b64 exec, s{S_R+k}, 0\nds_add_rtn_u32 v{tmp(gi, j)}, v{tmp(gi, j)}, v{V_ONE} offset:{cursors}")
            a("s_mov_b64 exec, -1")

        def move(gi):
            for j, k in enumerate(groups[gi]):
                a(f"v_lshlrev_b32 v{tmp(gi, j)}, 3, v{tmp(gi, j)}")
            if first and NS in groups[gi]:
                a(f"s_waitcnt vmcnt({len(vm) - 1 - vm.index(NS + 1)})\nv_lshlrev_b32 v{SA+1}, 16, v{SA+1}\nv_lshlrev_b32 v{SB+1}, 16, v{SB+1}")
            for j, k in enumerate(groups[gi]):
                a(f"s_bfm_b64 exec, s{S_R+k}, 0\nds_write_b64 v{tmp(gi, j)}, v[{P+2*k}:{P+2*k+1}] offset:{RECS}")
            a("s_mov_b64 exec, -1")

        for gi in range(len(groups)):
            if first and gi + AH < len(groups):
                loads(gi + AH)
            keys(gi)
            if gi:
                a("s_waitcnt lgkmcnt(0)")
            take(gi)
            if gi:
                move(gi - 1)
        a("s_waitcnt lgkmcnt(0)")
        move(len(groups) - 1)
        if first:
            a(f"""
            v_and_b32 v{V_L16}, 15, v{V_LANE}
            v_lshlrev_b32 v{V_L16}, 4, v{V_L16}
            s_lshl_b32 s{S_T}, s{S_WAVE}, 8
            s_add_u32 s{S_T}, s{S_T}, {RINGO}
            v_lshrrev_b32 v9, 4, v{V_LANE}
            v_lshl_add_u32 v{V_OADDR}, v9, 3, s{S_T}
            v_lshrrev_b32 v{V_RINGO}, 3, v{V_LANE}
            v_lshlrev_b32 v{V_RINGO}, 5, v{V_RINGO}
            v_and_b32 v9, 3, v{V_LANE}
            v_lshl_add_u32 v{V_RINGO}, v9, 3, v{V_RINGO}
            v_bfe_u32 v9, v{V_LANE}, 2, 1
            v_lshl_add_u32 v{V_RINGO}, v9, 2, v{V_RINGO}
            v_add_u32 v{V_RINGO}, s{S_T}, v{V_RINGO}""")
        a("s_waitcnt lgkmcnt(0)\ns_barrier")

    place(CUR, True)
    stamp(a, cfg, S_WS, 1, TK, 98, S_STAMP)

    C, X, Y, AD, ST, OWN = TK, TK + 4, TK + 5, TK + 6, TK + 7, TK + 8
    a(f"""
    v_lshlrev_b32 v{AD}, 4, v{V_LANE}
    v_mov_b32 v{X}, {FLAG}
    s_lshl_b32 s{S_T}, s{S_WAVE}, 7
    v_lshl_add_u32 v{OWN}, v{V_LANE}, 2, s{S_T}
    ds_read_b128 v[{C}:{C+3}], v{AD} offset:{CUR}
    ds_read_b32 v{X}, v{X}
    ds_read_b32 v{OWN}, v{OWN} offset:{CUR}
    v_lshrrev_b32 v{Y}, 3, v{V_LANE}
    v_mul_u32_u24 v{Y}, {NBLK}, v{Y}
    v_and_b32 v{ST}, 7, v{V_LANE}
    v_lshlrev_b32 v{ST}, 2, v{ST}
    v_min_u32 v{ST}, {NBLK}, v{ST}
    v_add_u32 v{ST}, v{ST}, v{Y}
    v_mul_u32_u24 v{ST}, {CAPB}, v{ST}
    v_and_b32 v{Y}, 7, v{V_LANE}
    v_cmp_gt_u32 vcc, {NBLK // 4}, v{Y}
    v_mov_b32 v{Y}, {CAPB}
    s_waitcnt lgkmcnt(0)
    v_cndmask_b32 v{Y}, 0, v{Y}, vcc
    v_readfirstlane_b32 s{S_MORE}, v{X}""")
    assert NBLK % 4 == 0
    for q in range(4):
        a(f"v_sub_u32 v{C+q}, v{C+q}, v{ST}")
        if q < 3:
            a(f"v_add_u32 v{ST}, v{ST}, v{Y}")
    a(f"""
    v_max_u32 v{X}, v{C}, v{C+1}
    v_max3_u32 v{X}, v{X}, v{C+2}, v{C+3}
    v_cmp_lt_u32 vcc, {CAPB}, v{X}
    s_cmp_lg_u32 s{S_MORE}, 0
    s_cbranch_scc1 K3_clear
    K3_keep:
    s_cbranch_vccnz K3_over""")
    cold(f"""
    K3_clear:
    s_barrier
    v_mov_b32 v{X}, {FLAG}
    v_mov_b32 v{Y}, 0
    ds_write_b32 v{X}, v{Y}
    s_branch K3_keep""")

    a = cold
    a("K3_over:")
    for q in range(1, 4):
        a(f"v_add_u32 v{C+q}, v{C+q}, v{C+q-1}")
    a(f"v_mov_b32 v{X}, v{C+3}")
    wave_scan(a, X)
    a(f"v_sub_u32 v{Y}, v{X}, v{C+3}")
    for q in range(3, 0, -1):
        a(f"v_add_u32 v{C+q}, v{Y}, v{C+q-1}")
    a(f"""
    v_mov_b32 v{C}, v{Y}
    s_lshl_b32 s{S_T}, s{S_WAVE}, 3
    s_add_u32 s{S_T+1}, s{S_T}, 7
    s_bfm_b64 exec, 8, s{S_T}
    ds_write_b128 v{AD}, v[{C}:{C+3}] offset:{BASE}
    s_mov_b64 exec, -1
    v_readlane_b32 s{S_START}, v{Y}, s{S_T}
    v_readlane_b32 s{S_N}, v{X}, s{S_T+1}
    s_sub_u32 s{S_N}, s{S_N}, s{S_START}
    s_waitcnt lgkmcnt(0)
    s_barrier""")
    place(BASE, False)
    a(f"""
    s_lshl_b32 s{S_R}, s{S_START}, 16
    s_or_b32 s{S_R}, s{S_R}, 0xffff
    s_branch K3_placed""")
    a = hot
    bin_start(ST, ST)
    a(f"""
    v_cmp_gt_u32 vcc, {NBLK}, v{V_LANE}
    v_sub_u32 v{C}, v{OWN}, v{ST}
    v_cndmask_b32 v{X}, 0, v{C}, vcc""")
    wave_scan(a, X)
    a(f"""
    v_sub_u32 v{Y}, v{OWN}, v{X}
    v_lshl_or_b32 v{Y}, v{Y}, 16, v{X}
    v_readlane_b32 s{S_N}, v{X}, {NBLK-1}""")
    for b in range(NBLK):
        a(f"v_readlane_b32 s{S_R+b}, v{Y}, {b}")
    a(f"""
    s_or_b32 s{S_R+NBLK-1}, s{S_R+NBLK-1}, 0xffff
    K3_placed:""")

    T0, T1, T2, T3 = V_T, V_T + 1, V_T + 2, V_T + 3
    U0, U1 = V_S, V_S + 1
    assert V_RADDR == V_L8 and (V_L16, V_RINGO, V_OADDR) == (V_SL, V_SO, V_PF)

    def late_constants():
        a(f"""
        v_mov_b32 v{V_MHI}, 0xffff0000
        s_lshl_b32 s{S_T}, s{S_WAVE}, 10
        s_add_u32 s{S_T}, s{S_T}, {RING}
        v_lshl_add_u32 v{V_RINGW}, v{V_LANE}, 4, s{S_T}
        v_bfe_u32 v{T0}, v{V_LANE}, 3, 2
        v_bfe_u32 v{T1}, v{V_LANE}, 1, 1
        v_lshl_add_u32 v{T0}, v{T0}, 1, v{T1}
        v_and_b32 v{T1}, 1, v{V_LANE}
        v_lshlrev_b32 v{T0}, 4, v{T0}
        v_lshlrev_b32 v{T2}, 3, v{T1}
        v_sub_u32 v{T0}, v{T0}, v{T2}
        v_add_u32 v{T0}, s{S_T}, v{T0}
        v_bfe_u32 v{T2}, v{V_LANE}, 2, 1
        v_lshrrev_b32 v{T3}, 5, v{V_LANE}
        v_cmp_eq_u32 vcc, v{T2}, v{T3}
        v_mov_b32 v{T2}, {ZERO}
        v_lshrrev_b32 v{T3}, 4, v{V_LANE}
        v_cndmask_b32 v{V_AADDR}, v{T2}, v{T0}, vcc
        v_mov_b32 v{T0}, 0x3f80
        v_cmp_eq_u32 vcc, 1, v{T1}
        v_bfe_u32 v{T2}, v{V_LANE}, 1, 1
        v_bfe_u32 v{U0}, v{V_LANE}, 2, 2
        v_cndmask_b32 v{T0}, v{T0}, 1.0, vcc
        v_sub_u32 v{T3}, v{T3}, v{T2}
        v_lshl_add_u32 v{T3}, v{T3}, 2, v{U0}""")
        a(f"""
        s_cmp_eq_u32 s{S_R+NS}, 0
        s_cbranch_scc1 K3_unpacked
        s_and_b32 s{S_ELL+2}, s{S_ELL}, 0xffff0000
        s_lshl_b32 s{S_ELL}, s{S_ELL}, 16
        s_lshl_b32 s{S_T}, s{S_ELL+1}, 16
        s_mov_b32 s{S_ELL+1}, s{S_ELL+2}
        s_mov_b32 s{S_ELL+2}, s{S_T}
        s_lshl_b32 s{S_FREQ}, s{S_FREQ}, 16
        s_mov_b32 s{S_T}, 0x05040100
        s_mov_b32 s{S_T+1}, 0x07060302
        v_perm_b32 v{T1}, v{V_BW+2}, v{V_BW}, s{S_T}
        v_perm_b32 v{T2}, v{V_BW+3}, v{V_BW+1}, s{S_T}
        v_perm_b32 v{V_BW+2}, v{V_BW+2}, v{V_BW}, s{S_T+1}
        v_perm_b32 v{V_BW+3}, v{V_BW+3}, v{V_BW+1}, s{S_T+1}
        v_mov_b32 v{V_BW}, v{T1}
        v_mov_b32 v{V_BW+1}, v{T2}
        K3_unpacked:""")
        for aa in range(2):
            for q in range(4):
                sp = S_T if q % 2 else S_I
                a(f"v_cmp_eq_u32 s[{sp}:{sp+1}], {8*aa+q}, v{T3}")
                if q % 2:
                    a(f"""
                    s_nop 0
                    v_cndmask_b32 v{V_AU+4*aa+q-1}, 0, v{T0}, s[{S_I}:{S_I+1}]
                    v_cndmask_b32 v{V_AU+4*aa+q}, 0, v{T0}, s[{S_T}:{S_T+1}]""")

    stamp(a, cfg, S_WS, 2, V_RAW, 98, S_STAMP)
    a(f"""
    s_cmp_eq_u32 s{S_N}, 0
    s_cbranch_scc1 K3_swept
    s_mov_b32 s{S_BIN}, 0
    s_mov_b32 s{S_POS}, 0
    s_and_b32 s{S_NEXT}, s{S_R}, 0xffff
    s_lshr_b32 s{S_D8}, s{S_R}, 16
    s_lshl_b32 s{S_D8}, s{S_D8}, 3""")

    R, TH = V_RN, V_RN + 1
    stage1 = [
        f"v_cmp_gt_i32 vcc, s{S_N}, v{V_LANE}",
        f"v_mov_b32 v{T0}, s{S_MASK}",
        f"v_mov_b32 v{T1}, 1.0",
        f"v_cndmask_b32 v{R}, v{T0}, v{R}, vcc",
        f"v_cndmask_b32 v{TH}, v{T1}, v{TH}, vcc",
        f"v_and_b32 v{T0}, v{V_MHI}, v{TH}",
        f"v_lshlrev_b32 v{TH}, 16, v{TH}",
        f"v_rcp_f32 v{V_RADV}, v{T0}",
        f"v_mul_f32 v{T0}, s{S_FREQ}, v{T0}",
        f"v_cvt_pk_bf16_f32 v{T0}, v{T0}, v{T0}",
        f"v_and_b32 v{T0}, v{V_MHI}, v{T0}",
        f"v_mul_f32 v{T1}, s{S_CHI}, v{T0}",
        f"v_rndne_f32 v{T2}, v{T1}",
        f"v_sub_f32 v{T1}, v{T1}, v{T2}",
        f"v_fma_f32 v{T0}, v{T0}, s{S_CLO}, v{T1}",
        f"v_sin_f32 v{T0}, v{T0}",
        f"v_or_b32_sdwa v{V_IN}, v{R}, s{S_MODE} dst_sel:DWORD dst_unused:UNUSED_PAD src0_sel:BYTE_0 src1_sel:DWORD",
        f"v_cvt_pk_bf16_f32 v{T0}, v{T0}, v{T0}",
        f"v_and_b32 v{T0}, v{V_MHI}, v{T0}",
        f"v_mul_f32 v{V_RADV}, v{T0}, v{V_RADV}",
        f"v_cvt_pk_bf16_f32 v{V_RADV}, v{V_RADV}, v{V_RADV}",
        f"v_and_b32 v{V_RADV}, v{V_MHI}, v{V_RADV}",
    ]
    stage2 = [
        f"v_mul_f32 v{T0}, s{S_ELL}, v{TH}",
        f"v_mul_f32 v{T1}, s{S_ELL+1}, v{TH}",
        f"v_mov_b32_dpp v{T3}, v{V_IN} quad_perm:[1,1,3,3] row_mask:0xf bank_mask:0xf",
        f"v_mul_f32 v{T2}, s{S_ELL+2}, v{TH}",
        f"v_lshl_or_b32 v{V_IN}, v{T3}, 16, v{V_IN}",
        f"v_cvt_pk_bf16_f32 v{T0}, v{T0}, v{T1}",
        f"v_cvt_pk_bf16_f32 v{T2}, v{T2}, v{T2}",
        f"v_and_b32 v{T1}, v{V_MHI}, v{T0}",
        f"v_lshlrev_b32 v{T0}, 16, v{T0}",
        f"v_and_b32 v{T2}, v{V_MHI}, v{T2}",
        f"v_mul_f32 v{U0}, s{S_CHI}, v{T0}",
        f"v_mul_f32 v{U1}, s{S_CHI}, v{T1}",
        f"v_mul_f32 v{T3}, s{S_CHI}, v{T2}",
        f"v_fract_f32 v{U0}, v{U0}",
        f"v_fract_f32 v{U1}, v{U1}",
        f"v_fract_f32 v{T3}, v{T3}",
        f"v_fma_f32 v{T0}, v{T0}, s{S_CLO}, v{U0}",
        f"v_fma_f32 v{T1}, v{T1}, s{S_CLO}, v{U1}",
        f"v_fma_f32 v{T2}, v{T2}, s{S_CLO}, v{T3}",
        f"v_cos_f32 v{T0}, v{T0}",
        f"v_cos_f32 v{T1}, v{T1}",
        f"v_cos_f32 v{T2}, v{T2}",
        f"v_cmp_gt_i32 vcc, 0, v{R}",
        f"v_cvt_pk_bf16_f32 v{T0}, v{T0}, v{T1}",
        f"v_cvt_pk_bf16_f32 v{T2}, v{T2}, v{T2}",
        f"v_and_b32 v{T1}, v{V_MHI}, v{T0}",
        f"v_lshlrev_b32 v{T0}, 16, v{T0}",
        f"v_and_b32 v{T2}, v{V_MHI}, v{T2}",
    ]
    if cfg["const_ell"]:
        stage2 = [
            f"v_mul_f32 v{T2}, s{S_ELL+2}, v{TH}",
            f"v_mov_b32_dpp v{T3}, v{V_IN} quad_perm:[1,1,3,3] row_mask:0xf bank_mask:0xf",
            f"v_mul_f32 v{U0}, s{S_CHI}, v{TH}",
            f"v_cvt_pk_bf16_f32 v{T2}, v{T2}, v{T2}",
            f"v_lshl_or_b32 v{V_IN}, v{T3}, 16, v{V_IN}",
            f"v_and_b32 v{T2}, v{V_MHI}, v{T2}",
            f"v_fract_f32 v{U0}, v{U0}",
            f"v_mul_f32 v{T3}, s{S_CHI}, v{T2}",
            f"v_fma_f32 v{T0}, v{TH}, s{S_CLO}, v{U0}",
            f"v_fract_f32 v{T3}, v{T3}",
            f"v_cos_f32 v{T0}, v{T0}",
            f"v_fma_f32 v{T2}, v{T2}, s{S_CLO}, v{T3}",
            f"v_add_f32 v{T1}, v{T0}, v{T0}",
            f"v_cos_f32 v{T2}, v{T2}",
            f"v_fma_f32 v{T1}, v{T1}, v{T0}, -1.0",
            f"v_cmp_gt_i32 vcc, 0, v{R}",
            f"v_cvt_pk_bf16_f32 v{T0}, v{T0}, v{T1}",
            f"v_cvt_pk_bf16_f32 v{T2}, v{T2}, v{T2}",
            f"v_and_b32 v{T1}, v{V_MHI}, v{T0}",
            f"v_lshlrev_b32 v{T0}, 16, v{T0}",
            f"v_and_b32 v{T2}, v{V_MHI}, v{T2}",
        ]
    stage3 = [
        f"v_mul_f32 v{T0}, v{T0}, v{V_RADV}",
        f"v_mul_f32 v{T1}, v{T1}, v{V_RADV}",
        f"v_mul_f32 v{T2}, v{T2}, v{V_RADV}",
        f"v_cvt_pk_bf16_f32 v{U0}, v{T0}, v{T1}",
        f"v_cvt_pk_bf16_f32 v{U1}, v{T2}, 0",
        f"v_cndmask_b32 v{U0}, v{U0}, 0, vcc",
        f"v_cndmask_b32 v{U1}, v{U1}, v{V_RADV}, vcc",
    ]

    def fetch_batch(tag):
        a(f"""
        v_add_u32 v{T2}, s{S_D8}, v{V_RADDR}
        s_add_u32 s{S_T+1}, s{S_POS}, 64
        s_cmp_ge_u32 s{S_NEXT}, s{S_T+1}
        s_cbranch_scc1 K3_same{tag}
        K3_cross{tag}:
        s_add_u32 s{S_BIN}, s{S_BIN}, 1
        s_mov_b32 m0, s{S_BIN}
        s_sub_u32 s{S_T}, s{S_NEXT}, s{S_POS}
        s_movrels_b32 s{S_NEXT}, s{S_R}
        v_cmp_le_u32 vcc, s{S_T}, v{V_LANE}
        s_lshr_b32 s{S_D8}, s{S_NEXT}, 16
        s_lshl_b32 s{S_D8}, s{S_D8}, 3
        s_and_b32 s{S_NEXT}, s{S_NEXT}, 0xffff
        v_add_u32 v{V_OFF}, s{S_D8}, v{V_RADDR}
        v_cndmask_b32 v{T2}, v{T2}, v{V_OFF}, vcc
        s_cmp_lt_u32 s{S_NEXT}, s{S_T+1}
        s_cbranch_scc1 K3_cross{tag}
        K3_same{tag}:
        ds_read_b64 v[{V_RN}:{V_RN+1}], v{T2} offset:{RECS}
        v_add_u32 v{V_RADDR}, 512, v{V_RADDR}
        s_mov_b32 s{S_POS}, s{S_T+1}""")

    def issue(L):
        o = V_O + 2 * ((L // 2) % 2) + L % 2
        raw = V_RAW + 4 * (L % 8)
        a(f"v_add_u32 v{o}, v{o}, v{V_L16}")
        a(f"buffer_load_dwordx4 v[{raw}:{raw+3}], v{o}, s[{S_H}:{S_H+3}], 0 offen {cfg['row_load']}")

    def o_read(j):
        o = V_O + 2 * (j % 2)
        a(f"ds_read_b64 v[{o}:{o+1}], v{V_OADDR} offset:{32 * (j % 8)}")

    def o_write():
        a(f"v_and_b32 v{V_OFF}, s{S_MASK}, v{R}\nds_write_b32 v{V_RINGO}, v{V_OFF}")

    def a_read(g):
        a(f"ds_read2_b64 v[{V_A}:{V_A+3}], v{V_AADDR} offset0:{16*g} offset1:{16*g+1}")

    def read_step(j):
        return (2 * j - D) // 2 * 2 - 2

    PROG = FLAG + 16
    if cfg["prio"]:
        a(f"""
        s_lshl_b32 s{S_T}, s{S_WAVE}, 2
        s_add_u32 s{S_PF}, s{S_T}, {PROG}
        s_xor_b32 s{S_T}, s{S_T}, 16
        s_add_u32 s{S_NMAX}, s{S_T}, {PROG}""")
    fetch_batch("0")
    a("s_waitcnt lgkmcnt(0)")
    for s in stage1[:5]:
        a(s)
    o_write()
    early = [j for j in range(8) if read_step(j) < 0]
    for j0 in range(0, len(early), 2):
        for j in early[j0:j0 + 2]:
            o_read(j)
        nxt = [L for j in early[j0:j0 + 2] for L in (2 * j, 2 * j + 1) if L < D]
        if nxt:
            a("s_waitcnt lgkmcnt(0)")
            for L in nxt:
                issue(L)
    late_constants()
    for s in stage1[5:] + stage2 + stage3:
        a(s)
    a(f"ds_write_b64 v{V_RINGW}, v[{V_S}:{V_S+1}]\nv_mov_b32 v{V_IC}, v{V_IN}")
    a_read(0)

    body = Asm()
    a_main = a
    fill = {i: [] for i in range(16)}
    fill[2] = stage1[:5]
    rest = stage1[5:] + stage2 + stage3
    steps = list(range(3, 14))
    for n, s in enumerate(rest):
        fill[steps[n * len(steps) // len(rest)]].append(s)
    a = body
    for i in range(16):
        if i and i % cfg["exit_every"] == 0:
            a(f"s_cmp_le_i32 s{S_N}, {4*i-64}\ns_cbranch_scc1 K3_drain")
        if i % 2 == 0:
            a(f"s_waitcnt lgkmcnt(0)\nv_mfma_f32_32x32x16_bf16 v[{V_F}:{V_F+15}], v[{V_A}:{V_A+3}], v[{V_BW}:{V_BW+3}], 0")
            if i == 0:
                a(f"s_sub_u32 s{S_N}, s{S_N}, 64")
                fetch_batch("1")
            if cfg["prio"] and i == 0:
                a(f"""
                v_mov_b32 v{T0}, s{S_PF}
                v_mov_b32 v{T1}, s{S_N}
                v_mov_b32 v{T3}, s{S_NMAX}
                ds_write_b32 v{T0}, v{T1}
                ds_read_b32 v{T3}, v{T3}""")
            if cfg["prio"] and i == 2:
                a(f"""
                v_readfirstlane_b32 s{S_T}, v{T3}
                s_cmp_gt_i32 s{S_N}, s{S_T}
                s_cbranch_scc1 K3_behind
                s_setprio 0
                s_branch K3_prio
                K3_behind:
                s_setprio 1
                K3_prio:""")
            if i == 14:
                a(f"ds_write_b64 v{V_RINGW}, v[{V_S}:{V_S+1}]")
            a_read((i // 2 + 1) % 8)
        n = D - 1
        raw = V_RAW + 4 * (i % 8)
        a(f"""
        s_waitcnt vmcnt({n})
        v_mfma_f32_16x16x32_bf16 v[{V_H}:{V_H+3}], v[{V_AU}:{V_AU+3}], v[{raw}:{raw+3}], 0
        v_mfma_f32_16x16x32_bf16 v[{V_H+4}:{V_H+7}], v[{V_AU+4}:{V_AU+7}], v[{raw}:{raw+3}], 0""")
        issue(i + D)
        for j in range(16):
            if read_step(j) == i:
                if j == 8:
                    o_write()
                o_read(j)
        a(f"v_readlane_b32 s{S_I}, v{V_IC}, {4*i}\nv_readlane_b32 s{S_I+1}, v{V_IC}, {4*i+2}")
        for s in fill[i]:
            a(s)
        for j in range(4):
            f = V_F + 2 * (4 * (i % 2) + j)
            a([f"s_set_gpr_idx_on s{S_I}, gpr_idx(SRC2,DST)", f"s_lshr_b32 m0, s{S_I}, 16",
               f"s_mov_b32 m0, s{S_I+1}", f"s_lshr_b32 m0, s{S_I+1}, 16"][j])
            a(f"v_pk_fma_f32 v[{ACC}:{ACC+1}], v[{V_H+2*j}:{V_H+2*j+1}], v[{f}:{f+1}], v[{ACC}:{ACC+1}]")
        a("s_set_gpr_idx_off")
    a(f"""
    v_mov_b32 v{V_IC}, v{V_IN}
    s_cmp_gt_i32 s{S_N}, 0
    s_cbranch_scc1 K3_batch""")
    a = a_main
    lines, added = pad(body.lines)
    again, extra = pad(lines, before=lines)
    assert extra == 0
    print(f"sweep loop: {len(lines)} instructions, {added} padded wait states", file=sys.stderr)
    a("K3_batch:")
    a.lines += lines
    a(f"""
    K3_drain:
    s_waitcnt vmcnt(0) lgkmcnt(0)
    K3_swept:
    s_mov_b32 s{S_R+NS}, 0
    s_mov_b32 s{S_R+NS+1}, 0
    s_waitcnt lgkmcnt(0)
    s_cmp_lg_u32 s{S_MORE}, 0
    s_cbranch_scc1 K3_round""")
    stamp(a, cfg, S_WS, 4, P, 98, S_STAMP)

    st = cfg["out_store"]
    a(f"""
    v_and_b32 v7, 15, v{V_LANE}
    v_lshrrev_b32 v8, 4, v{V_LANE}
    v_lshlrev_b32 v7, 4, v7
    v_lshl_add_u32 v7, v8, 19, v7
    s_lshl_b32 s{S_T}, s{S_WAVE}, 8
    s_add_u32 s{S_T}, s{S_T}, s{S_B}
    s_lshl_b32 s{S_T}, s{S_T}, 8""")
    for i in range(20):
        t = P + 4 * (i % 8)
        for k in range(4):
            r = min(4 * i + k, 78)
            a(f"v_cvt_pk_bf16_f32 v{t+k}, v{ACC+2*r}, v{ACC+2*r+1}")
        a(f"""
        s_nop 0
        v_permlane32_swap_b32 v{t}, v{t+2}
        v_permlane32_swap_b32 v{t+1}, v{t+3}
        s_nop 1
        v_permlane16_swap_b32 v{t}, v{t+1}
        v_permlane16_swap_b32 v{t+2}, v{t+3}
        buffer_store_dwordx4 v[{t}:{t+3}], v7, s[{S_OUT}:{S_OUT+3}], s{S_T} offen {st}
        s_add_u32 s{S_T}, s{S_T}, {4 << 19}""")
    if cfg["stamps"]:
        a("s_waitcnt vmcnt(0)")
        stamp(a, cfg, S_WS, 5, P, 98, S_STAMP)
    a("K3_end:\ns_endpgm")
    a.lines += cold.lines
    return lds


def descriptor(name, vgpr, sgpr):
    return f""".p2align 6
.amdhsa_kernel {name}
  .amdhsa_next_free_vgpr {vgpr}
  .amdhsa_next_free_sgpr {sgpr}
  .amdhsa_accum_offset {(vgpr + 3) // 4 * 4}
  .amdhsa_group_segment_fixed_size 0
  .amdhsa_kernarg_size 96
  .amdhsa_user_sgpr_count 2
  .amdhsa_user_sgpr_kernarg_segment_ptr 1
  .amdhsa_system_sgpr_workgroup_id_x 1
  .amdhsa_float_denorm_mode_32 3
.end_amdhsa_kernel
"""


DEFAULT = dict(stamps=0, ns=34, dpl=7, rec_load="", capb=114, k1_load="nt", k1_store="sc1", out_store="sc0 sc1", dbg=0, row_load="", prio=1, mask_rec=1, exit_every=4, rot=5, ahead=1, const_ell=0, k1_threads=1024, self_at=34)


def generate(**kw):
    cfg = dict(DEFAULT)
    cfg.update(kw)
    a = Asm()
    lds1, vgpr1 = gen_bucket(a, cfg)
    lds3 = gen_sweep(a, cfg)
    a.lines, added = pad("\n".join(a.lines).split("\n"))
    print(f"{added} wait states padded outside the loop", file=sys.stderr)
    ref = open("standalone__molecular_angular_dimenet__graph.s.ref").read().split("\n")
    head = [ln for ln in ref if ln.startswith(";   offset") or ln.startswith("; Kernarg")]
    head += [
        "; Launch 1 sorts every chunk of 10240 triplets by destination bucket (ji & 255) into 8-byte records",
        ";   {wave | source row | accumulator index, d[source] : theta} and writes a {start, length} table.",
        "; Launch 2 handles one bucket per workgroup: records are binned by (wave, source block) in LDS, each wave",
        ";   keeps the fp32 sums of its rows in v98..v255 and visits the source rows in increasing order.",
        ";   Per four rows: one 16-byte-per-lane gather, two MFMAs that unpack/transpose bf16 to fp32, half an MFMA",
        ";   for the filter sbf @ w_sbf (self term: rbf * w_rbf), and four indexed packed FMAs.",
        f"; @launch kernel=bucket_kernel grid=({NCHUNK},1,1) block=({cfg['k1_threads']},1,1) lds={lds1}",
        f"; @launch kernel=sweep_kernel grid=(256,1,1) block=(512,1,1) lds={lds3}",
        '.amdgcn_target "amdgcn-amd-amdhsa--gfx950"',
        ".text",
    ]
    tail = '.section .rodata,"a"\n' + descriptor("bucket_kernel", vgpr1, 64) + descriptor("sweep_kernel", 256, 102)
    return "\n".join(head) + "\n" + a.text() + tail


if __name__ == "__main__":
    out = sys.argv[1]
    kw = {}
    for arg in sys.argv[2:]:
        k, v = arg.split("=", 1)
        kw[k] = type(DEFAULT[k])(int(v)) if isinstance(DEFAULT[k], (bool, int)) else v
    open(out, "w").write(generate(**kw))
```

```python
import struct
import sys

from hazard import pad

E = 160000
T = 2560000
CHUNK = 10240
NCHUNK = T // CHUNK
H_BYTES = E * 256

WS_REC = 0
WS_TAB = 0x1480000
WS_END = WS_TAB + NCHUNK * 1024
WS_STAMP = 0x1500000


def f32bits(x):
    return struct.unpack("<I", struct.pack("<f", x))[0]


INV2PI = 0.15915494309189535
C_HI = f32bits(INV2PI) & 0xFFFFFF00
C_LO = f32bits(INV2PI - struct.unpack("<f", struct.pack("<I", C_HI))[0])


class Asm:
    def __init__(self):
        self.lines = []

    def __call__(self, text):
        for ln in text.strip("\n").split("\n"):
            ln = ln.strip()
            if not ln:
                continue
            self.lines.append(ln if ln.endswith(":") else "    " + ln)

    def raw(self, text):
        self.lines.append(text)

    def text(self):
        return "\n".join(self.lines) + "\n"


def srd(a, d, lo, hi, nbytes):
    a(f"""
    s_mov_b32 s{d}, s{lo}
    s_mov_b32 s{d+1}, s{hi}
    s_mov_b32 s{d+2}, {nbytes}
    s_mov_b32 s{d+3}, 0x20000""")


def wave_scan(a, x):
    for sh in (1, 2, 4, 8):
        a(f"v_add_u32_dpp v{x}, v{x}, v{x} row_shr:{sh} row_mask:0xf bank_mask:0xf bound_ctrl:0")
    a(f"v_add_u32_dpp v{x}, v{x}, v{x} row_bcast:15 row_mask:0xa bank_mask:0xf")
    a(f"v_add_u32_dpp v{x}, v{x}, v{x} row_bcast:31 row_mask:0xc bank_mask:0xf")


def stamp(a, cfg, srd_ws, slot, vtmp, s0, swave_off):
    if not cfg["stamps"]:
        return
    a(f"""
    s_memrealtime s[{s0}:{s0+1}]
    s_waitcnt lgkmcnt(0)
    v_mov_b32 v{vtmp}, s{s0}
    v_mov_b32 v{vtmp+1}, {slot*4}
    s_mov_b64 exec, 1
    buffer_store_dword v{vtmp}, v{vtmp+1}, s[{srd_ws}:{srd_ws+3}], s{swave_off} offen
    s_mov_b64 exec, -1""")


def gen_bucket(a, cfg):
    NT = cfg["k1_threads"]
    NW = NT // 64
    PER = CHUNK // NT
    parts = [4] * (PER // 4) + ([2] if PER % 4 else [])
    HIST, BASE, TBL = 0, 1024, 2048
    RECS = TBL
    HALF = E // 2
    NDMA = -(-HALF * 2 // 1024)
    ND = 160 // NW
    S_JI, S_KJ, S_TH, S_WS, S_D = 16, 20, 24, 28, 36
    S_W, S_O4, S_O2, S_HALF, S_FE = 15, 48, 56, 47, 46
    PP = (PER + 3) // 4 * 4
    JI = [4 + i for i in range(PER)]
    KJ = [4 + PP + i for i in range(PER)]
    TH = 4 + 2 * PP
    R0 = [TH + PP // 2 + 2 * i for i in range(PER)]
    BK = [R0[-1] + 2 + i for i in range(PER)]
    RK = [BK[-1] + 1 + i for i in range(PER)]
    DV = [RK[-1] + 1 + i for i in range(PER)]
    X = (DV[-1] + 2) // 2 * 2
    V_TAB, V_ONE, V_L16, V_A, V_B, V_ST = X, X + 4, X + 5, X + 6, X + 7, X + 8
    nvgpr = X + 10
    ws_size = WS_STAMP + 0x100000 if cfg["stamps"] else WS_END
    st, ld = cfg["k1_store"], cfg["k1_load"]
    a.raw(".p2align 8\n.globl bucket_kernel\n.type bucket_kernel,@function\nbucket_kernel:")
    a(f"""
    s_load_dwordx2 s[{S_KJ}:{S_KJ+1}], s[0:1], 24
    s_load_dwordx2 s[{S_D}:{S_D+1}], s[0:1], 8
    s_load_dwordx2 s[{S_JI}:{S_JI+1}], s[0:1], 32
    s_load_dwordx2 s[{S_TH}:{S_TH+1}], s[0:1], 16
    s_load_dwordx2 s[{S_WS}:{S_WS+1}], s[0:1], 88
    s_cmp_ge_u32 s2, {NCHUNK}
    s_cbranch_scc1 K1_end
    v_readfirstlane_b32 s{S_W}, v0
    v_lshlrev_b32 v1, 4, v0
    v_lshlrev_b32 v2, 3, v0
    s_mul_i32 s{S_O4}, s2, {CHUNK*4}
    s_lshr_b32 s{S_W}, s{S_W}, 6
    v_and_b32 v{V_L16}, 0x3f0, v1""")
    for n in range(1, len(parts)):
        a(f"s_add_u32 s{S_O4+n}, s{S_O4}, {n*NT*16}")
    for r, nbytes in ((S_KJ, T * 4), (S_D, E * 2)):
        a(f"s_mov_b32 s{r+2}, {nbytes}\ns_mov_b32 s{r+3}, 0x20000")
    if cfg["stamps"]:
        a(f"""
        s_mov_b32 s{S_WS+2}, {ws_size}
        s_mov_b32 s{S_WS+3}, 0x20000
        s_lshl_b32 s41, s2, 4
        s_add_u32 s40, s{S_W}, s41
        s_lshl_b32 s40, s40, 5
        s_add_u32 s40, s40, {WS_STAMP}""")
    a("s_waitcnt lgkmcnt(0)")

    def mark(slot):
        stamp(a, cfg, S_WS, slot, V_ST, 42, 40)

    def late_setup():
        a(f"v_lshlrev_b32 v3, 2, v0\ns_mul_i32 s{S_O2}, s2, {CHUNK*2}")
        for n in range(1, len(parts)):
            a(f"s_add_u32 s{S_O2+n}, s{S_O2}, {n*NT*8}")
        for r, nbytes in ((S_JI, T * 4), (S_TH, T * 2), (S_WS, ws_size)):
            a(f"s_mov_b32 s{r+2}, {nbytes}\ns_mov_b32 s{r+3}, 0x20000")
        a(f"""
        v_mov_b32 v{V_A}, 0
        v_and_b32 v{V_B}, 0x3fc, v3
        v_mov_b32 v{V_ONE}, 1
        s_mov_b32 s{S_FE}, 0xfe
        s_mov_b32 s{S_HALF}, {HALF*2}
        ds_write_b32 v{V_B}, v{V_A} offset:{HIST}""")

    mark(0)
    NP = len(parts)
    spans = [(sum(parts[:n]), sum(parts[:n + 1])) for n in range(NP)]

    def stage(piece):
        a(f"""
        s_lshr_b32 s35, s2, 3
        s_mul_i32 s35, s35, {cfg["rot"]}
        s_add_u32 s35, s35, s{S_W}
        s_lshl_b32 s35, s35, 10""")
        for i in range(ND):
            a(f"""
            s_cmp_ge_u32 s35, {160*1024}
            s_cselect_b32 s34, {160*1024}, 0
            s_sub_u32 s35, s35, s34
            s_min_u32 s34, s35, {(NDMA - 1) * 1024}
            s_add_u32 m0, s34, {TBL}
            s_add_u32 s34, s34, {piece * HALF * 2}
            buffer_load_dwordx4 v{V_L16}, s[{S_D}:{S_D+3}], s34 offen lds""")
            if i < ND - 1:
                a(f"s_add_u32 s35, s35, {NW*1024}")

    def idx_loads(regs, srd_):
        for n, (lo, hi) in enumerate(spans):
            w, v = ("x4", 1) if hi - lo == 4 else ("x2", 2)
            a(f"buffer_load_dword{w} v[{regs[lo]}:{regs[hi-1]}], v{v}, s[{srd_}:{srd_+3}], s{S_O4+n} offen {ld}")

    def th_loads():
        for n, (lo, hi) in enumerate(spans):
            if hi - lo == 4:
                a(f"buffer_load_dwordx2 v[{TH+lo//2}:{TH+lo//2+1}], v2, s[{S_TH}:{S_TH+3}], s{S_O2+n} offen {ld}")
            else:
                a(f"buffer_load_dword v{TH+lo//2}, v3, s[{S_TH}:{S_TH+3}], s{S_O2+n} offen {ld}")

    def look(piece):
        for i in range(PER):
            if piece == 0:
                a(f"v_cmpx_gt_u32 vcc, s{S_HALF}, v{KJ[i]}")
            else:
                a(f"v_cmpx_le_u32 vcc, s{S_HALF}, v{KJ[i]}\nv_subrev_u32 v{KJ[i]}, s{S_HALF}, v{KJ[i]}")
            a(f"ds_read_u16 v{DV[i]}, v{KJ[i]} offset:{TBL}\ns_mov_b64 exec, -1")

    def count(younger):
        for n, (lo, hi) in enumerate(spans):
            a(f"s_waitcnt vmcnt({NP - 1 - n + younger})")
            for i in range(lo, hi):
                a(f"v_lshlrev_b32_sdwa v{BK[i]}, 2, v{JI[i]} dst_sel:DWORD dst_unused:UNUSED_PAD src0_sel:DWORD src1_sel:BYTE_0")
            for i in range(lo, hi):
                a(f"ds_add_rtn_u32 v{RK[i]}, v{BK[i]}, v{V_ONE} offset:{HIST}")

    def build(younger):
        for i in range(PER):
            a(f"""
            v_lshrrev_b32 v{V_A}, 10, v{JI[i]}
            v_bfe_u32 v{V_B}, v{JI[i]}, 8, 3
            v_and_or_b32 v{V_A}, v{V_A}, s{S_FE}, v{R0[i]}
            v_lshl_or_b32 v{R0[i]}, v{V_B}, 26, v{V_A}""")
        for n, (lo, hi) in enumerate(spans):
            a(f"s_waitcnt vmcnt({NP - 1 - n + younger})")
            for i in range(lo, hi):
                if i % 2 == 0:
                    a(f"v_and_b32 v{R0[i]+1}, 0xffff, v{TH + i // 2}")
                else:
                    a(f"v_lshrrev_b32 v{R0[i]+1}, 16, v{TH + i // 2}")

    def scan():
        a(f"""
        ds_read_b128 v[4:7], v{V_L16} offset:{HIST}
        s_waitcnt lgkmcnt(0)
        v_add_u32 v8, v4, v5
        v_add3_u32 v8, v8, v6, v7
        v_mov_b32 v9, v8""")
        wave_scan(a, 9)
        a(f"""
        v_sub_u32 v10, v9, v8
        v_add_u32 v11, v10, v4
        v_add_u32 v12, v11, v5
        v_add_u32 v13, v12, v6
        ds_write_b128 v{V_L16}, v[10:13] offset:{BASE}""")
        for i in range(PER):
            a(f"ds_read_b32 v{BK[i]}, v{BK[i]} offset:{BASE}")
        for q in range(4):
            a(f"v_lshl_or_b32 v{V_TAB+q}, v{4+q}, 16, v{10+q}")
        a("s_waitcnt lgkmcnt(0)")
        for i in range(PER):
            a(f"v_add_lshl_u32 v{BK[i]}, v{BK[i]}, v{RK[i]}, 3")

    ns = 1 if cfg["stamps"] else 0
    a("s_bitcmp1_b32 s2, 3\ns_cbranch_scc1 K1_later")
    idx_loads(KJ, S_KJ)
    a("K1_later:")
    stage(0)
    late_setup()
    a("s_bitcmp0_b32 s2, 3\ns_cbranch_scc1 K1_both\ns_barrier")
    idx_loads(KJ, S_KJ)
    a("K1_both:\ns_barrier")
    idx_loads(JI, S_JI)
    th_loads()
    a(f"s_waitcnt vmcnt({2*NP})")
    for i in range(PER):
        a(f"v_lshlrev_b32 v{R0[i]}, 8, v{KJ[i]}\nv_lshlrev_b32 v{KJ[i]}, 1, v{KJ[i]}")
    a("s_barrier")
    look(0)
    a("s_waitcnt lgkmcnt(0)\ns_barrier")
    mark(4)
    count(NP + ns)
    stage(1)
    build(ND + ns)
    a("s_waitcnt lgkmcnt(0)\ns_barrier")
    mark(1)
    scan()
    a("s_waitcnt vmcnt(0)\ns_barrier")
    mark(5)
    look(1)
    a(f"""
    s_cmp_lg_u32 s{S_W}, 0
    s_cbranch_scc1 K1_notab
    s_lshl_b32 s35, s2, 10
    s_add_u32 s35, s35, {WS_TAB}
    buffer_store_dwordx4 v[{V_TAB}:{V_TAB+3}], v{V_L16}, s[{S_WS}:{S_WS+3}], s35 offen {st}
    K1_notab:
    s_waitcnt lgkmcnt(0)
    s_barrier""")
    mark(6)
    for i in range(PER):
        a(f"v_lshl_or_b32 v{R0[i]+1}, v{DV[i]}, 16, v{R0[i]+1}")
        a(f"ds_write_b64 v{BK[i]}, v[{R0[i]}:{R0[i]+1}] offset:{RECS}")
    a("s_waitcnt lgkmcnt(0)\ns_barrier")
    mark(2)
    NO = PER // 2
    a(f"s_mul_i32 s12, s2, {CHUNK*8}\nv_add_u32 v2, 0x8000, v1\nv_add_u32 v3, 0x10000, v1")
    for k in range(NO):
        off = k * NT * 16
        a(f"ds_read_b128 v[{4+4*k}:{7+4*k}], v{1 + off // 0x8000} offset:{RECS + off % 0x8000}")
    for k in range(NO):
        a(f"s_waitcnt lgkmcnt({NO-1-k})")
        a(f"buffer_store_dwordx4 v[{4+4*k}:{7+4*k}], v1, s[{S_WS}:{S_WS+3}], s12 offen {st}")
        if k < NO - 1:
            a(f"s_add_u32 s12, s12, {NT*16}")
    if cfg["stamps"]:
        a("s_waitcnt vmcnt(0)")
        mark(3)
    a("K1_end:\ns_endpgm")
    return TBL + NDMA * 1024, nvgpr


def gen_sweep(a, cfg):
    NS = cfg["ns"]
    NSL = NS + 2
    PIECE = 63
    D = cfg["dpl"]
    SHIFT = 21
    NBLK = -(-E // 8192)
    CAPB = cfg["capb"]
    KMASK = 255 << 2
    CUR, BASE, FLAG, ZERO, RING, RINGO, RECS = 0, 1024, 4096, 4352, 5632, 13824, 16384
    CAP = max(8 * (NS * PIECE + 79), 8 * NBLK * CAPB)
    lds = RECS + CAP * 8 + 512
    assert lds <= 163840 and 2 <= D <= 7

    ACC = 98
    V_LANE, V_TOFF, V_BW, V_TLEN = 0, 1, 2, 6
    V_L8, V_ONE, P = 7, 8, 10
    TK = P + 2 * NSL
    G = 6
    V_SL, V_SO, V_PF = TK + 2 * G, TK + 2 * G + 1, TK + 2 * G + 2
    V_RADDR, V_AADDR, V_RINGW = 7, 8, 9
    V_RAW, V_F, V_H, V_A, V_AU, V_O, V_RN, V_S, V_T = 10, 42, 58, 66, 70, 78, 82, 84, 86
    V_IC, V_IN, V_RADV, V_MHI, V_L16, V_RINGO, V_OADDR, V_OFF = 90, 91, 92, 93, 94, 95, 96, 97
    S_H, S_OUT, S_WS, S_D = 4, 8, 12, 76
    S_B, S_WAVE, S_SEG, S_REM, S_OFF, S_MORE, S_N, S_START = 16, 17, 18, 19, 20, 21, 22, 23
    S_ELL, S_CHI, S_CLO, S_MASK, S_MODE, S_NMAX, S_T = 24, 27, 28, 29, 30, 31, 32
    S_FREQ, S_PF = 34, 35
    S_BIN, S_POS, S_NEXT, S_D8 = 39, 70, 71, 72
    S_I = 36
    S_R = 40
    S_STAMP = 96
    ws_size = WS_STAMP + 0x100000 if cfg["stamps"] else WS_END

    hot, cold = a, Asm()
    a.raw(".p2align 8\n.globl sweep_kernel\n.type sweep_kernel,@function\nsweep_kernel:")
    a(f"""
    {"s_memrealtime s[100:101]" if cfg["stamps"] else ""}
    s_load_dwordx2 s[{S_WS}:{S_WS+1}], s[0:1], 88
    s_load_dwordx4 s[80:83], s[0:1], 0
    s_load_dwordx2 s[84:85], s[0:1], 40
    s_load_dwordx4 s[88:91], s[0:1], 48
    s_load_dwordx4 s[92:95], s[0:1], 64
    s_cmp_ge_u32 s2, 256
    s_cbranch_scc1 K3_end
    v_lshrrev_b32 v{P}, 6, v0
    v_and_b32 v{P+1}, 63, v0
    s_and_b32 s{S_B}, s2, 7
    s_lshl_b32 s{S_B}, s{S_B}, 5
    s_lshr_b32 s{S_T}, s2, 3
    s_add_u32 s{S_B}, s{S_B}, s{S_T}
    v_lshl_add_u32 v{V_TOFF}, v{P}, 5, v{P+1}
    v_mov_b32 v{V_TLEN}, 0
    v_lshlrev_b32 v{P+1}, 10, v{V_TOFF}
    s_lshl_b32 s{S_T}, s{S_B}, 2
    s_add_u32 s{S_T}, s{S_T}, {WS_TAB}
    s_mov_b32 s{S_WS+2}, {ws_size}
    s_mov_b32 s{S_WS+3}, 0x20000
    s_bfm_b64 exec, 32, 0
    s_waitcnt lgkmcnt(0)""")
    if cfg["stamps"]:
        a("s_memrealtime s[98:99]\ns_waitcnt lgkmcnt(0)\ns_mov_b32 s101, s98")
    a(f"""
    buffer_load_dword v{V_TLEN}, v{P+1}, s[{S_WS}:{S_WS+3}], s{S_T} offen
    s_mov_b64 exec, -1
    v_readfirstlane_b32 s{S_WAVE}, v{P}
    v_lshlrev_b32 v{P}, 5, v0
    v_and_b32 v{V_LANE}, 63, v0
    v_mov_b32 v{P+2}, 0
    v_mov_b32 v{P+3}, 0
    v_mov_b32 v{P+4}, 0
    v_mov_b32 v{P+5}, 0
    ds_write_b128 v{P}, v[{P+2}:{P+5}] offset:{FLAG}
    ds_write_b128 v{P}, v[{P+2}:{P+5}] offset:{FLAG+16}
    v_and_b32 v{P+6}, 15, v{V_LANE}
    v_lshrrev_b32 v{P+7}, 4, v{V_LANE}
    v_lshl_add_u32 v{P+6}, v{P+6}, 2, v{P+7}
    v_lshlrev_b32 v{P+6}, 2, v{P+6}""")
    a(f"s_load_dwordx2 s[{S_ELL}:{S_ELL+1}], s[88:89], 0\ns_load_dword s{S_FREQ}, s[84:85], 0")
    SA, SB = P + 2 * NS, P + 2 * NS + 2
    srd(a, S_H, 90, 91, 768)
    srd(a, S_OUT, 92, 93, 256)
    srd(a, S_D, 82, 83, E * 2)
    a(f"""
    buffer_load_dword v{V_BW}, v{P+6}, s[{S_H}:{S_H+3}], 0 offen
    buffer_load_dword v{V_BW+2}, v{P+6}, s[{S_H}:{S_H+3}], 0 offen offset:256
    buffer_load_dword v{V_BW+1}, v{P+6}, s[{S_H}:{S_H+3}], 0 offen offset:512
    buffer_load_dword v{V_BW+3}, v{P+6}, s[{S_OUT}:{S_OUT+3}], 0 offen
""")
    srd(a, S_H, 80, 81, 0 if cfg["dbg"] & 1 else H_BYTES)
    srd(a, S_OUT, 94, 95, H_BYTES)

    if cfg["stamps"]:
        a(f"""
        s_lshl_b32 s{S_STAMP}, s2, 3
        s_add_u32 s{S_STAMP}, s{S_STAMP}, s{S_WAVE}
        s_lshl_b32 s{S_STAMP}, s{S_STAMP}, 5
        s_add_u32 s{S_STAMP}, s{S_STAMP}, {WS_STAMP + 0x40000}""")
    a(f"""
    s_mov_b32 s{S_CHI}, {C_HI:#x}
    s_mov_b32 s{S_CLO}, {C_LO:#x}
    s_mov_b32 s{S_MASK}, 0x03ffff00
    s_mov_b32 s{S_MODE}, 0xc000
    s_mov_b32 s{S_T}, {CHUNK*8}
    v_cmp_gt_u32 vcc, {NCHUNK}, v{V_TOFF}
    v_mul_lo_u32 v{V_TOFF}, v{V_TOFF}, s{S_T}
    s_mov_b32 s{S_SEG}, 0
    s_mov_b32 s{S_REM}, 0
    s_mov_b32 s{S_OFF}, 0""")
    a(f"""
    s_lshl_b32 s{S_T}, s{S_WAVE}, 8
    s_add_u32 s{S_T}, s{S_T}, s{S_B}
    s_lshl_b32 s{S_T}, s{S_T}, 8
    s_lshl_b32 s{S_T+1}, s{S_WAVE}, 26
    s_or_b32 s{S_T}, s{S_T}, s{S_T+1}
    s_bitset1_b32 s{S_T}, 31
    s_mov_b32 s{S_T+1}, {(1 << 19) + 2}
    v_mul_lo_u32 v{SA}, v{V_LANE}, s{S_T+1}
    v_add_u32 v{SA}, s{S_T}, v{SA}
    v_add_u32 v{SB}, {40 * ((1 << 19) + 2)}, v{SA}
    s_mov_b32 s{S_R+NS}, 40
    s_cmp_eq_u32 s{S_WAVE}, 0
    s_cselect_b32 s{S_R+NS+1}, 39, 38""")
    for i in range(158):
        a(f"v_mov_b32 v{ACC+i}, 0")
    a(f"""
    s_waitcnt vmcnt(4)
    v_cndmask_b32 v{V_TLEN}, 0, v{V_TLEN}, vcc
    v_and_b32 v{P+1}, 0xffff, v{V_TLEN}
    v_lshl_add_u32 v{V_TOFF}, v{P+1}, 3, v{V_TOFF}
    v_lshrrev_b32 v{V_TLEN}, 16, v{V_TLEN}""")
    stamp(a, cfg, S_WS, 0, P, 98, S_STAMP)
    if cfg["stamps"]:
        for slot, sr in ((3, 100), (6, 101)):
            a(f"""
            v_mov_b32 v{P}, s{sr}
            v_mov_b32 v{P+1}, {slot*4}
            s_mov_b64 exec, 1
            buffer_store_dword v{P}, v{P+1}, s[{S_WS}:{S_WS+3}], s{S_STAMP} offen
            s_mov_b64 exec, -1""")

    a(f"""
    K3_round:
    v_lshlrev_b32 v{V_L8}, 3, v{V_LANE}
    v_mov_b32 v{V_ONE}, 1""")
    rl = cfg["rec_load"]

    a(f"""
    v_mov_b32 v{V_SL}, v{V_TLEN}
    v_mov_b32 v{V_SO}, v{V_TOFF}
    v_cmp_lt_u32 vcc, {PIECE}, v{V_TLEN}
    s_or_b32 s{S_T}, vcc_lo, s{S_SEG}
    s_cbranch_scc1 K3_long
    s_mov_b32 s{S_SEG}, 32
    K3_listed:""")
    cold(f"""
    K3_long:
    s_mov_b32 s{S_I+2}, {2 * PIECE}
    v_cmp_lt_u32 s[{S_T}:{S_T+1}], s{S_I+2}, v{V_TLEN}
    s_bcnt1_i32_b32 s{S_I}, vcc_lo
    s_or_b32 s{S_T}, s{S_T}, s{S_SEG}
    s_cbranch_scc1 K3_general
    s_cmp_gt_u32 s{S_I}, {NS - 32}
    s_cbranch_scc1 K3_general
    s_mov_b32 s{S_SEG}, 32
    s_mov_b32 s{S_I}, vcc_lo
    K3_spill:
    s_cmp_eq_u32 s{S_I}, 0
    s_cbranch_scc1 K3_listed
    s_ff1_i32_b32 s{S_I+1}, s{S_I}
    s_bitset0_b32 s{S_I}, s{S_I+1}
    v_readlane_b32 s{S_T}, v{V_TLEN}, s{S_I+1}
    v_readlane_b32 s{S_T+1}, v{V_TOFF}, s{S_I+1}
    s_mov_b32 m0, s{S_I+1}
    s_sub_u32 s{S_T}, s{S_T}, {PIECE}
    v_writelane_b32 v{V_SL}, {PIECE}, m0
    s_bcnt1_i32_b32 s{S_I+1}, s{S_I}
    s_add_u32 m0, s{S_I+1}, 32
    s_add_u32 s{S_T+1}, s{S_T+1}, {PIECE*8}
    v_writelane_b32 v{V_SL}, s{S_T}, m0
    v_writelane_b32 v{V_SO}, s{S_T+1}, m0
    s_branch K3_spill
    K3_general:
    s_mov_b32 s{S_I}, 0
    K3_slot:
    s_cmp_lg_u32 s{S_REM}, 0
    s_cbranch_scc1 K3_have
    K3_adv:
    s_cmp_ge_u32 s{S_SEG}, 32
    s_cbranch_scc1 K3_have
    v_readlane_b32 s{S_REM}, v{V_TLEN}, s{S_SEG}
    v_readlane_b32 s{S_OFF}, v{V_TOFF}, s{S_SEG}
    s_add_u32 s{S_SEG}, s{S_SEG}, 1
    s_cmp_eq_u32 s{S_REM}, 0
    s_cbranch_scc1 K3_adv
    K3_have:
    s_min_u32 s{S_T}, s{S_REM}, {PIECE}
    s_mov_b32 m0, s{S_I}
    s_mov_b32 s{S_T+1}, s{S_OFF}
    v_writelane_b32 v{V_SL}, s{S_T}, m0
    v_writelane_b32 v{V_SO}, s{S_T+1}, m0
    s_sub_u32 s{S_REM}, s{S_REM}, s{S_T}
    s_add_u32 s{S_OFF}, s{S_OFF}, {PIECE*8}
    s_add_u32 s{S_I}, s{S_I}, 1
    s_cmp_lt_u32 s{S_I}, {NS}
    s_cbranch_scc1 K3_slot
    s_branch K3_listed""")

    at = cfg['self_at']
    order = list(range(at)) + [NS, NS + 1] + list(range(at, NS))
    groups = [order[i:i + G] for i in range(0, NSL, G)]
    vm = []

    def loads(gi):
        ks = [k for k in groups[gi] if k < NS]
        for n0 in range(0, len(ks), 3):
            for n, k in enumerate(ks[n0:n0 + 3]):
                a(f"v_readlane_b32 s{S_I+n}, v{V_SO}, {k}")
            for n, k in enumerate(ks[n0:n0 + 3]):
                a(f"v_readlane_b32 s{S_R+k}, v{V_SL}, {k}")
            for n, k in enumerate(ks[n0:n0 + 3]):
                if cfg["mask_rec"]:
                    a(f"s_max_u32 s{S_T+1}, s{S_R+k}, 1\ns_bfm_b64 exec, s{S_T+1}, 0")
                a(f"buffer_load_dwordx2 v[{P+2*k}:{P+2*k+1}], v{V_L8}, s[{S_WS}:{S_WS+3}], s{S_I+n} offen {rl}")
                vm.append(k)
        if NS in groups[gi]:
            a(f"""
            s_mov_b64 exec, -1
            s_lshl_b32 s{S_T}, s{S_WAVE}, 8
            s_add_u32 s{S_T}, s{S_T}, s{S_B}
            s_lshl_b32 s{S_T}, s{S_T}, 1
            s_add_u32 s{S_T+1}, s{S_T}, {40 * 4096}
            v_lshlrev_b32 v9, 12, v{V_LANE}
            s_bfm_b64 exec, 40, 0
            buffer_load_ushort v{SA+1}, v9, s[{S_D}:{S_D+3}], s{S_T} offen
            buffer_load_ushort v{SB+1}, v9, s[{S_D}:{S_D+3}], s{S_T+1} offen""")
            vm.extend([NS, NS + 1])
        a("s_mov_b64 exec, -1")

    AH = cfg["ahead"]
    for gi in range(AH):
        loads(gi)

    def bin_start(dst, tmp_):
        a(f"""
        s_mul_i32 s{S_T}, s{S_WAVE}, {NBLK * CAPB}
        v_min_u32 v{tmp_}, {NBLK}, v{V_LANE}
        v_mul_u32_u24 v{tmp_}, {CAPB}, v{tmp_}
        v_add_u32 v{dst}, s{S_T}, v{tmp_}""")

    bin_start(TK + 1, TK + 1)
    a(f"""
    s_lshl_b32 s{S_T}, s{S_WAVE}, 7
    v_lshl_add_u32 v{TK}, v{V_LANE}, 2, s{S_T}
    s_bfm_b64 exec, 32, 0
    ds_write_b32 v{TK}, v{TK+1} offset:{CUR}
    s_mov_b64 exec, -1
    v_cmp_le_u32 vcc, s{S_SEG}, v{V_LANE}
    v_cmp_lt_u32 s[{S_T}:{S_T+1}], 0, v{V_TLEN}
    s_and_b32 s{S_T}, s{S_T}, vcc_lo
    s_or_b32 s{S_T}, s{S_T}, s{S_REM}
    s_waitcnt lgkmcnt(0)
    s_barrier
    s_cmp_lg_u32 s{S_T}, 0
    s_cbranch_scc1 K3_more
    K3_nomore:""")
    cold(f"""
    K3_more:
    v_mov_b32 v{V_PF}, {FLAG}
    ds_write_b32 v{V_PF}, v{V_ONE}
    s_branch K3_nomore""")

    def tmp(gi, j):
        return TK + (gi % 2) * G + j

    def place(cursors, first):
        def keys(gi):
            for j, k in enumerate(groups[gi]):
                if first and k < NS:
                    a(f"s_waitcnt vmcnt({len(vm) - 1 - vm.index(k)})")
                a(f"v_lshrrev_b32 v{tmp(gi, j)}, {SHIFT-2}, v{P+2*k}\nv_and_b32 v{tmp(gi, j)}, {KMASK}, v{tmp(gi, j)}")

        def take(gi):
            for j, k in enumerate(groups[gi]):
                a(f"s_bfm_b64 exec, s{S_R+k}, 0\nds_add_rtn_u32 v{tmp(gi, j)}, v{tmp(gi, j)}, v{V_ONE} offset:{cursors}")
            a("s_mov_b64 exec, -1")

        def move(gi):
            for j, k in enumerate(groups[gi]):
                a(f"v_lshlrev_b32 v{tmp(gi, j)}, 3, v{tmp(gi, j)}")
            if first and NS in groups[gi]:
                a(f"s_waitcnt vmcnt({len(vm) - 1 - vm.index(NS + 1)})\nv_lshlrev_b32 v{SA+1}, 16, v{SA+1}\nv_lshlrev_b32 v{SB+1}, 16, v{SB+1}")
            for j, k in enumerate(groups[gi]):
                a(f"s_bfm_b64 exec, s{S_R+k}, 0\nds_write_b64 v{tmp(gi, j)}, v[{P+2*k}:{P+2*k+1}] offset:{RECS}")
            a("s_mov_b64 exec, -1")

        for gi in range(len(groups)):
            if first and gi + AH < len(groups):
                loads(gi + AH)
            keys(gi)
            if gi:
                a("s_waitcnt lgkmcnt(0)")
            take(gi)
            if gi:
                move(gi - 1)
        a("s_waitcnt lgkmcnt(0)")
        move(len(groups) - 1)
        if first:
            a(f"""
            v_and_b32 v{V_L16}, 15, v{V_LANE}
            v_lshlrev_b32 v{V_L16}, 4, v{V_L16}
            s_lshl_b32 s{S_T}, s{S_WAVE}, 8
            s_add_u32 s{S_T}, s{S_T}, {RINGO}
            v_lshrrev_b32 v9, 4, v{V_LANE}
            v_lshl_add_u32 v{V_OADDR}, v9, 3, s{S_T}
            v_lshrrev_b32 v{V_RINGO}, 3, v{V_LANE}
            v_lshlrev_b32 v{V_RINGO}, 5, v{V_RINGO}
            v_and_b32 v9, 3, v{V_LANE}
            v_lshl_add_u32 v{V_RINGO}, v9, 3, v{V_RINGO}
            v_bfe_u32 v9, v{V_LANE}, 2, 1
            v_lshl_add_u32 v{V_RINGO}, v9, 2, v{V_RINGO}
            v_add_u32 v{V_RINGO}, s{S_T}, v{V_RINGO}""")
        a("s_waitcnt lgkmcnt(0)\ns_barrier")

    place(CUR, True)
    stamp(a, cfg, S_WS, 1, TK, 98, S_STAMP)

    C, X, Y, AD, ST, OWN = TK, TK + 4, TK + 5, TK + 6, TK + 7, TK + 8
    a(f"""
    v_lshlrev_b32 v{AD}, 4, v{V_LANE}
    v_mov_b32 v{X}, {FLAG}
    s_lshl_b32 s{S_T}, s{S_WAVE}, 7
    v_lshl_add_u32 v{OWN}, v{V_LANE}, 2, s{S_T}
    ds_read_b128 v[{C}:{C+3}], v{AD} offset:{CUR}
    ds_read_b32 v{X}, v{X}
    ds_read_b32 v{OWN}, v{OWN} offset:{CUR}
    v_lshrrev_b32 v{Y}, 3, v{V_LANE}
    v_mul_u32_u24 v{Y}, {NBLK}, v{Y}
    v_and_b32 v{ST}, 7, v{V_LANE}
    v_lshlrev_b32 v{ST}, 2, v{ST}
    v_min_u32 v{ST}, {NBLK}, v{ST}
    v_add_u32 v{ST}, v{ST}, v{Y}
    v_mul_u32_u24 v{ST}, {CAPB}, v{ST}
    v_and_b32 v{Y}, 7, v{V_LANE}
    v_cmp_gt_u32 vcc, {NBLK // 4}, v{Y}
    v_mov_b32 v{Y}, {CAPB}
    s_waitcnt lgkmcnt(0)
    v_cndmask_b32 v{Y}, 0, v{Y}, vcc
    v_readfirstlane_b32 s{S_MORE}, v{X}""")
    assert NBLK % 4 == 0
    for q in range(4):
        a(f"v_sub_u32 v{C+q}, v{C+q}, v{ST}")
        if q < 3:
            a(f"v_add_u32 v{ST}, v{ST}, v{Y}")
    a(f"""
    v_max_u32 v{X}, v{C}, v{C+1}
    v_max3_u32 v{X}, v{X}, v{C+2}, v{C+3}
    v_cmp_lt_u32 vcc, {CAPB}, v{X}
    s_cmp_lg_u32 s{S_MORE}, 0
    s_cbranch_scc1 K3_clear
    K3_keep:
    s_cbranch_vccnz K3_over""")
    cold(f"""
    K3_clear:
    s_barrier
    v_mov_b32 v{X}, {FLAG}
    v_mov_b32 v{Y}, 0
    ds_write_b32 v{X}, v{Y}
    s_branch K3_keep""")

    a = cold
    a("K3_over:")
    for q in range(1, 4):
        a(f"v_add_u32 v{C+q}, v{C+q}, v{C+q-1}")
    a(f"v_mov_b32 v{X}, v{C+3}")
    wave_scan(a, X)
    a(f"v_sub_u32 v{Y}, v{X}, v{C+3}")
    for q in range(3, 0, -1):
        a(f"v_add_u32 v{C+q}, v{Y}, v{C+q-1}")
    a(f"""
    v_mov_b32 v{C}, v{Y}
    s_lshl_b32 s{S_T}, s{S_WAVE}, 3
    s_add_u32 s{S_T+1}, s{S_T}, 7
    s_bfm_b64 exec, 8, s{S_T}
    ds_write_b128 v{AD}, v[{C}:{C+3}] offset:{BASE}
    s_mov_b64 exec, -1
    v_readlane_b32 s{S_START}, v{Y}, s{S_T}
    v_readlane_b32 s{S_N}, v{X}, s{S_T+1}
    s_sub_u32 s{S_N}, s{S_N}, s{S_START}
    s_waitcnt lgkmcnt(0)
    s_barrier""")
    place(BASE, False)
    a(f"""
    s_lshl_b32 s{S_R}, s{S_START}, 16
    s_or_b32 s{S_R}, s{S_R}, 0xffff
    s_branch K3_placed""")
    a = hot
    bin_start(ST, ST)
    a(f"""
    v_cmp_gt_u32 vcc, {NBLK}, v{V_LANE}
    v_sub_u32 v{C}, v{OWN}, v{ST}
    v_cndmask_b32 v{X}, 0, v{C}, vcc""")
    wave_scan(a, X)
    a(f"""
    v_sub_u32 v{Y}, v{OWN}, v{X}
    v_lshl_or_b32 v{Y}, v{Y}, 16, v{X}
    v_readlane_b32 s{S_N}, v{X}, {NBLK-1}""")
    for b in range(NBLK):
        a(f"v_readlane_b32 s{S_R+b}, v{Y}, {b}")
    a(f"""
    s_or_b32 s{S_R+NBLK-1}, s{S_R+NBLK-1}, 0xffff
    K3_placed:""")

    T0, T1, T2, T3 = V_T, V_T + 1, V_T + 2, V_T + 3
    U0, U1 = V_S, V_S + 1
    assert V_RADDR == V_L8 and (V_L16, V_RINGO, V_OADDR) == (V_SL, V_SO, V_PF)

    def late_constants():
        a(f"""
        v_mov_b32 v{V_MHI}, 0xffff0000
        s_lshl_b32 s{S_T}, s{S_WAVE}, 10
        s_add_u32 s{S_T}, s{S_T}, {RING}
        v_lshl_add_u32 v{V_RINGW}, v{V_LANE}, 4, s{S_T}
        v_bfe_u32 v{T0}, v{V_LANE}, 3, 2
        v_bfe_u32 v{T1}, v{V_LANE}, 1, 1
        v_lshl_add_u32 v{T0}, v{T0}, 1, v{T1}
        v_and_b32 v{T1}, 1, v{V_LANE}
        v_lshlrev_b32 v{T0}, 4, v{T0}
        v_lshlrev_b32 v{T2}, 3, v{T1}
        v_sub_u32 v{T0}, v{T0}, v{T2}
        v_add_u32 v{T0}, s{S_T}, v{T0}
        v_bfe_u32 v{T2}, v{V_LANE}, 2, 1
        v_lshrrev_b32 v{T3}, 5, v{V_LANE}
        v_cmp_eq_u32 vcc, v{T2}, v{T3}
        v_mov_b32 v{T2}, {ZERO}
        v_lshrrev_b32 v{T3}, 4, v{V_LANE}
        v_cndmask_b32 v{V_AADDR}, v{T2}, v{T0}, vcc
        v_mov_b32 v{T0}, 0x3f80
        v_cmp_eq_u32 vcc, 1, v{T1}
        v_bfe_u32 v{T2}, v{V_LANE}, 1, 1
        v_bfe_u32 v{U0}, v{V_LANE}, 2, 2
        v_cndmask_b32 v{T0}, v{T0}, 1.0, vcc
        v_sub_u32 v{T3}, v{T3}, v{T2}
        v_lshl_add_u32 v{T3}, v{T3}, 2, v{U0}""")
        a(f"""
        s_cmp_eq_u32 s{S_R+NS}, 0
        s_cbranch_scc1 K3_unpacked
        s_and_b32 s{S_ELL+2}, s{S_ELL}, 0xffff0000
        s_lshl_b32 s{S_ELL}, s{S_ELL}, 16
        s_lshl_b32 s{S_T}, s{S_ELL+1}, 16
        s_mov_b32 s{S_ELL+1}, s{S_ELL+2}
        s_mov_b32 s{S_ELL+2}, s{S_T}
        s_lshl_b32 s{S_FREQ}, s{S_FREQ}, 16
        s_mov_b32 s{S_T}, 0x05040100
        s_mov_b32 s{S_T+1}, 0x07060302
        v_perm_b32 v{T1}, v{V_BW+2}, v{V_BW}, s{S_T}
        v_perm_b32 v{T2}, v{V_BW+3}, v{V_BW+1}, s{S_T}
        v_perm_b32 v{V_BW+2}, v{V_BW+2}, v{V_BW}, s{S_T+1}
        v_perm_b32 v{V_BW+3}, v{V_BW+3}, v{V_BW+1}, s{S_T+1}
        v_mov_b32 v{V_BW}, v{T1}
        v_mov_b32 v{V_BW+1}, v{T2}
        K3_unpacked:""")
        for aa in range(2):
            for q in range(4):
                sp = S_T if q % 2 else S_I
                a(f"v_cmp_eq_u32 s[{sp}:{sp+1}], {8*aa+q}, v{T3}")
                if q % 2:
                    a(f"""
                    s_nop 0
                    v_cndmask_b32 v{V_AU+4*aa+q-1}, 0, v{T0}, s[{S_I}:{S_I+1}]
                    v_cndmask_b32 v{V_AU+4*aa+q}, 0, v{T0}, s[{S_T}:{S_T+1}]""")

    stamp(a, cfg, S_WS, 2, V_RAW, 98, S_STAMP)
    a(f"""
    s_cmp_eq_u32 s{S_N}, 0
    s_cbranch_scc1 K3_swept
    s_mov_b32 s{S_BIN}, 0
    s_mov_b32 s{S_POS}, 0
    s_and_b32 s{S_NEXT}, s{S_R}, 0xffff
    s_lshr_b32 s{S_D8}, s{S_R}, 16
    s_lshl_b32 s{S_D8}, s{S_D8}, 3""")

    R, TH = V_RN, V_RN + 1
    stage1 = [
        f"v_cmp_gt_i32 vcc, s{S_N}, v{V_LANE}",
        f"v_mov_b32 v{T0}, s{S_MASK}",
        f"v_mov_b32 v{T1}, 1.0",
        f"v_cndmask_b32 v{R}, v{T0}, v{R}, vcc",
        f"v_cndmask_b32 v{TH}, v{T1}, v{TH}, vcc",
        f"v_and_b32 v{T0}, v{V_MHI}, v{TH}",
        f"v_lshlrev_b32 v{TH}, 16, v{TH}",
        f"v_rcp_f32 v{V_RADV}, v{T0}",
        f"v_mul_f32 v{T0}, s{S_FREQ}, v{T0}",
        f"v_cvt_pk_bf16_f32 v{T0}, v{T0}, v{T0}",
        f"v_and_b32 v{T0}, v{V_MHI}, v{T0}",
        f"v_mul_f32 v{T1}, s{S_CHI}, v{T0}",
        f"v_rndne_f32 v{T2}, v{T1}",
        f"v_sub_f32 v{T1}, v{T1}, v{T2}",
        f"v_fma_f32 v{T0}, v{T0}, s{S_CLO}, v{T1}",
        f"v_sin_f32 v{T0}, v{T0}",
        f"v_or_b32_sdwa v{V_IN}, v{R}, s{S_MODE} dst_sel:DWORD dst_unused:UNUSED_PAD src0_sel:BYTE_0 src1_sel:DWORD",
        f"v_cvt_pk_bf16_f32 v{T0}, v{T0}, v{T0}",
        f"v_and_b32 v{T0}, v{V_MHI}, v{T0}",
        f"v_mul_f32 v{V_RADV}, v{T0}, v{V_RADV}",
        f"v_cvt_pk_bf16_f32 v{V_RADV}, v{V_RADV}, v{V_RADV}",
        f"v_and_b32 v{V_RADV}, v{V_MHI}, v{V_RADV}",
    ]
    stage2 = [
        f"v_mul_f32 v{T0}, s{S_ELL}, v{TH}",
        f"v_mul_f32 v{T1}, s{S_ELL+1}, v{TH}",
        f"v_mov_b32_dpp v{T3}, v{V_IN} quad_perm:[1,1,3,3] row_mask:0xf bank_mask:0xf",
        f"v_mul_f32 v{T2}, s{S_ELL+2}, v{TH}",
        f"v_lshl_or_b32 v{V_IN}, v{T3}, 16, v{V_IN}",
        f"v_cvt_pk_bf16_f32 v{T0}, v{T0}, v{T1}",
        f"v_cvt_pk_bf16_f32 v{T2}, v{T2}, v{T2}",
        f"v_and_b32 v{T1}, v{V_MHI}, v{T0}",
        f"v_lshlrev_b32 v{T0}, 16, v{T0}",
        f"v_and_b32 v{T2}, v{V_MHI}, v{T2}",
        f"v_mul_f32 v{U0}, s{S_CHI}, v{T0}",
        f"v_mul_f32 v{U1}, s{S_CHI}, v{T1}",
        f"v_mul_f32 v{T3}, s{S_CHI}, v{T2}",
        f"v_fract_f32 v{U0}, v{U0}",
        f"v_fract_f32 v{U1}, v{U1}",
        f"v_fract_f32 v{T3}, v{T3}",
        f"v_fma_f32 v{T0}, v{T0}, s{S_CLO}, v{U0}",
        f"v_fma_f32 v{T1}, v{T1}, s{S_CLO}, v{U1}",
        f"v_fma_f32 v{T2}, v{T2}, s{S_CLO}, v{T3}",
        f"v_cos_f32 v{T0}, v{T0}",
        f"v_cos_f32 v{T1}, v{T1}",
        f"v_cos_f32 v{T2}, v{T2}",
        f"v_cmp_gt_i32 vcc, 0, v{R}",
        f"v_cvt_pk_bf16_f32 v{T0}, v{T0}, v{T1}",
        f"v_cvt_pk_bf16_f32 v{T2}, v{T2}, v{T2}",
        f"v_and_b32 v{T1}, v{V_MHI}, v{T0}",
        f"v_lshlrev_b32 v{T0}, 16, v{T0}",
        f"v_and_b32 v{T2}, v{V_MHI}, v{T2}",
    ]
    if cfg["const_ell"]:
        stage2 = [
            f"v_mul_f32 v{T2}, s{S_ELL+2}, v{TH}",
            f"v_mov_b32_dpp v{T3}, v{V_IN} quad_perm:[1,1,3,3] row_mask:0xf bank_mask:0xf",
            f"v_mul_f32 v{U0}, s{S_CHI}, v{TH}",
            f"v_cvt_pk_bf16_f32 v{T2}, v{T2}, v{T2}",
            f"v_lshl_or_b32 v{V_IN}, v{T3}, 16, v{V_IN}",
            f"v_and_b32 v{T2}, v{V_MHI}, v{T2}",
            f"v_fract_f32 v{U0}, v{U0}",
            f"v_mul_f32 v{T3}, s{S_CHI}, v{T2}",
            f"v_fma_f32 v{T0}, v{TH}, s{S_CLO}, v{U0}",
            f"v_fract_f32 v{T3}, v{T3}",
            f"v_cos_f32 v{T0}, v{T0}",
            f"v_fma_f32 v{T2}, v{T2}, s{S_CLO}, v{T3}",
            f"v_add_f32 v{T1}, v{T0}, v{T0}",
            f"v_cos_f32 v{T2}, v{T2}",
            f"v_fma_f32 v{T1}, v{T1}, v{T0}, -1.0",
            f"v_cmp_gt_i32 vcc, 0, v{R}",
            f"v_cvt_pk_bf16_f32 v{T0}, v{T0}, v{T1}",
            f"v_cvt_pk_bf16_f32 v{T2}, v{T2}, v{T2}",
            f"v_and_b32 v{T1}, v{V_MHI}, v{T0}",
            f"v_lshlrev_b32 v{T0}, 16, v{T0}",
            f"v_and_b32 v{T2}, v{V_MHI}, v{T2}",
        ]
    stage3 = [
        f"v_mul_f32 v{T0}, v{T0}, v{V_RADV}",
        f"v_mul_f32 v{T1}, v{T1}, v{V_RADV}",
        f"v_mul_f32 v{T2}, v{T2}, v{V_RADV}",
        f"v_cvt_pk_bf16_f32 v{U0}, v{T0}, v{T1}",
        f"v_cvt_pk_bf16_f32 v{U1}, v{T2}, 0",
        f"v_cndmask_b32 v{U0}, v{U0}, 0, vcc",
        f"v_cndmask_b32 v{U1}, v{U1}, v{V_RADV}, vcc",
    ]

    def fetch_batch(tag):
        a(f"""
        v_add_u32 v{T2}, s{S_D8}, v{V_RADDR}
        s_add_u32 s{S_T+1}, s{S_POS}, 64
        s_cmp_ge_u32 s{S_NEXT}, s{S_T+1}
        s_cbranch_scc1 K3_same{tag}
        K3_cross{tag}:
        s_add_u32 s{S_BIN}, s{S_BIN}, 1
        s_mov_b32 m0, s{S_BIN}
        s_sub_u32 s{S_T}, s{S_NEXT}, s{S_POS}
        s_movrels_b32 s{S_NEXT}, s{S_R}
        v_cmp_le_u32 vcc, s{S_T}, v{V_LANE}
        s_lshr_b32 s{S_D8}, s{S_NEXT}, 16
        s_lshl_b32 s{S_D8}, s{S_D8}, 3
        s_and_b32 s{S_NEXT}, s{S_NEXT}, 0xffff
        v_add_u32 v{V_OFF}, s{S_D8}, v{V_RADDR}
        v_cndmask_b32 v{T2}, v{T2}, v{V_OFF}, vcc
        s_cmp_lt_u32 s{S_NEXT}, s{S_T+1}
        s_cbranch_scc1 K3_cross{tag}
        K3_same{tag}:
        ds_read_b64 v[{V_RN}:{V_RN+1}], v{T2} offset:{RECS}
        v_add_u32 v{V_RADDR}, 512, v{V_RADDR}
        s_mov_b32 s{S_POS}, s{S_T+1}""")

    def issue(L):
        o = V_O + 2 * ((L // 2) % 2) + L % 2
        raw = V_RAW + 4 * (L % 8)
        a(f"v_add_u32 v{o}, v{o}, v{V_L16}")
        a(f"buffer_load_dwordx4 v[{raw}:{raw+3}], v{o}, s[{S_H}:{S_H+3}], 0 offen {cfg['row_load']}")

    def o_read(j):
        o = V_O + 2 * (j % 2)
        a(f"ds_read_b64 v[{o}:{o+1}], v{V_OADDR} offset:{32 * (j % 8)}")

    def o_write():
        a(f"v_and_b32 v{V_OFF}, s{S_MASK}, v{R}\nds_write_b32 v{V_RINGO}, v{V_OFF}")

    def a_read(g):
        a(f"ds_read2_b64 v[{V_A}:{V_A+3}], v{V_AADDR} offset0:{16*g} offset1:{16*g+1}")

    def read_step(j):
        return (2 * j - D) // 2 * 2 - 2

    PROG = FLAG + 16
    if cfg["prio"]:
        a(f"""
        s_lshl_b32 s{S_T}, s{S_WAVE}, 2
        s_add_u32 s{S_PF}, s{S_T}, {PROG}
        s_xor_b32 s{S_T}, s{S_T}, 16
        s_add_u32 s{S_NMAX}, s{S_T}, {PROG}""")
    fetch_batch("0")
    a("s_waitcnt lgkmcnt(0)")
    for s in stage1[:5]:
        a(s)
    o_write()
    early = [j for j in range(8) if read_step(j) < 0]
    for j0 in range(0, len(early), 2):
        for j in early[j0:j0 + 2]:
            o_read(j)
        nxt = [L for j in early[j0:j0 + 2] for L in (2 * j, 2 * j + 1) if L < D]
        if nxt:
            a("s_waitcnt lgkmcnt(0)")
            for L in nxt:
                issue(L)
    late_constants()
    for s in stage1[5:] + stage2 + stage3:
        a(s)
    a(f"ds_write_b64 v{V_RINGW}, v[{V_S}:{V_S+1}]\nv_mov_b32 v{V_IC}, v{V_IN}")
    a_read(0)

    body = Asm()
    a_main = a
    fill = {i: [] for i in range(16)}
    fill[2] = stage1[:5]
    rest = stage1[5:] + stage2 + stage3
    steps = list(range(3, 14))
    for n, s in enumerate(rest):
        fill[steps[n * len(steps) // len(rest)]].append(s)
    a = body
    for i in range(16):
        if i and i % cfg["exit_every"] == 0:
            a(f"s_cmp_le_i32 s{S_N}, {4*i-64}\ns_cbranch_scc1 K3_drain")
        if i % 2 == 0:
            a(f"s_waitcnt lgkmcnt(0)\nv_mfma_f32_32x32x16_bf16 v[{V_F}:{V_F+15}], v[{V_A}:{V_A+3}], v[{V_BW}:{V_BW+3}], 0")
            if i == 0:
                a(f"s_sub_u32 s{S_N}, s{S_N}, 64")
                fetch_batch("1")
            if cfg["prio"] and i == 0:
                a(f"""
                v_mov_b32 v{T0}, s{S_PF}
                v_mov_b32 v{T1}, s{S_N}
                v_mov_b32 v{T3}, s{S_NMAX}
                ds_write_b32 v{T0}, v{T1}
                ds_read_b32 v{T3}, v{T3}""")
            if cfg["prio"] and i == 2:
                a(f"""
                v_readfirstlane_b32 s{S_T}, v{T3}
                s_cmp_gt_i32 s{S_N}, s{S_T}
                s_cbranch_scc1 K3_behind
                s_setprio 0
                s_branch K3_prio
                K3_behind:
                s_setprio 1
                K3_prio:""")
            if i == 14:
                a(f"ds_write_b64 v{V_RINGW}, v[{V_S}:{V_S+1}]")
            a_read((i // 2 + 1) % 8)
        n = D - 1
        raw = V_RAW + 4 * (i % 8)
        a(f"""
        s_waitcnt vmcnt({n})
        v_mfma_f32_16x16x32_bf16 v[{V_H}:{V_H+3}], v[{V_AU}:{V_AU+3}], v[{raw}:{raw+3}], 0
        v_mfma_f32_16x16x32_bf16 v[{V_H+4}:{V_H+7}], v[{V_AU+4}:{V_AU+7}], v[{raw}:{raw+3}], 0""")
        issue(i + D)
        for j in range(16):
            if read_step(j) == i:
                if j == 8:
                    o_write()
                o_read(j)
        a(f"v_readlane_b32 s{S_I}, v{V_IC}, {4*i}\nv_readlane_b32 s{S_I+1}, v{V_IC}, {4*i+2}")
        for s in fill[i]:
            a(s)
        for j in range(4):
            f = V_F + 2 * (4 * (i % 2) + j)
            a([f"s_set_gpr_idx_on s{S_I}, gpr_idx(SRC2,DST)", f"s_lshr_b32 m0, s{S_I}, 16",
               f"s_mov_b32 m0, s{S_I+1}", f"s_lshr_b32 m0, s{S_I+1}, 16"][j])
            a(f"v_pk_fma_f32 v[{ACC}:{ACC+1}], v[{V_H+2*j}:{V_H+2*j+1}], v[{f}:{f+1}], v[{ACC}:{ACC+1}]")
        a("s_set_gpr_idx_off")
    a(f"""
    v_mov_b32 v{V_IC}, v{V_IN}
    s_cmp_gt_i32 s{S_N}, 0
    s_cbranch_scc1 K3_batch""")
    a = a_main
    lines, added = pad(body.lines)
    again, extra = pad(lines, before=lines)
    assert extra == 0
    print(f"sweep loop: {len(lines)} instructions, {added} padded wait states", file=sys.stderr)
    a("K3_batch:")
    a.lines += lines
    a(f"""
    K3_drain:
    s_waitcnt vmcnt(0) lgkmcnt(0)
    K3_swept:
    s_mov_b32 s{S_R+NS}, 0
    s_mov_b32 s{S_R+NS+1}, 0
    s_waitcnt lgkmcnt(0)
    s_cmp_lg_u32 s{S_MORE}, 0
    s_cbranch_scc1 K3_round""")
    stamp(a, cfg, S_WS, 4, P, 98, S_STAMP)

    st = cfg["out_store"]
    a(f"""
    v_and_b32 v7, 15, v{V_LANE}
    v_lshrrev_b32 v8, 4, v{V_LANE}
    v_lshlrev_b32 v7, 4, v7
    v_lshl_add_u32 v7, v8, 19, v7
    s_lshl_b32 s{S_T}, s{S_WAVE}, 8
    s_add_u32 s{S_T}, s{S_T}, s{S_B}
    s_lshl_b32 s{S_T}, s{S_T}, 8""")
    for i in range(20):
        t = P + 4 * (i % 8)
        for k in range(4):
            r = min(4 * i + k, 78)
            a(f"v_cvt_pk_bf16_f32 v{t+k}, v{ACC+2*r}, v{ACC+2*r+1}")
        a(f"""
        s_nop 0
        v_permlane32_swap_b32 v{t}, v{t+2}
        v_permlane32_swap_b32 v{t+1}, v{t+3}
        s_nop 1
        v_permlane16_swap_b32 v{t}, v{t+1}
        v_permlane16_swap_b32 v{t+2}, v{t+3}
        buffer_store_dwordx4 v[{t}:{t+3}], v7, s[{S_OUT}:{S_OUT+3}], s{S_T} offen {st}
        s_add_u32 s{S_T}, s{S_T}, {4 << 19}""")
    if cfg["stamps"]:
        a("s_waitcnt vmcnt(0)")
        stamp(a, cfg, S_WS, 5, P, 98, S_STAMP)
    a("K3_end:\ns_endpgm")
    a.lines += cold.lines
    return lds


def descriptor(name, vgpr, sgpr):
    return f""".p2align 6
.amdhsa_kernel {name}
  .amdhsa_next_free_vgpr {vgpr}
  .amdhsa_next_free_sgpr {sgpr}
  .amdhsa_accum_offset {(vgpr + 3) // 4 * 4}
  .amdhsa_group_segment_fixed_size 0
  .amdhsa_kernarg_size 96
  .amdhsa_user_sgpr_count 2
  .amdhsa_user_sgpr_kernarg_segment_ptr 1
  .amdhsa_system_sgpr_workgroup_id_x 1
  .amdhsa_float_denorm_mode_32 3
.end_amdhsa_kernel
"""


DEFAULT = dict(stamps=0, ns=34, dpl=7, rec_load="", capb=114, k1_load="nt", k1_store="sc1", out_store="sc0 sc1", dbg=0, row_load="", prio=1, mask_rec=1, exit_every=4, rot=5, ahead=1, const_ell=0, k1_threads=1024, self_at=34)


def generate(**kw):
    cfg = dict(DEFAULT)
    cfg.update(kw)
    a = Asm()
    lds1, vgpr1 = gen_bucket(a, cfg)
    lds3 = gen_sweep(a, cfg)
    a.lines, added = pad("\n".join(a.lines).split("\n"))
    print(f"{added} wait states padded outside the loop", file=sys.stderr)
    ref = open("standalone__molecular_angular_dimenet__graph.s.ref").read().split("\n")
    head = [ln for ln in ref if ln.startswith(";   offset") or ln.startswith("; Kernarg")]
    head += [
        "; Launch 1 sorts every chunk of 10240 triplets by destination bucket (ji & 255) into 8-byte records",
        ";   {wave | source row | accumulator index, d[source] : theta} and writes a {start, length} table.",
        "; Launch 2 handles one bucket per workgroup: records are binned by (wave, source block) in LDS, each wave",
        ";   keeps the fp32 sums of its rows in v98..v255 and visits the source rows in increasing order.",
        ";   Per four rows: one 16-byte-per-lane gather, two MFMAs that unpack/transpose bf16 to fp32, half an MFMA",
        ";   for the filter sbf @ w_sbf (self term: rbf * w_rbf), and four indexed packed FMAs.",
        f"; @launch kernel=bucket_kernel grid=({NCHUNK},1,1) block=({cfg['k1_threads']},1,1) lds={lds1}",
        f"; @launch kernel=sweep_kernel grid=(256,1,1) block=(512,1,1) lds={lds3}",
        '.amdgcn_target "amdgcn-amd-amdhsa--gfx950"',
        ".text",
    ]
    tail = '.section .rodata,"a"\n' + descriptor("bucket_kernel", vgpr1, 64) + descriptor("sweep_kernel", 256, 102)
    return "\n".join(head) + "\n" + a.text() + tail


if __name__ == "__main__":
    out = sys.argv[1]
    kw = {}
    for arg in sys.argv[2:]:
        k, v = arg.split("=", 1)
        kw[k] = type(DEFAULT[k])(int(v)) if isinstance(DEFAULT[k], (bool, int)) else v
    open(out, "w").write(generate(**kw))
```

```python
import struct
import sys

from hazard import pad

E = 160000
T = 2560000
CHUNK = 10240
NCHUNK = T // CHUNK
H_BYTES = E * 256

WS_REC = 0
WS_TAB = 0x1480000
WS_END = WS_TAB + NCHUNK * 1024
WS_STAMP = 0x1500000


def f32bits(x):
    return struct.unpack("<I", struct.pack("<f", x))[0]


INV2PI = 0.15915494309189535
C_HI = f32bits(INV2PI) & 0xFFFFFF00
C_LO = f32bits(INV2PI - struct.unpack("<f", struct.pack("<I", C_HI))[0])


class Asm:
    def __init__(self):
        self.lines = []

    def __call__(self, text):
        for ln in text.strip("\n").split("\n"):
            ln = ln.strip()
            if not ln:
                continue
            self.lines.append(ln if ln.endswith(":") else "    " + ln)

    def raw(self, text):
        self.lines.append(text)

    def text(self):
        return "\n".join(self.lines) + "\n"


def srd(a, d, lo, hi, nbytes):
    a(f"""
    s_mov_b32 s{d}, s{lo}
    s_mov_b32 s{d+1}, s{hi}
    s_mov_b32 s{d+2}, {nbytes}
    s_mov_b32 s{d+3}, 0x20000""")


def wave_scan(a, x):
    for sh in (1, 2, 4, 8):
        a(f"v_add_u32_dpp v{x}, v{x}, v{x} row_shr:{sh} row_mask:0xf bank_mask:0xf bound_ctrl:0")
    a(f"v_add_u32_dpp v{x}, v{x}, v{x} row_bcast:15 row_mask:0xa bank_mask:0xf")
    a(f"v_add_u32_dpp v{x}, v{x}, v{x} row_bcast:31 row_mask:0xc bank_mask:0xf")


def stamp(a, cfg, srd_ws, slot, vtmp, s0, swave_off):
    if not cfg["stamps"]:
        return
    a(f"""
    s_memrealtime s[{s0}:{s0+1}]
    s_waitcnt lgkmcnt(0)
    v_mov_b32 v{vtmp}, s{s0}
    v_mov_b32 v{vtmp+1}, {slot*4}
    s_mov_b64 exec, 1
    buffer_store_dword v{vtmp}, v{vtmp+1}, s[{srd_ws}:{srd_ws+3}], s{swave_off} offen
    s_mov_b64 exec, -1""")


def gen_bucket(a, cfg):
    NT = cfg["k1_threads"]
    NW = NT // 64
    PER = CHUNK // NT
    parts = [4] * (PER // 4) + ([2] if PER % 4 else [])
    HIST, BASE, TBL = 0, 1024, 2048
    RECS = TBL
    HALF = E // 2
    NDMA = -(-HALF * 2 // 1024)
    ND = 160 // NW
    S_JI, S_KJ, S_TH, S_WS, S_D = 16, 20, 24, 28, 36
    S_W, S_O4, S_O2, S_HALF, S_FE = 15, 48, 56, 47, 46
    PP = (PER + 3) // 4 * 4
    JI = [4 + i for i in range(PER)]
    KJ = [4 + PP + i for i in range(PER)]
    TH = 4 + 2 * PP
    R0 = [TH + PP // 2 + 2 * i for i in range(PER)]
    BK = [R0[-1] + 2 + i for i in range(PER)]
    RK = [BK[-1] + 1 + i for i in range(PER)]
    DV = [RK[-1] + 1 + i for i in range(PER)]
    X = (DV[-1] + 2) // 2 * 2
    V_TAB, V_ONE, V_L16, V_A, V_B, V_ST = X, X + 4, X + 5, X + 6, X + 7, X + 8
    nvgpr = X + 10
    ws_size = WS_STAMP + 0x100000 if cfg["stamps"] else WS_END
    st, ld = cfg["k1_store"], cfg["k1_load"]
    a.raw(".p2align 8\n.globl bucket_kernel\n.type bucket_kernel,@function\nbucket_kernel:")
    a(f"""
    s_load_dwordx2 s[{S_KJ}:{S_KJ+1}], s[0:1], 24
    s_load_dwordx2 s[{S_D}:{S_D+1}], s[0:1], 8
    s_load_dwordx2 s[{S_JI}:{S_JI+1}], s[0:1], 32
    s_load_dwordx2 s[{S_TH}:{S_TH+1}], s[0:1], 16
    s_load_dwordx2 s[{S_WS}:{S_WS+1}], s[0:1], 88
    s_cmp_ge_u32 s2, {NCHUNK}
    s_cbranch_scc1 K1_end
    v_readfirstlane_b32 s{S_W}, v0
    v_lshlrev_b32 v1, 4, v0
    v_lshlrev_b32 v2, 3, v0
    s_mul_i32 s{S_O4}, s2, {CHUNK*4}
    s_lshr_b32 s{S_W}, s{S_W}, 6
    v_and_b32 v{V_L16}, 0x3f0, v1""")
    for n in range(1, len(parts)):
        a(f"s_add_u32 s{S_O4+n}, s{S_O4}, {n*NT*16}")
    for r, nbytes in ((S_KJ, T * 4), (S_D, E * 2)):
        a(f"s_mov_b32 s{r+2}, {nbytes}\ns_mov_b32 s{r+3}, 0x20000")
    if cfg["stamps"]:
        a(f"""
        s_mov_b32 s{S_WS+2}, {ws_size}
        s_mov_b32 s{S_WS+3}, 0x20000
        s_lshl_b32 s41, s2, 4
        s_add_u32 s40, s{S_W}, s41
        s_lshl_b32 s40, s40, 5
        s_add_u32 s40, s40, {WS_STAMP}""")
    a("s_waitcnt lgkmcnt(0)")

    def mark(slot):
        stamp(a, cfg, S_WS, slot, V_ST, 42, 40)

    def late_setup():
        a(f"v_lshlrev_b32 v3, 2, v0\ns_mul_i32 s{S_O2}, s2, {CHUNK*2}")
        for n in range(1, len(parts)):
            a(f"s_add_u32 s{S_O2+n}, s{S_O2}, {n*NT*8}")
        for r, nbytes in ((S_JI, T * 4), (S_TH, T * 2), (S_WS, ws_size)):
            a(f"s_mov_b32 s{r+2}, {nbytes}\ns_mov_b32 s{r+3}, 0x20000")
        a(f"""
        v_mov_b32 v{V_A}, 0
        v_and_b32 v{V_B}, 0x3fc, v3
        v_mov_b32 v{V_ONE}, 1
        s_mov_b32 s{S_FE}, 0xfe
        s_mov_b32 s{S_HALF}, {HALF*2}
        ds_write_b32 v{V_B}, v{V_A} offset:{HIST}""")

    mark(0)
    NP = len(parts)
    spans = [(sum(parts[:n]), sum(parts[:n + 1])) for n in range(NP)]

    def stage(piece):
        a(f"""
        s_lshr_b32 s35, s2, 3
        s_mul_i32 s35, s35, {cfg["rot"]}
        s_add_u32 s35, s35, s{S_W}
        s_lshl_b32 s35, s35, 10""")
        for i in range(ND):
            a(f"""
            s_cmp_ge_u32 s35, {160*1024}
            s_cselect_b32 s34, {160*1024}, 0
            s_sub_u32 s35, s35, s34
            s_min_u32 s34, s35, {(NDMA - 1) * 1024}
            s_add_u32 m0, s34, {TBL}
            s_add_u32 s34, s34, {piece * HALF * 2}
            buffer_load_dwordx4 v{V_L16}, s[{S_D}:{S_D+3}], s34 offen lds""")
            if i < ND - 1:
                a(f"s_add_u32 s35, s35, {NW*1024}")

    def idx_loads(regs, srd_):
        for n, (lo, hi) in enumerate(spans):
            w, v = ("x4", 1) if hi - lo == 4 else ("x2", 2)
            a(f"buffer_load_dword{w} v[{regs[lo]}:{regs[hi-1]}], v{v}, s[{srd_}:{srd_+3}], s{S_O4+n} offen {ld}")

    def th_loads():
        for n, (lo, hi) in enumerate(spans):
            if hi - lo == 4:
                a(f"buffer_load_dwordx2 v[{TH+lo//2}:{TH+lo//2+1}], v2, s[{S_TH}:{S_TH+3}], s{S_O2+n} offen {ld}")
            else:
                a(f"buffer_load_dword v{TH+lo//2}, v3, s[{S_TH}:{S_TH+3}], s{S_O2+n} offen {ld}")

    def look(piece):
        for i in range(PER):
            if piece == 0:
                a(f"v_cmpx_gt_u32 vcc, s{S_HALF}, v{KJ[i]}")
            else:
                a(f"v_cmpx_le_u32 vcc, s{S_HALF}, v{KJ[i]}\nv_subrev_u32 v{KJ[i]}, s{S_HALF}, v{KJ[i]}")
            a(f"ds_read_u16 v{DV[i]}, v{KJ[i]} offset:{TBL}\ns_mov_b64 exec, -1")

    def count(younger):
        for n, (lo, hi) in enumerate(spans):
            a(f"s_waitcnt vmcnt({NP - 1 - n + younger})")
            for i in range(lo, hi):
                a(f"v_lshlrev_b32_sdwa v{BK[i]}, 2, v{JI[i]} dst_sel:DWORD dst_unused:UNUSED_PAD src0_sel:DWORD src1_sel:BYTE_0")
            for i in range(lo, hi):
                a(f"ds_add_rtn_u32 v{RK[i]}, v{BK[i]}, v{V_ONE} offset:{HIST}")

    def build(younger):
        for i in range(PER):
            a(f"""
            v_lshrrev_b32 v{V_A}, 10, v{JI[i]}
            v_bfe_u32 v{V_B}, v{JI[i]}, 8, 3
            v_and_or_b32 v{V_A}, v{V_A}, s{S_FE}, v{R0[i]}
            v_lshl_or_b32 v{R0[i]}, v{V_B}, 26, v{V_A}""")
        for n, (lo, hi) in enumerate(spans):
            a(f"s_waitcnt vmcnt({NP - 1 - n + younger})")
            for i in range(lo, hi):
                if i % 2 == 0:
                    a(f"v_and_b32 v{R0[i]+1}, 0xffff, v{TH + i // 2}")
                else:
                    a(f"v_lshrrev_b32 v{R0[i]+1}, 16, v{TH + i // 2}")

    def scan():
        a(f"""
        ds_read_b128 v[4:7], v{V_L16} offset:{HIST}
        s_waitcnt lgkmcnt(0)
        v_add_u32 v8, v4, v5
        v_add3_u32 v8, v8, v6, v7
        v_mov_b32 v9, v8""")
        wave_scan(a, 9)
        a(f"""
        v_sub_u32 v10, v9, v8
        v_add_u32 v11, v10, v4
        v_add_u32 v12, v11, v5
        v_add_u32 v13, v12, v6
        ds_write_b128 v{V_L16}, v[10:13] offset:{BASE}""")
        for i in range(PER):
            a(f"ds_read_b32 v{BK[i]}, v{BK[i]} offset:{BASE}")
        for q in range(4):
            a(f"v_lshl_or_b32 v{V_TAB+q}, v{4+q}, 16, v{10+q}")
        a("s_waitcnt lgkmcnt(0)")
        for i in range(PER):
            a(f"v_add_lshl_u32 v{BK[i]}, v{BK[i]}, v{RK[i]}, 3")

    ns = 1 if cfg["stamps"] else 0
    a("s_bitcmp1_b32 s2, 3\ns_cbranch_scc1 K1_later")
    idx_loads(KJ, S_KJ)
    a("K1_later:")
    stage(0)
    late_setup()
    a("s_bitcmp0_b32 s2, 3\ns_cbranch_scc1 K1_both\ns_barrier")
    idx_loads(KJ, S_KJ)
    a("K1_both:\ns_barrier")
    idx_loads(JI, S_JI)
    th_loads()
    a(f"s_waitcnt vmcnt({2*NP})")
    for i in range(PER):
        a(f"v_lshlrev_b32 v{R0[i]}, 8, v{KJ[i]}\nv_lshlrev_b32 v{KJ[i]}, 1, v{KJ[i]}")
    a("s_barrier")
    look(0)
    a("s_waitcnt lgkmcnt(0)\ns_barrier")
    mark(4)
    count(NP + ns)
    stage(1)
    build(ND + ns)
    a("s_waitcnt lgkmcnt(0)\ns_barrier")
    mark(1)
    scan()
    a("s_waitcnt vmcnt(0)\ns_barrier")
    mark(5)
    look(1)
    a(f"""
    s_cmp_lg_u32 s{S_W}, 0
    s_cbranch_scc1 K1_notab
    s_lshl_b32 s35, s2, 10
    s_add_u32 s35, s35, {WS_TAB}
    buffer_store_dwordx4 v[{V_TAB}:{V_TAB+3}], v{V_L16}, s[{S_WS}:{S_WS+3}], s35 offen {st}
    K1_notab:
    s_waitcnt lgkmcnt(0)
    s_barrier""")
    mark(6)
    for i in range(PER):
        a(f"v_lshl_or_b32 v{R0[i]+1}, v{DV[i]}, 16, v{R0[i]+1}")
        a(f"ds_write_b64 v{BK[i]}, v[{R0[i]}:{R0[i]+1}] offset:{RECS}")
    a("s_waitcnt lgkmcnt(0)\ns_barrier")
    mark(2)
    NO = PER // 2
    a(f"s_mul_i32 s12, s2, {CHUNK*8}\nv_add_u32 v2, 0x8000, v1\nv_add_u32 v3, 0x10000, v1")
    for k in range(NO):
        off = k * NT * 16
        a(f"ds_read_b128 v[{4+4*k}:{7+4*k}], v{1 + off // 0x8000} offset:{RECS + off % 0x8000}")
    for k in range(NO):
        a(f"s_waitcnt lgkmcnt({NO-1-k})")
        a(f"buffer_store_dwordx4 v[{4+4*k}:{7+4*k}], v1, s[{S_WS}:{S_WS+3}], s12 offen {st}")
        if k < NO - 1:
            a(f"s_add_u32 s12, s12, {NT*16}")
    if cfg["stamps"]:
        a("s_waitcnt vmcnt(0)")
        mark(3)
    a("K1_end:\ns_endpgm")
    return TBL + NDMA * 1024, nvgpr


def gen_sweep(a, cfg):
    NS = cfg["ns"]
    NSL = NS + 2
    PIECE = 63
    D = cfg["dpl"]
    SHIFT = 21
    NBLK = -(-E // 8192)
    CAPB = cfg["capb"]
    KMASK = 255 << 2
    CUR, BASE, FLAG, ZERO, RING, RINGO, RECS = 0, 1024, 4096, 4352, 5632, 13824, 16384
    CAP = max(8 * (NS * PIECE + 79), 8 * NBLK * CAPB)
    lds = RECS + CAP * 8 + 512
    assert lds <= 163840 and 2 <= D <= 7

    ACC = 98
    V_LANE, V_TOFF, V_BW, V_TLEN = 0, 1, 2, 6
    V_L8, V_ONE, P = 7, 8, 10
    TK = P + 2 * NSL
    G = 6
    V_SL, V_SO, V_PF = TK + 2 * G, TK + 2 * G + 1, TK + 2 * G + 2
    V_RADDR, V_AADDR, V_RINGW = 7, 8, 9
    V_RAW, V_F, V_H, V_A, V_AU, V_O, V_RN, V_S, V_T = 10, 42, 58, 66, 70, 78, 82, 84, 86
    V_IC, V_IN, V_RADV, V_MHI, V_L16, V_RINGO, V_OADDR, V_OFF = 90, 91, 92, 93, 94, 95, 96, 97
    S_H, S_OUT, S_WS, S_D = 4, 8, 12, 76
    S_B, S_WAVE, S_SEG, S_REM, S_OFF, S_MORE, S_N, S_START = 16, 17, 18, 19, 20, 21, 22, 23
    S_ELL, S_CHI, S_CLO, S_MASK, S_MODE, S_NMAX, S_T = 24, 27, 28, 29, 30, 31, 32
    S_FREQ, S_PF = 34, 35
    S_BIN, S_POS, S_NEXT, S_D8 = 39, 70, 71, 72
    S_I = 36
    S_R = 40
    S_STAMP = 96
    ws_size = WS_STAMP + 0x100000 if cfg["stamps"] else WS_END

    hot, cold = a, Asm()
    a.raw(".p2align 8\n.globl sweep_kernel\n.type sweep_kernel,@function\nsweep_kernel:")
    a(f"""
    {"s_memrealtime s[100:101]" if cfg["stamps"] else ""}
    s_load_dwordx2 s[{S_WS}:{S_WS+1}], s[0:1], 88
    s_load_dwordx4 s[80:83], s[0:1], 0
    s_load_dwordx2 s[84:85], s[0:1], 40
    s_load_dwordx4 s[88:91], s[0:1], 48
    s_load_dwordx4 s[92:95], s[0:1], 64
    s_cmp_ge_u32 s2, 256
    s_cbranch_scc1 K3_end
    v_lshrrev_b32 v{P}, 6, v0
    v_and_b32 v{P+1}, 63, v0
    s_and_b32 s{S_B}, s2, 7
    s_lshl_b32 s{S_B}, s{S_B}, 5
    s_lshr_b32 s{S_T}, s2, 3
    s_add_u32 s{S_B}, s{S_B}, s{S_T}
    v_lshl_add_u32 v{V_TOFF}, v{P}, 5, v{P+1}
    v_mov_b32 v{V_TLEN}, 0
    v_lshlrev_b32 v{P+1}, 10, v{V_TOFF}
    s_lshl_b32 s{S_T}, s{S_B}, 2
    s_add_u32 s{S_T}, s{S_T}, {WS_TAB}
    s_mov_b32 s{S_WS+2}, {ws_size}
    s_mov_b32 s{S_WS+3}, 0x20000
    s_bfm_b64 exec, 32, 0
    s_waitcnt lgkmcnt(0)""")
    if cfg["stamps"]:
        a("s_memrealtime s[98:99]\ns_waitcnt lgkmcnt(0)\ns_mov_b32 s101, s98")
    a(f"""
    buffer_load_dword v{V_TLEN}, v{P+1}, s[{S_WS}:{S_WS+3}], s{S_T} offen
    s_mov_b64 exec, -1
    v_readfirstlane_b32 s{S_WAVE}, v{P}
    v_lshlrev_b32 v{P}, 5, v0
    v_and_b32 v{V_LANE}, 63, v0
    v_mov_b32 v{P+2}, 0
    v_mov_b32 v{P+3}, 0
    v_mov_b32 v{P+4}, 0
    v_mov_b32 v{P+5}, 0
    ds_write_b128 v{P}, v[{P+2}:{P+5}] offset:{FLAG}
    ds_write_b128 v{P}, v[{P+2}:{P+5}] offset:{FLAG+16}
    v_and_b32 v{P+6}, 15, v{V_LANE}
    v_lshrrev_b32 v{P+7}, 4, v{V_LANE}
    v_lshl_add_u32 v{P+6}, v{P+6}, 2, v{P+7}
    v_lshlrev_b32 v{P+6}, 2, v{P+6}""")
    a(f"s_load_dwordx2 s[{S_ELL}:{S_ELL+1}], s[88:89], 0\ns_load_dword s{S_FREQ}, s[84:85], 0")
    SA, SB = P + 2 * NS, P + 2 * NS + 2
    srd(a, S_H, 90, 91, 768)
    srd(a, S_OUT, 92, 93, 256)
    srd(a, S_D, 82, 83, E * 2)
    a(f"""
    buffer_load_dword v{V_BW}, v{P+6}, s[{S_H}:{S_H+3}], 0 offen
    buffer_load_dword v{V_BW+2}, v{P+6}, s[{S_H}:{S_H+3}], 0 offen offset:256
    buffer_load_dword v{V_BW+1}, v{P+6}, s[{S_H}:{S_H+3}], 0 offen offset:512
    buffer_load_dword v{V_BW+3}, v{P+6}, s[{S_OUT}:{S_OUT+3}], 0 offen
""")
    srd(a, S_H, 80, 81, 0 if cfg["dbg"] & 1 else H_BYTES)
    srd(a, S_OUT, 94, 95, H_BYTES)

    if cfg["stamps"]:
        a(f"""
        s_lshl_b32 s{S_STAMP}, s2, 3
        s_add_u32 s{S_STAMP}, s{S_STAMP}, s{S_WAVE}
        s_lshl_b32 s{S_STAMP}, s{S_STAMP}, 5
        s_add_u32 s{S_STAMP}, s{S_STAMP}, {WS_STAMP + 0x40000}""")
    a(f"""
    s_mov_b32 s{S_CHI}, {C_HI:#x}
    s_mov_b32 s{S_CLO}, {C_LO:#x}
    s_mov_b32 s{S_MASK}, 0x03ffff00
    s_mov_b32 s{S_MODE}, 0xc000
    s_mov_b32 s{S_T}, {CHUNK*8}
    v_cmp_gt_u32 vcc, {NCHUNK}, v{V_TOFF}
    v_mul_lo_u32 v{V_TOFF}, v{V_TOFF}, s{S_T}
    s_mov_b32 s{S_SEG}, 0
    s_mov_b32 s{S_REM}, 0
    s_mov_b32 s{S_OFF}, 0""")
    a(f"""
    s_lshl_b32 s{S_T}, s{S_WAVE}, 8
    s_add_u32 s{S_T}, s{S_T}, s{S_B}
    s_lshl_b32 s{S_T}, s{S_T}, 8
    s_lshl_b32 s{S_T+1}, s{S_WAVE}, 26
    s_or_b32 s{S_T}, s{S_T}, s{S_T+1}
    s_bitset1_b32 s{S_T}, 31
    s_mov_b32 s{S_T+1}, {(1 << 19) + 2}
    v_mul_lo_u32 v{SA}, v{V_LANE}, s{S_T+1}
    v_add_u32 v{SA}, s{S_T}, v{SA}
    v_add_u32 v{SB}, {40 * ((1 << 19) + 2)}, v{SA}
    s_mov_b32 s{S_R+NS}, 40
    s_cmp_eq_u32 s{S_WAVE}, 0
    s_cselect_b32 s{S_R+NS+1}, 39, 38""")
    for i in range(158):
        a(f"v_mov_b32 v{ACC+i}, 0")
    a(f"""
    s_waitcnt vmcnt(4)
    v_cndmask_b32 v{V_TLEN}, 0, v{V_TLEN}, vcc
    v_and_b32 v{P+1}, 0xffff, v{V_TLEN}
    v_lshl_add_u32 v{V_TOFF}, v{P+1}, 3, v{V_TOFF}
    v_lshrrev_b32 v{V_TLEN}, 16, v{V_TLEN}""")
    stamp(a, cfg, S_WS, 0, P, 98, S_STAMP)
    if cfg["stamps"]:
        for slot, sr in ((3, 100), (6, 101)):
            a(f"""
            v_mov_b32 v{P}, s{sr}
            v_mov_b32 v{P+1}, {slot*4}
            s_mov_b64 exec, 1
            buffer_store_dword v{P}, v{P+1}, s[{S_WS}:{S_WS+3}], s{S_STAMP} offen
            s_mov_b64 exec, -1""")

    a(f"""
    K3_round:
    v_lshlrev_b32 v{V_L8}, 3, v{V_LANE}
    v_mov_b32 v{V_ONE}, 1""")
    rl = cfg["rec_load"]

    a(f"""
    v_mov_b32 v{V_SL}, v{V_TLEN}
    v_mov_b32 v{V_SO}, v{V_TOFF}
    v_cmp_lt_u32 vcc, {PIECE}, v{V_TLEN}
    s_or_b32 s{S_T}, vcc_lo, s{S_SEG}
    s_cbranch_scc1 K3_long
    s_mov_b32 s{S_SEG}, 32
    K3_listed:""")
    cold(f"""
    K3_long:
    s_mov_b32 s{S_I+2}, {2 * PIECE}
    v_cmp_lt_u32 s[{S_T}:{S_T+1}], s{S_I+2}, v{V_TLEN}
    s_bcnt1_i32_b32 s{S_I}, vcc_lo
    s_or_b32 s{S_T}, s{S_T}, s{S_SEG}
    s_cbranch_scc1 K3_general
    s_cmp_gt_u32 s{S_I}, {NS - 32}
    s_cbranch_scc1 K3_general
    s_mov_b32 s{S_SEG}, 32
    s_mov_b32 s{S_I}, vcc_lo
    K3_spill:
    s_cmp_eq_u32 s{S_I}, 0
    s_cbranch_scc1 K3_listed
    s_ff1_i32_b32 s{S_I+1}, s{S_I}
    s_bitset0_b32 s{S_I}, s{S_I+1}
    v_readlane_b32 s{S_T}, v{V_TLEN}, s{S_I+1}
    v_readlane_b32 s{S_T+1}, v{V_TOFF}, s{S_I+1}
    s_mov_b32 m0, s{S_I+1}
    s_sub_u32 s{S_T}, s{S_T}, {PIECE}
    v_writelane_b32 v{V_SL}, {PIECE}, m0
    s_bcnt1_i32_b32 s{S_I+1}, s{S_I}
    s_add_u32 m0, s{S_I+1}, 32
    s_add_u32 s{S_T+1}, s{S_T+1}, {PIECE*8}
    v_writelane_b32 v{V_SL}, s{S_T}, m0
    v_writelane_b32 v{V_SO}, s{S_T+1}, m0
    s_branch K3_spill
    K3_general:
    s_mov_b32 s{S_I}, 0
    K3_slot:
    s_cmp_lg_u32 s{S_REM}, 0
    s_cbranch_scc1 K3_have
    K3_adv:
    s_cmp_ge_u32 s{S_SEG}, 32
    s_cbranch_scc1 K3_have
    v_readlane_b32 s{S_REM}, v{V_TLEN}, s{S_SEG}
    v_readlane_b32 s{S_OFF}, v{V_TOFF}, s{S_SEG}
    s_add_u32 s{S_SEG}, s{S_SEG}, 1
    s_cmp_eq_u32 s{S_REM}, 0
    s_cbranch_scc1 K3_adv
    K3_have:
    s_min_u32 s{S_T}, s{S_REM}, {PIECE}
    s_mov_b32 m0, s{S_I}
    s_mov_b32 s{S_T+1}, s{S_OFF}
    v_writelane_b32 v{V_SL}, s{S_T}, m0
    v_writelane_b32 v{V_SO}, s{S_T+1}, m0
    s_sub_u32 s{S_REM}, s{S_REM}, s{S_T}
    s_add_u32 s{S_OFF}, s{S_OFF}, {PIECE*8}
    s_add_u32 s{S_I}, s{S_I}, 1
    s_cmp_lt_u32 s{S_I}, {NS}
    s_cbranch_scc1 K3_slot
    s_branch K3_listed""")

    at = cfg['self_at']
    order = list(range(at)) + [NS, NS + 1] + list(range(at, NS))
    groups = [order[i:i + G] for i in range(0, NSL, G)]
    vm = []

    def loads(gi):
        ks = [k for k in groups[gi] if k < NS]
        for n0 in range(0, len(ks), 3):
            for n, k in enumerate(ks[n0:n0 + 3]):
                a(f"v_readlane_b32 s{S_I+n}, v{V_SO}, {k}")
            for n, k in enumerate(ks[n0:n0 + 3]):
                a(f"v_readlane_b32 s{S_R+k}, v{V_SL}, {k}")
            for n, k in enumerate(ks[n0:n0 + 3]):
                if cfg["mask_rec"]:
                    a(f"s_max_u32 s{S_T+1}, s{S_R+k}, 1\ns_bfm_b64 exec, s{S_T+1}, 0")
                a(f"buffer_load_dwordx2 v[{P+2*k}:{P+2*k+1}], v{V_L8}, s[{S_WS}:{S_WS+3}], s{S_I+n} offen {rl}")
                vm.append(k)
        if NS in groups[gi]:
            a(f"""
            s_mov_b64 exec, -1
            s_lshl_b32 s{S_T}, s{S_WAVE}, 8
            s_add_u32 s{S_T}, s{S_T}, s{S_B}
            s_lshl_b32 s{S_T}, s{S_T}, 1
            s_add_u32 s{S_T+1}, s{S_T}, {40 * 4096}
            v_lshlrev_b32 v9, 12, v{V_LANE}
            s_bfm_b64 exec, 40, 0
            buffer_load_ushort v{SA+1}, v9, s[{S_D}:{S_D+3}], s{S_T} offen
            buffer_load_ushort v{SB+1}, v9, s[{S_D}:{S_D+3}], s{S_T+1} offen""")
            vm.extend([NS, NS + 1])
        a("s_mov_b64 exec, -1")

    AH = cfg["ahead"]
    for gi in range(AH):
        loads(gi)

    def bin_start(dst, tmp_):
        a(f"""
        s_mul_i32 s{S_T}, s{S_WAVE}, {NBLK * CAPB}
        v_min_u32 v{tmp_}, {NBLK}, v{V_LANE}
        v_mul_u32_u24 v{tmp_}, {CAPB}, v{tmp_}
        v_add_u32 v{dst}, s{S_T}, v{tmp_}""")

    bin_start(TK + 1, TK + 1)
    a(f"""
    s_lshl_b32 s{S_T}, s{S_WAVE}, 7
    v_lshl_add_u32 v{TK}, v{V_LANE}, 2, s{S_T}
    s_bfm_b64 exec, 32, 0
    ds_write_b32 v{TK}, v{TK+1} offset:{CUR}
    s_mov_b64 exec, -1
    v_cmp_le_u32 vcc, s{S_SEG}, v{V_LANE}
    v_cmp_lt_u32 s[{S_T}:{S_T+1}], 0, v{V_TLEN}
    s_and_b32 s{S_T}, s{S_T}, vcc_lo
    s_or_b32 s{S_T}, s{S_T}, s{S_REM}
    s_waitcnt lgkmcnt(0)
    s_barrier
    s_cmp_lg_u32 s{S_T}, 0
    s_cbranch_scc1 K3_more
    K3_nomore:""")
    cold(f"""
    K3_more:
    v_mov_b32 v{V_PF}, {FLAG}
    ds_write_b32 v{V_PF}, v{V_ONE}
    s_branch K3_nomore""")

    def tmp(gi, j):
        return TK + (gi % 2) * G + j

    def place(cursors, first):
        def keys(gi):
            for j, k in enumerate(groups[gi]):
                if first and k < NS:
                    a(f"s_waitcnt vmcnt({len(vm) - 1 - vm.index(k)})")
                a(f"v_lshrrev_b32 v{tmp(gi, j)}, {SHIFT-2}, v{P+2*k}\nv_and_b32 v{tmp(gi, j)}, {KMASK}, v{tmp(gi, j)}")

        def take(gi):
            for j, k in enumerate(groups[gi]):
                a(f"s_bfm_b64 exec, s{S_R+k}, 0\nds_add_rtn_u32 v{tmp(gi, j)}, v{tmp(gi, j)}, v{V_ONE} offset:{cursors}")
            a("s_mov_b64 exec, -1")

        def move(gi):
            for j, k in enumerate(groups[gi]):
                a(f"v_lshlrev_b32 v{tmp(gi, j)}, 3, v{tmp(gi, j)}")
            if first and NS in groups[gi]:
                a(f"s_waitcnt vmcnt({len(vm) - 1 - vm.index(NS + 1)})\nv_lshlrev_b32 v{SA+1}, 16, v{SA+1}\nv_lshlrev_b32 v{SB+1}, 16, v{SB+1}")
            for j, k in enumerate(groups[gi]):
                a(f"s_bfm_b64 exec, s{S_R+k}, 0\nds_write_b64 v{tmp(gi, j)}, v[{P+2*k}:{P+2*k+1}] offset:{RECS}")
            a("s_mov_b64 exec, -1")

        for gi in range(len(groups)):
            if first and gi + AH < len(groups):
                loads(gi + AH)
            keys(gi)
            if gi:
                a("s_waitcnt lgkmcnt(0)")
            take(gi)
            if gi:
                move(gi - 1)
        a("s_waitcnt lgkmcnt(0)")
        move(len(groups) - 1)
        if first:
            a(f"""
            v_and_b32 v{V_L16}, 15, v{V_LANE}
            v_lshlrev_b32 v{V_L16}, 4, v{V_L16}
            s_lshl_b32 s{S_T}, s{S_WAVE}, 8
            s_add_u32 s{S_T}, s{S_T}, {RINGO}
            v_lshrrev_b32 v9, 4, v{V_LANE}
            v_lshl_add_u32 v{V_OADDR}, v9, 3, s{S_T}
            v_lshrrev_b32 v{V_RINGO}, 3, v{V_LANE}
            v_lshlrev_b32 v{V_RINGO}, 5, v{V_RINGO}
            v_and_b32 v9, 3, v{V_LANE}
            v_lshl_add_u32 v{V_RINGO}, v9, 3, v{V_RINGO}
            v_bfe_u32 v9, v{V_LANE}, 2, 1
            v_lshl_add_u32 v{V_RINGO}, v9, 2, v{V_RINGO}
            v_add_u32 v{V_RINGO}, s{S_T}, v{V_RINGO}""")
        a("s_waitcnt lgkmcnt(0)\ns_barrier")

    place(CUR, True)
    stamp(a, cfg, S_WS, 1, TK, 98, S_STAMP)

    C, X, Y, AD, ST, OWN = TK, TK + 4, TK + 5, TK + 6, TK + 7, TK + 8
    a(f"""
    v_lshlrev_b32 v{AD}, 4, v{V_LANE}
    v_mov_b32 v{X}, {FLAG}
    s_lshl_b32 s{S_T}, s{S_WAVE}, 7
    v_lshl_add_u32 v{OWN}, v{V_LANE}, 2, s{S_T}
    ds_read_b128 v[{C}:{C+3}], v{AD} offset:{CUR}
    ds_read_b32 v{X}, v{X}
    ds_read_b32 v{OWN}, v{OWN} offset:{CUR}
    v_lshrrev_b32 v{Y}, 3, v{V_LANE}
    v_mul_u32_u24 v{Y}, {NBLK}, v{Y}
    v_and_b32 v{ST}, 7, v{V_LANE}
    v_lshlrev_b32 v{ST}, 2, v{ST}
    v_min_u32 v{ST}, {NBLK}, v{ST}
    v_add_u32 v{ST}, v{ST}, v{Y}
    v_mul_u32_u24 v{ST}, {CAPB}, v{ST}
    v_and_b32 v{Y}, 7, v{V_LANE}
    v_cmp_gt_u32 vcc, {NBLK // 4}, v{Y}
    v_mov_b32 v{Y}, {CAPB}
    s_waitcnt lgkmcnt(0)
    v_cndmask_b32 v{Y}, 0, v{Y}, vcc
    v_readfirstlane_b32 s{S_MORE}, v{X}""")
    assert NBLK % 4 == 0
    for q in range(4):
        a(f"v_sub_u32 v{C+q}, v{C+q}, v{ST}")
        if q < 3:
            a(f"v_add_u32 v{ST}, v{ST}, v{Y}")
    a(f"""
    v_max_u32 v{X}, v{C}, v{C+1}
    v_max3_u32 v{X}, v{X}, v{C+2}, v{C+3}
    v_cmp_lt_u32 vcc, {CAPB}, v{X}
    s_cmp_lg_u32 s{S_MORE}, 0
    s_cbranch_scc1 K3_clear
    K3_keep:
    s_cbranch_vccnz K3_over""")
    cold(f"""
    K3_clear:
    s_barrier
    v_mov_b32 v{X}, {FLAG}
    v_mov_b32 v{Y}, 0
    ds_write_b32 v{X}, v{Y}
    s_branch K3_keep""")

    a = cold
    a("K3_over:")
    for q in range(1, 4):
        a(f"v_add_u32 v{C+q}, v{C+q}, v{C+q-1}")
    a(f"v_mov_b32 v{X}, v{C+3}")
    wave_scan(a, X)
    a(f"v_sub_u32 v{Y}, v{X}, v{C+3}")
    for q in range(3, 0, -1):
        a(f"v_add_u32 v{C+q}, v{Y}, v{C+q-1}")
    a(f"""
    v_mov_b32 v{C}, v{Y}
    s_lshl_b32 s{S_T}, s{S_WAVE}, 3
    s_add_u32 s{S_T+1}, s{S_T}, 7
    s_bfm_b64 exec, 8, s{S_T}
    ds_write_b128 v{AD}, v[{C}:{C+3}] offset:{BASE}
    s_mov_b64 exec, -1
    v_readlane_b32 s{S_START}, v{Y}, s{S_T}
    v_readlane_b32 s{S_N}, v{X}, s{S_T+1}
    s_sub_u32 s{S_N}, s{S_N}, s{S_START}
    s_waitcnt lgkmcnt(0)
    s_barrier""")
    place(BASE, False)
    a(f"""
    s_lshl_b32 s{S_R}, s{S_START}, 16
    s_or_b32 s{S_R}, s{S_R}, 0xffff
    s_branch K3_placed""")
    a = hot
    bin_start(ST, ST)
    a(f"""
    v_cmp_gt_u32 vcc, {NBLK}, v{V_LANE}
    v_sub_u32 v{C}, v{OWN}, v{ST}
    v_cndmask_b32 v{X}, 0, v{C}, vcc""")
    wave_scan(a, X)
    a(f"""
    v_sub_u32 v{Y}, v{OWN}, v{X}
    v_lshl_or_b32 v{Y}, v{Y}, 16, v{X}
    v_readlane_b32 s{S_N}, v{X}, {NBLK-1}""")
    for b in range(NBLK):
        a(f"v_readlane_b32 s{S_R+b}, v{Y}, {b}")
    a(f"""
    s_or_b32 s{S_R+NBLK-1}, s{S_R+NBLK-1}, 0xffff
    K3_placed:""")

    T0, T1, T2, T3 = V_T, V_T + 1, V_T + 2, V_T + 3
    U0, U1 = V_S, V_S + 1
    assert V_RADDR == V_L8 and (V_L16, V_RINGO, V_OADDR) == (V_SL, V_SO, V_PF)

    def late_constants():
        a(f"""
        v_mov_b32 v{V_MHI}, 0xffff0000
        s_lshl_b32 s{S_T}, s{S_WAVE}, 10
        s_add_u32 s{S_T}, s{S_T}, {RING}
        v_lshl_add_u32 v{V_RINGW}, v{V_LANE}, 4, s{S_T}
        v_bfe_u32 v{T0}, v{V_LANE}, 3, 2
        v_bfe_u32 v{T1}, v{V_LANE}, 1, 1
        v_lshl_add_u32 v{T0}, v{T0}, 1, v{T1}
        v_and_b32 v{T1}, 1, v{V_LANE}
        v_lshlrev_b32 v{T0}, 4, v{T0}
        v_lshlrev_b32 v{T2}, 3, v{T1}
        v_sub_u32 v{T0}, v{T0}, v{T2}
        v_add_u32 v{T0}, s{S_T}, v{T0}
        v_bfe_u32 v{T2}, v{V_LANE}, 2, 1
        v_lshrrev_b32 v{T3}, 5, v{V_LANE}
        v_cmp_eq_u32 vcc, v{T2}, v{T3}
        v_mov_b32 v{T2}, {ZERO}
        v_lshrrev_b32 v{T3}, 4, v{V_LANE}
        v_cndmask_b32 v{V_AADDR}, v{T2}, v{T0}, vcc
        v_mov_b32 v{T0}, 0x3f80
        v_cmp_eq_u32 vcc, 1, v{T1}
        v_bfe_u32 v{T2}, v{V_LANE}, 1, 1
        v_bfe_u32 v{U0}, v{V_LANE}, 2, 2
        v_cndmask_b32 v{T0}, v{T0}, 1.0, vcc
        v_sub_u32 v{T3}, v{T3}, v{T2}
        v_lshl_add_u32 v{T3}, v{T3}, 2, v{U0}""")
        a(f"""
        s_cmp_eq_u32 s{S_R+NS}, 0
        s_cbranch_scc1 K3_unpacked
        s_and_b32 s{S_ELL+2}, s{S_ELL}, 0xffff0000
        s_lshl_b32 s{S_ELL}, s{S_ELL}, 16
        s_lshl_b32 s{S_T}, s{S_ELL+1}, 16
        s_mov_b32 s{S_ELL+1}, s{S_ELL+2}
        s_mov_b32 s{S_ELL+2}, s{S_T}
        s_lshl_b32 s{S_FREQ}, s{S_FREQ}, 16
        s_mov_b32 s{S_T}, 0x05040100
        s_mov_b32 s{S_T+1}, 0x07060302
        v_perm_b32 v{T1}, v{V_BW+2}, v{V_BW}, s{S_T}
        v_perm_b32 v{T2}, v{V_BW+3}, v{V_BW+1}, s{S_T}
        v_perm_b32 v{V_BW+2}, v{V_BW+2}, v{V_BW}, s{S_T+1}
        v_perm_b32 v{V_BW+3}, v{V_BW+3}, v{V_BW+1}, s{S_T+1}
        v_mov_b32 v{V_BW}, v{T1}
        v_mov_b32 v{V_BW+1}, v{T2}
        K3_unpacked:""")
        for aa in range(2):
            for q in range(4):
                sp = S_T if q % 2 else S_I
                a(f"v_cmp_eq_u32 s[{sp}:{sp+1}], {8*aa+q}, v{T3}")
                if q % 2:
                    a(f"""
                    s_nop 0
                    v_cndmask_b32 v{V_AU+4*aa+q-1}, 0, v{T0}, s[{S_I}:{S_I+1}]
                    v_cndmask_b32 v{V_AU+4*aa+q}, 0, v{T0}, s[{S_T}:{S_T+1}]""")

    stamp(a, cfg, S_WS, 2, V_RAW, 98, S_STAMP)
    a(f"""
    s_cmp_eq_u32 s{S_N}, 0
    s_cbranch_scc1 K3_swept
    s_mov_b32 s{S_BIN}, 0
    s_mov_b32 s{S_POS}, 0
    s_and_b32 s{S_NEXT}, s{S_R}, 0xffff
    s_lshr_b32 s{S_D8}, s{S_R}, 16
    s_lshl_b32 s{S_D8}, s{S_D8}, 3""")

    R, TH = V_RN, V_RN + 1
    stage1 = [
        f"v_cmp_gt_i32 vcc, s{S_N}, v{V_LANE}",
        f"v_mov_b32 v{T0}, s{S_MASK}",
        f"v_mov_b32 v{T1}, 1.0",
        f"v_cndmask_b32 v{R}, v{T0}, v{R}, vcc",
        f"v_cndmask_b32 v{TH}, v{T1}, v{TH}, vcc",
        f"v_and_b32 v{T0}, v{V_MHI}, v{TH}",
        f"v_lshlrev_b32 v{TH}, 16, v{TH}",
        f"v_rcp_f32 v{V_RADV}, v{T0}",
        f"v_mul_f32 v{T0}, s{S_FREQ}, v{T0}",
        f"v_cvt_pk_bf16_f32 v{T0}, v{T0}, v{T0}",
        f"v_and_b32 v{T0}, v{V_MHI}, v{T0}",
        f"v_mul_f32 v{T1}, s{S_CHI}, v{T0}",
        f"v_rndne_f32 v{T2}, v{T1}",
        f"v_sub_f32 v{T1}, v{T1}, v{T2}",
        f"v_fma_f32 v{T0}, v{T0}, s{S_CLO}, v{T1}",
        f"v_sin_f32 v{T0}, v{T0}",
        f"v_or_b32_sdwa v{V_IN}, v{R}, s{S_MODE} dst_sel:DWORD dst_unused:UNUSED_PAD src0_sel:BYTE_0 src1_sel:DWORD",
        f"v_cvt_pk_bf16_f32 v{T0}, v{T0}, v{T0}",
        f"v_and_b32 v{T0}, v{V_MHI}, v{T0}",
        f"v_mul_f32 v{V_RADV}, v{T0}, v{V_RADV}",
        f"v_cvt_pk_bf16_f32 v{V_RADV}, v{V_RADV}, v{V_RADV}",
        f"v_and_b32 v{V_RADV}, v{V_MHI}, v{V_RADV}",
    ]
    stage2 = [
        f"v_mul_f32 v{T0}, s{S_ELL}, v{TH}",
        f"v_mul_f32 v{T1}, s{S_ELL+1}, v{TH}",
        f"v_mov_b32_dpp v{T3}, v{V_IN} quad_perm:[1,1,3,3] row_mask:0xf bank_mask:0xf",
        f"v_mul_f32 v{T2}, s{S_ELL+2}, v{TH}",
        f"v_lshl_or_b32 v{V_IN}, v{T3}, 16, v{V_IN}",
        f"v_cvt_pk_bf16_f32 v{T0}, v{T0}, v{T1}",
        f"v_cvt_pk_bf16_f32 v{T2}, v{T2}, v{T2}",
        f"v_and_b32 v{T1}, v{V_MHI}, v{T0}",
        f"v_lshlrev_b32 v{T0}, 16, v{T0}",
        f"v_and_b32 v{T2}, v{V_MHI}, v{T2}",
        f"v_mul_f32 v{U0}, s{S_CHI}, v{T0}",
        f"v_mul_f32 v{U1}, s{S_CHI}, v{T1}",
        f"v_mul_f32 v{T3}, s{S_CHI}, v{T2}",
        f"v_fract_f32 v{U0}, v{U0}",
        f"v_fract_f32 v{U1}, v{U1}",
        f"v_fract_f32 v{T3}, v{T3}",
        f"v_fma_f32 v{T0}, v{T0}, s{S_CLO}, v{U0}",
        f"v_fma_f32 v{T1}, v{T1}, s{S_CLO}, v{U1}",
        f"v_fma_f32 v{T2}, v{T2}, s{S_CLO}, v{T3}",
        f"v_cos_f32 v{T0}, v{T0}",
        f"v_cos_f32 v{T1}, v{T1}",
        f"v_cos_f32 v{T2}, v{T2}",
        f"v_cmp_gt_i32 vcc, 0, v{R}",
        f"v_cvt_pk_bf16_f32 v{T0}, v{T0}, v{T1}",
        f"v_cvt_pk_bf16_f32 v{T2}, v{T2}, v{T2}",
        f"v_and_b32 v{T1}, v{V_MHI}, v{T0}",
        f"v_lshlrev_b32 v{T0}, 16, v{T0}",
        f"v_and_b32 v{T2}, v{V_MHI}, v{T2}",
    ]
    if cfg["const_ell"]:
        stage2 = [
            f"v_mul_f32 v{T2}, s{S_ELL+2}, v{TH}",
            f"v_mov_b32_dpp v{T3}, v{V_IN} quad_perm:[1,1,3,3] row_mask:0xf bank_mask:0xf",
            f"v_mul_f32 v{U0}, s{S_CHI}, v{TH}",
            f"v_cvt_pk_bf16_f32 v{T2}, v{T2}, v{T2}",
            f"v_lshl_or_b32 v{V_IN}, v{T3}, 16, v{V_IN}",
            f"v_and_b32 v{T2}, v{V_MHI}, v{T2}",
            f"v_fract_f32 v{U0}, v{U0}",
            f"v_mul_f32 v{T3}, s{S_CHI}, v{T2}",
            f"v_fma_f32 v{T0}, v{TH}, s{S_CLO}, v{U0}",
            f"v_fract_f32 v{T3}, v{T3}",
            f"v_cos_f32 v{T0}, v{T0}",
            f"v_fma_f32 v{T2}, v{T2}, s{S_CLO}, v{T3}",
            f"v_add_f32 v{T1}, v{T0}, v{T0}",
            f"v_cos_f32 v{T2}, v{T2}",
            f"v_fma_f32 v{T1}, v{T1}, v{T0}, -1.0",
            f"v_cmp_gt_i32 vcc, 0, v{R}",
            f"v_cvt_pk_bf16_f32 v{T0}, v{T0}, v{T1}",
            f"v_cvt_pk_bf16_f32 v{T2}, v{T2}, v{T2}",
            f"v_and_b32 v{T1}, v{V_MHI}, v{T0}",
            f"v_lshlrev_b32 v{T0}, 16, v{T0}",
            f"v_and_b32 v{T2}, v{V_MHI}, v{T2}",
        ]
    stage3 = [
        f"v_mul_f32 v{T0}, v{T0}, v{V_RADV}",
        f"v_mul_f32 v{T1}, v{T1}, v{V_RADV}",
        f"v_mul_f32 v{T2}, v{T2}, v{V_RADV}",
        f"v_cvt_pk_bf16_f32 v{U0}, v{T0}, v{T1}",
        f"v_cvt_pk_bf16_f32 v{U1}, v{T2}, 0",
        f"v_cndmask_b32 v{U0}, v{U0}, 0, vcc",
        f"v_cndmask_b32 v{U1}, v{U1}, v{V_RADV}, vcc",
    ]

    def fetch_batch(tag):
        a(f"""
        v_add_u32 v{T2}, s{S_D8}, v{V_RADDR}
        s_add_u32 s{S_T+1}, s{S_POS}, 64
        s_cmp_ge_u32 s{S_NEXT}, s{S_T+1}
        s_cbranch_scc1 K3_same{tag}
        K3_cross{tag}:
        s_add_u32 s{S_BIN}, s{S_BIN}, 1
        s_mov_b32 m0, s{S_BIN}
        s_sub_u32 s{S_T}, s{S_NEXT}, s{S_POS}
        s_movrels_b32 s{S_NEXT}, s{S_R}
        v_cmp_le_u32 vcc, s{S_T}, v{V_LANE}
        s_lshr_b32 s{S_D8}, s{S_NEXT}, 16
        s_lshl_b32 s{S_D8}, s{S_D8}, 3
        s_and_b32 s{S_NEXT}, s{S_NEXT}, 0xffff
        v_add_u32 v{V_OFF}, s{S_D8}, v{V_RADDR}
        v_cndmask_b32 v{T2}, v{T2}, v{V_OFF}, vcc
        s_cmp_lt_u32 s{S_NEXT}, s{S_T+1}
        s_cbranch_scc1 K3_cross{tag}
        K3_same{tag}:
        ds_read_b64 v[{V_RN}:{V_RN+1}], v{T2} offset:{RECS}
        v_add_u32 v{V_RADDR}, 512, v{V_RADDR}
        s_mov_b32 s{S_POS}, s{S_T+1}""")

    def issue(L):
        o = V_O + 2 * ((L // 2) % 2) + L % 2
        raw = V_RAW + 4 * (L % 8)
        a(f"v_add_u32 v{o}, v{o}, v{V_L16}")
        a(f"buffer_load_dwordx4 v[{raw}:{raw+3}], v{o}, s[{S_H}:{S_H+3}], 0 offen {cfg['row_load']}")

    def o_read(j):
        o = V_O + 2 * (j % 2)
        a(f"ds_read_b64 v[{o}:{o+1}], v{V_OADDR} offset:{32 * (j % 8)}")

    def o_write():
        a(f"v_and_b32 v{V_OFF}, s{S_MASK}, v{R}\nds_write_b32 v{V_RINGO}, v{V_OFF}")

    def a_read(g):
        a(f"ds_read2_b64 v[{V_A}:{V_A+3}], v{V_AADDR} offset0:{16*g} offset1:{16*g+1}")

    def read_step(j):
        return (2 * j - D) // 2 * 2 - 2

    PROG = FLAG + 16
    if cfg["prio"]:
        a(f"""
        s_lshl_b32 s{S_T}, s{S_WAVE}, 2
        s_add_u32 s{S_PF}, s{S_T}, {PROG}
        s_xor_b32 s{S_T}, s{S_T}, 16
        s_add_u32 s{S_NMAX}, s{S_T}, {PROG}""")
    fetch_batch("0")
    a("s_waitcnt lgkmcnt(0)")
    for s in stage1[:5]:
        a(s)
    o_write()
    early = [j for j in range(8) if read_step(j) < 0]
    for j0 in range(0, len(early), 2):
        for j in early[j0:j0 + 2]:
            o_read(j)
        nxt = [L for j in early[j0:j0 + 2] for L in (2 * j, 2 * j + 1) if L < D]
        if nxt:
            a("s_waitcnt lgkmcnt(0)")
            for L in nxt:
                issue(L)
    late_constants()
    for s in stage1[5:] + stage2 + stage3:
        a(s)
    a(f"ds_write_b64 v{V_RINGW}, v[{V_S}:{V_S+1}]\nv_mov_b32 v{V_IC}, v{V_IN}")
    a_read(0)

    body = Asm()
    a_main = a
    fill = {i: [] for i in range(16)}
    fill[2] = stage1[:5]
    rest = stage1[5:] + stage2 + stage3
    steps = list(range(3, 14))
    for n, s in enumerate(rest):
        fill[steps[n * len(steps) // len(rest)]].append(s)
    a = body
    for i in range(16):
        if i and i % cfg["exit_every"] == 0:
            a(f"s_cmp_le_i32 s{S_N}, {4*i-64}\ns_cbranch_scc1 K3_drain")
        if i % 2 == 0:
            a(f"s_waitcnt lgkmcnt(0)\nv_mfma_f32_32x32x16_bf16 v[{V_F}:{V_F+15}], v[{V_A}:{V_A+3}], v[{V_BW}:{V_BW+3}], 0")
            if i == 0:
                a(f"s_sub_u32 s{S_N}, s{S_N}, 64")
                fetch_batch("1")
            if cfg["prio"] and i == 0:
                a(f"""
                v_mov_b32 v{T0}, s{S_PF}
                v_mov_b32 v{T1}, s{S_N}
                v_mov_b32 v{T3}, s{S_NMAX}
                ds_write_b32 v{T0}, v{T1}
                ds_read_b32 v{T3}, v{T3}""")
            if cfg["prio"] and i == 2:
                a(f"""
                v_readfirstlane_b32 s{S_T}, v{T3}
                s_cmp_gt_i32 s{S_N}, s{S_T}
                s_cbranch_scc1 K3_behind
                s_setprio 0
                s_branch K3_prio
                K3_behind:
                s_setprio 1
                K3_prio:""")
            if i == 14:
                a(f"ds_write_b64 v{V_RINGW}, v[{V_S}:{V_S+1}]")
            a_read((i // 2 + 1) % 8)
        n = D - 1
        raw = V_RAW + 4 * (i % 8)
        a(f"""
        s_waitcnt vmcnt({n})
        v_mfma_f32_16x16x32_bf16 v[{V_H}:{V_H+3}], v[{V_AU}:{V_AU+3}], v[{raw}:{raw+3}], 0
        v_mfma_f32_16x16x32_bf16 v[{V_H+4}:{V_H+7}], v[{V_AU+4}:{V_AU+7}], v[{raw}:{raw+3}], 0""")
        issue(i + D)
        for j in range(16):
            if read_step(j) == i:
                if j == 8:
                    o_write()
                o_read(j)
        a(f"v_readlane_b32 s{S_I}, v{V_IC}, {4*i}\nv_readlane_b32 s{S_I+1}, v{V_IC}, {4*i+2}")
        for s in fill[i]:
            a(s)
        for j in range(4):
            f = V_F + 2 * (4 * (i % 2) + j)
            a([f"s_set_gpr_idx_on s{S_I}, gpr_idx(SRC2,DST)", f"s_lshr_b32 m0, s{S_I}, 16",
               f"s_mov_b32 m0, s{S_I+1}", f"s_lshr_b32 m0, s{S_I+1}, 16"][j])
            a(f"v_pk_fma_f32 v[{ACC}:{ACC+1}], v[{V_H+2*j}:{V_H+2*j+1}], v[{f}:{f+1}], v[{ACC}:{ACC+1}]")
        a("s_set_gpr_idx_off")
    a(f"""
    v_mov_b32 v{V_IC}, v{V_IN}
    s_cmp_gt_i32 s{S_N}, 0
    s_cbranch_scc1 K3_batch""")
    a = a_main
    lines, added = pad(body.lines)
    again, extra = pad(lines, before=lines)
    assert extra == 0
    print(f"sweep loop: {len(lines)} instructions, {added} padded wait states", file=sys.stderr)
    if cfg["align"]:
        a.raw(".p2align 6")
        for _ in range(cfg["align"] - 1):
            a("s_nop 0")
    a("K3_batch:")
    a.lines += lines
    a(f"""
    K3_drain:
    s_waitcnt vmcnt(0) lgkmcnt(0)
    K3_swept:
    s_mov_b32 s{S_R+NS}, 0
    s_mov_b32 s{S_R+NS+1}, 0
    s_waitcnt lgkmcnt(0)
    s_cmp_lg_u32 s{S_MORE}, 0
    s_cbranch_scc1 K3_round""")
    stamp(a, cfg, S_WS, 4, P, 98, S_STAMP)

    st = cfg["out_store"]
    a(f"""
    v_and_b32 v7, 15, v{V_LANE}
    v_lshrrev_b32 v8, 4, v{V_LANE}
    v_lshlrev_b32 v7, 4, v7
    v_lshl_add_u32 v7, v8, 19, v7
    s_lshl_b32 s{S_T}, s{S_WAVE}, 8
    s_add_u32 s{S_T}, s{S_T}, s{S_B}
    s_lshl_b32 s{S_T}, s{S_T}, 8""")
    for i in range(20):
        t = P + 4 * (i % 8)
        for k in range(4):
            r = min(4 * i + k, 78)
            a(f"v_cvt_pk_bf16_f32 v{t+k}, v{ACC+2*r}, v{ACC+2*r+1}")
        a(f"""
        s_nop 0
        v_permlane32_swap_b32 v{t}, v{t+2}
        v_permlane32_swap_b32 v{t+1}, v{t+3}
        s_nop 1
        v_permlane16_swap_b32 v{t}, v{t+1}
        v_permlane16_swap_b32 v{t+2}, v{t+3}
        buffer_store_dwordx4 v[{t}:{t+3}], v7, s[{S_OUT}:{S_OUT+3}], s{S_T} offen {st}
        s_add_u32 s{S_T}, s{S_T}, {4 << 19}""")
    if cfg["stamps"]:
        a("s_waitcnt vmcnt(0)")
        stamp(a, cfg, S_WS, 5, P, 98, S_STAMP)
    a("K3_end:\ns_endpgm")
    a.lines += cold.lines
    return lds


def descriptor(name, vgpr, sgpr):
    return f""".p2align 6
.amdhsa_kernel {name}
  .amdhsa_next_free_vgpr {vgpr}
  .amdhsa_next_free_sgpr {sgpr}
  .amdhsa_accum_offset {(vgpr + 3) // 4 * 4}
  .amdhsa_group_segment_fixed_size 0
  .amdhsa_kernarg_size 96
  .amdhsa_user_sgpr_count 2
  .amdhsa_user_sgpr_kernarg_segment_ptr 1
  .amdhsa_system_sgpr_workgroup_id_x 1
  .amdhsa_float_denorm_mode_32 3
.end_amdhsa_kernel
"""


DEFAULT = dict(stamps=0, ns=34, dpl=7, rec_load="", capb=114, k1_load="nt", k1_store="sc1", out_store="sc0 sc1", dbg=0, row_load="", prio=1, mask_rec=1, exit_every=4, rot=5, ahead=1, const_ell=0, k1_threads=1024, self_at=34, align=0)


def generate(**kw):
    cfg = dict(DEFAULT)
    cfg.update(kw)
    a = Asm()
    lds1, vgpr1 = gen_bucket(a, cfg)
    lds3 = gen_sweep(a, cfg)
    a.lines, added = pad("\n".join(a.lines).split("\n"))
    print(f"{added} wait states padded outside the loop", file=sys.stderr)
    ref = open("standalone__molecular_angular_dimenet__graph.s.ref").read().split("\n")
    head = [ln for ln in ref if ln.startswith(";   offset") or ln.startswith("; Kernarg")]
    head += [
        "; Launch 1 sorts every chunk of 10240 triplets by destination bucket (ji & 255) into 8-byte records",
        ";   {wave | source row | accumulator index, d[source] : theta} and writes a {start, length} table.",
        "; Launch 2 handles one bucket per workgroup: records are binned by (wave, source block) in LDS, each wave",
        ";   keeps the fp32 sums of its rows in v98..v255 and visits the source rows in increasing order.",
        ";   Per four rows: one 16-byte-per-lane gather, two MFMAs that unpack/transpose bf16 to fp32, half an MFMA",
        ";   for the filter sbf @ w_sbf (self term: rbf * w_rbf), and four indexed packed FMAs.",
        f"; @launch kernel=bucket_kernel grid=({NCHUNK},1,1) block=({cfg['k1_threads']},1,1) lds={lds1}",
        f"; @launch kernel=sweep_kernel grid=(256,1,1) block=(512,1,1) lds={lds3}",
        '.amdgcn_target "amdgcn-amd-amdhsa--gfx950"',
        ".text",
    ]
    tail = '.section .rodata,"a"\n' + descriptor("bucket_kernel", vgpr1, 64) + descriptor("sweep_kernel", 256, 102)
    return "\n".join(head) + "\n" + a.text() + tail


if __name__ == "__main__":
    out = sys.argv[1]
    kw = {}
    for arg in sys.argv[2:]:
        k, v = arg.split("=", 1)
        kw[k] = type(DEFAULT[k])(int(v)) if isinstance(DEFAULT[k], (bool, int)) else v
    open(out, "w").write(generate(**kw))
```
